```python
import torch

def _softmax(x, axis=-1):
    return torch.softmax(x, dim=axis)

def _gelu(x):
    return torch.nn.functional.gelu(x, approximate='tanh')

def _silu(x):
    return torch.nn.functional.silu(x)

def _sigmoid(x):
    return torch.sigmoid(x)

def _layernorm(x, axis=-1, eps=1e-05):
    m = x.mean(dim=axis, keepdim=True)
    v = x.var(dim=axis, keepdim=True, unbiased=False)
    return (x - m) / torch.sqrt(v + eps)

def _scatter_add(tgt, idx, src, axis=0):
    return tgt.clone().index_add_(axis, idx, src)

def _segment_sum(src, seg, n):
    out = torch.zeros((n,) + src.shape[1:], dtype=src.dtype)
    return out.index_add_(0, seg, src)

def _pad(x, pw):
    flat = tuple((v for pair in reversed(pw) for v in pair))
    return torch.nn.functional.pad(x, flat)
kernel_name = 'standalone__tensor_product_equiv_mace__graph'

def setup_inputs():

    _w = lambda a: (lambda t: t.to(torch.bfloat16) if t.is_floating_point() else t)(torch.as_tensor(a))
    N, deg = (10000, 16)
    Lmax, C, De = (1, 256, 16)
    M = (Lmax + 1) ** 2
    E = N * deg
    src = (lambda lo, hi, *s: torch.randint(lo, hi, s))(0, N, E).to(torch.int64)
    dst = (lambda lo, hi, *s: torch.randint(lo, hi, s))(0, N, E).to(torch.int64)
    r = (lambda *s: torch.randn(*s, dtype=torch.bfloat16) * 0.05)(E, 3).to(float)
    r = r / (torch.linalg.norm(r, dim=-1, keepdim=True).to(float) + 1e-06)
    rx, ry, rz = (r[:, 0].clone(), r[:, 1].clone(), r[:, 2].clone())
    x2, y2, z2 = (rx * rx, ry * ry, rz * rz)
    sh_list = [torch.ones_like(rx), rx, ry, rz, rx * ry, ry * rz, 2.0 * z2 - x2 - y2, rx * rz, x2 - y2, ry * (3.0 * x2 - y2), rx * ry * rz, ry * (4.0 * z2 - x2 - y2), rz * (2.0 * z2 - 3.0 * x2 - 3.0 * y2), rx * (4.0 * z2 - x2 - y2), rz * (x2 - y2), rx * (x2 - 3.0 * y2)]
    sh16 = torch.stack(sh_list, dim=-1).to(float)
    pad = max(0, M - 16)
    sh_full = torch.cat([sh16, torch.zeros((E, pad), dtype=float)], dim=-1)[:, :M]
    cg = ((lambda *s: torch.randn(*s, dtype=torch.bfloat16) * 0.05)(M, M, M) * (1.0 / float(M))).to(float)
    return {'x': _w(((lambda *s: torch.randn(*s, dtype=torch.bfloat16) * 0.05)(N, M, C) * 0.3).to(float)), 'src': _w(src), 'dst': _w(dst), 'sh': _w(sh_full.to(float)), 'edge_attr': _w(((lambda *s: torch.randn(*s, dtype=torch.bfloat16) * 0.05)(E, De) * 0.3).to(float)), 'cg': _w(cg), 'w_r': _w(((lambda *s: torch.randn(*s, dtype=torch.bfloat16) * 0.05)(De, C) * (1.0 / float(De) ** 0.5)).to(float)), 'w_out': _w(((lambda *s: torch.randn(*s, dtype=torch.bfloat16) * 0.05)(C, C) * (1.0 / float(C) ** 0.5)).to(float))}

def reference(x, src, dst, sh, edge_attr, cg, w_r, w_out):
    N = x.shape[0]
    M = x.shape[1]
    C = x.shape[2]
    h = x[src]
    tp = torch.einsum('uvw,euc,ev->ewc', cg, h, sh)
    rw = edge_attr @ w_r
    msg = tp * rw[:, None, :]
    msg2 = msg.reshape(-1, M * C)
    agg = _segment_sum(msg2, dst, N).reshape(N, M, C)
    out = torch.einsum('nmc,cd->nmd', agg, w_out)
    return out
```

```python
import sys, argparse

NAME = "standalone__tensor_product_equiv_mace__graph"
N, E = 10000, 160000

R = 4
RING = 0
REC = 65536
CAP = 1088
META = REC + CAP * 64
CAND = META + CAP * 4
HIST = CAND + 8 * 512
OFF = HIST + 4096
ZERO = OFF + 4096
FLAG = ZERO + 16
LDS_BYTES = 152320
WRIMG = 131072
assert FLAG + 16 <= LDS_BYTES and WRIMG + 8192 <= CAND

sB, sWV = 2, 3
X, SRC, DST, SH, EA, WO, OUT, WR, CG, DBG = 8, 12, 16, 20, 24, 28, 32, 36, 40, 44
sRemain, sIter, sAddr, sLimit, sKskip, sT, sN, sC = 48, 49, 50, 51, 52, 53, 54, 55
sSlot = 56
sBase, sRem, sRing = 61, 62, 63
sMn = 64
sIdx = 68
sOff, sRound, sMore, sCnt, sL, sEnd = 72, 73, 74, 75, 76, 77
sV = [78, 80]
sP0, sP1 = 82, 83
sKey = 84
sCandBase = 100

vLane, vDma0, vDma1, vTr, vRecA, vEa1, vEa2, vInc1, vInc2, vMetaA, vOwner, vStamp, vS0, vE, vS1 = range(1, 16)
ACC = 80
def acc(k, i, w): return ACC + 16 * k + 4 * i + w


class Gen:
    def __init__(self, stamps=False):
        self.L = []
        self.stamps = stamps
        self.nlab = 0

    def __call__(self, s):
        self.L.append("    " + s)

    def label(self, s):
        self.L.append(s + ":")

    def c(self, s):
        self.L.append("    ; " + s)

    def newlab(self, p="L"):
        self.nlab += 1
        return f"{p}_{self.nlab}"

    def nop(self, n):
        while n > 0:
            k = min(n, 16)
            self(f"s_nop {k-1}")
            n -= k

    def stamp(self, i):
        if not self.stamps:
            return
        self(f"s_memrealtime s[4:5]")
        self("s_waitcnt lgkmcnt(0)")
        self(f"v_writelane_b32 v{vStamp}, s4, {i}")


def srd(g, d, ptr, nbytes):
    g(f"s_mov_b32 s{d}, s{ptr}")
    g(f"s_mov_b32 s{d+1}, s{ptr+1}")
    g(f"s_mov_b32 s{d+2}, {nbytes}")
    g(f"s_mov_b32 s{d+3}, 0x00020000")


def v(a, n=1):
    return f"v{a}" if n == 1 else f"v[{a}:{a+n-1}]"


def a_(a, n=1):
    return f"a{a}" if n == 1 else f"a[{a}:{a+n-1}]"


def s(a, n=1):
    return f"s{a}" if n == 1 else f"s[{a}:{a+n-1}]"


def build(stamps=False):
    g = Gen(stamps)
    g(f"s_cmp_ge_u32 s{sB}, 256")
    g("s_cbranch_scc1 L_end")
    g("s_load_dwordx16 s[64:79], s[0:1], 0")
    g("s_load_dwordx4 s[80:83], s[0:1], 64")
    g("s_load_dwordx2 s[84:85], s[0:1], 80")
    g(f"v_and_b32 v{vLane}, 63, v0")
    g(f"v_lshrrev_b32 v16, 6, v0")
    g(f"v_mov_b32 v{vStamp}, 0")
    g(f"v_readfirstlane_b32 s{sWV}, v16")
    g("s_waitcnt lgkmcnt(0)")
    srd(g, X, 64, N * 2048)
    srd(g, SRC, 66, E * 4)
    srd(g, DST, 68, E * 4)
    srd(g, SH, 70, E * 8)
    srd(g, EA, 72, E * 32)
    srd(g, CG, 74, 128)
    srd(g, WR, 76, 8192)
    srd(g, WO, 78, 131072)
    srd(g, OUT, 80, N * 2048)
    srd(g, DBG, 84, 1 << 20)
    g.stamp(0)
    g.c("---- weights: DMA w_out image (each wave 8 c-groups x 2 halves) and w_r image")
    g(f"v_bfe_u32 v16, v{vLane}, 2, 2")
    g(f"v_lshlrev_b32 v16, 9, v16")
    g(f"v_lshrrev_b32 v17, 4, v{vLane}")
    g(f"v_lshl_add_u32 v16, v17, 6, v16")
    g(f"v_and_b32 v17, 3, v{vLane}")
    g(f"v_lshl_add_u32 v16, v17, 4, v16")
    g(f"s_lshl_b32 s{sT}, s{sWV}, 14")
    for cgi in range(8):
        for half in range(2):
            g(f"s_add_u32 m0, s{sT}, {cgi*2048 + half*1024}")
            g(f"s_add_u32 s{sN}, s{sT}, {cgi*2048 + half*256}")
            g(f"buffer_load_dwordx4 v16, {s(WO,4)}, s{sN} offen lds")
    g(f"s_lshl_b32 s{sT}, s{sWV}, 10")
    g(f"s_add_u32 m0, s{sT}, {WRIMG}")
    g(f"v_lshlrev_b32 v17, 4, v{vLane}")
    g(f"buffer_load_dwordx4 v17, {s(WR,4)}, s{sT} offen lds")
    g.c("---- zero HIST (4096 B: 512 threads x 8 B), ZERO block, FLAG")
    g("v_mov_b32 v18, 0")
    g("v_mov_b32 v19, 0")
    g(f"v_lshlrev_b32 v20, 3, v0")
    g(f"v_add_u32 v20, {HIST}, v20")
    g("ds_write_b64 v20, v[18:19]")
    g(f"v_and_b32 v20, 3, v{vLane}")
    g(f"v_lshlrev_b32 v20, 3, v20")
    g(f"v_add_u32 v20, {ZERO}, v20")
    g("ds_write_b64 v20, v[18:19]")
    g.c("---- zero accumulators")
    for r in range(ACC, ACC + 80):
        g(f"v_mov_b32 v{r}, 0")
    g.c("---- persistent per-lane constants")
    g(f"v_lshrrev_b32 v16, 4, v{vLane}")
    g(f"v_and_b32 v17, 7, v{vLane}")
    g(f"v_bfe_u32 v18, v{vLane}, 3, 1")
    g(f"v_lshlrev_b32 v18, 9, v18")
    g(f"v_lshl_add_u32 v18, v16, 7, v18")
    g(f"v_lshl_add_u32 v{vDma0}, v17, 4, v18")
    g(f"v_xor_b32 v17, 4, v17")
    g(f"v_lshl_add_u32 v{vDma1}, v17, 4, v18")
    g(f"s_lshl_b32 s{sRing}, s{sWV}, 13")
    g(f"v_bfe_u32 v20, v{vLane}, 2, 2")
    g(f"v_lshrrev_b32 v21, 4, v{vLane}")
    g(f"v_bfe_u32 v22, v{vLane}, 1, 1")
    g(f"v_lshl_add_u32 v22, v21, 1, v22")
    g(f"v_lshrrev_b32 v23, 1, v20")
    g(f"v_lshlrev_b32 v24, 2, v23")
    g(f"v_xor_b32 v22, v22, v24")
    g(f"v_and_b32 v24, 1, v20")
    g(f"v_lshl_add_u32 v22, v24, 3, v22")
    g(f"v_lshlrev_b32 v22, 4, v22")
    g(f"v_lshl_add_u32 v22, v23, 10, v22")
    g(f"v_and_b32 v24, 1, v{vLane}")
    g(f"v_lshl_add_u32 v22, v24, 3, v22")
    g(f"v_add_u32 v{vTr}, s{sRing}, v22")
    g(f"v_lshrrev_b32 v21, 5, v{vLane}")
    g(f"v_mov_b32 v23, 256")
    g(f"v_cmp_eq_u32 vcc, v20, v21")
    g(f"v_add_u32 v21, 2, v21")
    g.nop(1)
    g(f"v_cndmask_b32 v{vInc1}, 0, v23, vcc")
    g(f"v_cmp_eq_u32 vcc, v20, v21")
    g.nop(2)
    g(f"v_cndmask_b32 v{vInc2}, 0, v23, vcc")
    g(f"v_lshlrev_b32 v{vE}, 16, v{vLane}")
    g(f"s_mov_b32 s{sP0}, 0x05040100")
    g(f"s_mov_b32 s{sP1}, 0x07060302")
    g(f"s_mul_i32 s{sL}, s{sWV}, 78")
    g(f"s_add_u32 s{sEnd}, s{sL}, 79")
    g(f"s_cmp_lg_u32 s{sWV}, 0")
    g(f"s_addc_u32 s{sL}, s{sL}, 0")
    g(f"s_mov_b32 s{sKskip}, 0")
    g(f"s_mov_b32 s{sRound}, 0")
    g(f"s_lshl_b32 s{sCandBase}, s{sWV}, 9")
    g(f"s_add_u32 s{sCandBase}, s{sCandBase}, {CAND}")
    g(f"s_add_u32 s{sLimit}, s{sCandBase}, 512")
    g.c("---- weights fragments -> AGPRs")
    g(f"v_lshrrev_b32 v16, 5, v{vLane}")
    g(f"v_lshlrev_b32 v16, 12, v16")
    g(f"v_lshl_add_u32 v16, v20, 6, v16")
    g(f"v_bfe_u32 v17, v{vLane}, 4, 1")
    g(f"v_lshl_add_u32 v16, v17, 5, v16")
    g(f"v_and_b32 v18, 3, v{vLane}")
    g(f"v_lshl_add_u32 v16, v18, 3, v16")
    g(f"s_lshl_b32 s{sT}, s{sWV}, 8")
    g(f"v_add_u32 v16, s{sT}, v16")
    g(f"v_add_u32 v19, 0x10000, v16")
    g(f"v_lshlrev_b32 v21, 12, v17")
    g(f"v_lshl_add_u32 v21, v20, 9, v21")
    g(f"v_lshrrev_b32 v22, 5, v{vLane}")
    g(f"v_lshl_add_u32 v21, v22, 5, v21")
    g(f"v_lshl_add_u32 v21, v18, 3, v21")
    g(f"v_add_u32 v21, {WRIMG}, v21")
    g("s_waitcnt vmcnt(0) lgkmcnt(0)")
    g("s_barrier")
    for ks in range(16):
        for t in range(2):
            base = 16 if ks < 8 else 19
            g(f"ds_read_b64_tr_b16 {a_(4*ks+2*t,2)}, v{base} offset:{(ks%8)*8192 + t*2048}")
        if ks % 4 == 3:
            g("s_waitcnt lgkmcnt(0)")
    for i in range(4):
        for be in range(2):
            for t in range(2):
                g(f"ds_read_b64_tr_b16 {a_(64+8*i+4*be+2*t,2)}, v21 offset:{t*2048 + (64*i+32*be)*2}")
        if i % 2 == 1:
            g("s_waitcnt lgkmcnt(0)")
    g.stamp(1)

    g.label("L_round")
    g.c("================ scan")
    BUF = 16
    g(f"s_mov_b32 s{sAddr}, s{sCandBase}")
    g(f"s_sub_u32 s{sRemain}, s{sEnd}, s{sL}")
    g(f"s_cmp_eq_u32 s{sRemain}, 0")
    g("s_cbranch_scc1 L_scan_done")
    g(f"s_lshl_b32 s{sIter}, s{sL}, 22")
    g(f"s_lshl_b32 s{sT}, s{sL}, 10")
    g(f"v_lshlrev_b32 v{vS0}, 4, v{vLane}")
    g(f"v_add_u32 v{vS0}, s{sT}, v{vS0}")
    g(f"v_add_u32 v{vS1}, 4096, v{vS0}")

    def ld(u):
        g(f"buffer_load_dwordx4 {v(BUF+4*u,4)}, v{vS0 if u < 4 else vS1}, {s(DST,4)}, 0 offen offset:{(u%4)*1024}")
    for u in range(8):
        ld(u)
    g(f"v_add_u32 v{vS0}, 0x2000, v{vS0}")
    g(f"v_add_u32 v{vS1}, 0x2000, v{vS1}")
    g(f"s_cmp_eq_u32 s{sKskip}, 0")
    g("s_cbranch_scc1 L_scanA")
    g("s_waitcnt vmcnt(7)")
    g(f"s_xor_b32 s{sT}, s{sB}, 1")
    g(f"v_mov_b32 v{BUF}, s{sT}")
    g(f"s_cmp_lt_u32 s{sKskip}, 2")
    g("s_cbranch_scc1 L_scanA")
    g(f"v_mov_b32 v{BUF+1}, s{sT}")
    g(f"s_cmp_lt_u32 s{sKskip}, 3")
    g("s_cbranch_scc1 L_scanA")
    g(f"v_mov_b32 v{BUF+2}, s{sT}")
    handlers = []

    def checks(ph, u):
        for k in range(4):
            g(f"v_cmp_eq_u32_sdwa vcc, v{BUF+4*u+k}, s{sB} src0_sel:BYTE_0 src1_sel:DWORD")
            g(f"s_cbranch_vccnz L_h{ph}_{u}_{k}")
            g.label(f"L_r{ph}_{u}_{k}")
            handlers.append((ph, u, k))
    g.label("L_scanA")
    g(f"s_cmp_lt_u32 s{sRemain}, 16")
    g("s_cbranch_scc1 L_scanB")
    for u in range(8):
        g("s_waitcnt vmcnt(7)")
        checks("A", u)
        ld(u)
    g(f"v_add_u32 v{vS0}, 0x2000, v{vS0}")
    g(f"v_add_u32 v{vS1}, 0x2000, v{vS1}")
    g(f"s_add_u32 s{sIter}, s{sIter}, {8<<22}")
    g(f"s_sub_u32 s{sRemain}, s{sRemain}, 8")
    g("s_branch L_scanA")
    g.label("L_scanB")
    for u in range(8):
        g(f"s_cmp_eq_u32 s{sRemain}, 0")
        g("s_cbranch_scc1 L_scan_fin")
        l1 = g.newlab()
        g(f"s_cmp_ge_u32 s{sRemain}, 8")
        g(f"s_cbranch_scc1 {l1}")
        g("s_waitcnt vmcnt(0)")
        g.label(l1)
        g("s_waitcnt vmcnt(7)")
        checks("B", u)
        l2 = g.newlab()
        g(f"s_cmp_le_u32 s{sRemain}, 8")
        g(f"s_cbranch_scc1 {l2}")
        ld(u)
        g.label(l2)
        g(f"s_sub_u32 s{sRemain}, s{sRemain}, 1")
    g(f"s_add_u32 s{sIter}, s{sIter}, {8<<22}")
    g("s_branch L_scanB")
    for ph, u, k in handlers:
        g.label(f"L_h{ph}_{u}_{k}")
        g(f"s_bcnt1_i32_b64 s{sT}, vcc")
        g(f"s_lshl2_add_u32 s{sN}, s{sT}, s{sAddr}")
        g(f"s_cmp_gt_u32 s{sN}, s{sLimit}")
        g(f"s_cbranch_scc1 L_ovf_{u}_{k}")
        g(f"v_mbcnt_lo_u32_b32 v48, vcc_lo, 0")
        g(f"v_mbcnt_hi_u32_b32 v48, vcc_hi, v48")
        g(f"s_add_u32 s{sC}, s{sIter}, {(u*256+k)<<14}")
        g(f"v_lshl_add_u32 v48, v48, 2, s{sAddr}")
        g(f"v_add3_u32 v49, v{BUF+4*u+k}, v{vE}, s{sC}")
        g("s_mov_b64 exec, vcc")
        g("ds_write_b32 v48, v49")
        g("s_mov_b64 exec, -1")
        g(f"s_mov_b32 s{sAddr}, s{sN}")
        g(f"s_branch L_r{ph}_{u}_{k}")
    for u in range(8):
        for k in range(4):
            g.label(f"L_ovf_{u}_{k}")
            g(f"s_movk_i32 s{sT}, {u*4+k}")
            g("s_branch L_ovf")
    g.label("L_ovf")
    g(f"s_lshr_b32 s{sL}, s{sIter}, 22")
    g(f"s_lshr_b32 s{sN}, s{sT}, 2")
    g(f"s_add_u32 s{sL}, s{sL}, s{sN}")
    g(f"s_and_b32 s{sKskip}, s{sT}, 3")
    g("v_mov_b32 v48, 1")
    g(f"v_mov_b32 v49, {FLAG}")
    g("ds_write_b32 v49, v48")
    g("s_branch L_scan_done")
    g.label("L_scan_fin")
    g(f"s_mov_b32 s{sL}, s{sEnd}")
    g(f"s_mov_b32 s{sKskip}, 0")
    g.label("L_scan_done")
    g("s_waitcnt vmcnt(0) lgkmcnt(0)")
    g.stamp(2)

    g.c("================ payload gather + histogram")
    g(f"s_sub_u32 s{sCnt}, s{sAddr}, s{sCandBase}")
    g(f"s_lshr_b32 s{sCnt}, s{sCnt}, 2")
    SET = [16, 40]
    def P(st, name):
        o = {"ea": 0, "apk": 8, "sh": 16, "ent": 18, "src": 19, "key": 20, "rank": 21, "t0": 22, "t1": 23}[name]
        return SET[st] + o
    CGR = 64
    g(f"v_lshlrev_b32 v72, 2, v{vLane}")
    g(f"v_add_u32 v72, s{sCandBase}, v72")
    g(f"ds_read_b32 v{P(0,'ent')}, v72")
    g(f"ds_read_b32 v{P(1,'ent')}, v72 offset:256")
    g(f"v_and_b32 v73, 3, v{vLane}")
    g(f"v_lshlrev_b32 v73, 5, v73")
    g(f"buffer_load_dwordx4 {v(CGR,4)}, v73, {s(CG,4)}, 0 offen")
    g(f"buffer_load_dwordx4 {v(CGR+4,4)}, v73, {s(CG,4)}, 0 offen offset:16")
    g(f"v_cmp_gt_i32 {s(sV[0],2)}, s{sCnt}, v{vLane}")
    g(f"s_sub_u32 s{sT}, s{sCnt}, 64")
    g(f"v_cmp_gt_i32 {s(sV[1],2)}, s{sT}, v{vLane}")
    g("s_waitcnt lgkmcnt(0)")
    for st in range(2):
        g(f"v_lshrrev_b32 v{P(st,'t0')}, 14, v{P(st,'ent')}")
        g(f"v_lshlrev_b32 v{P(st,'t1')}, 2, v{P(st,'t0')}")
        g(f"v_lshlrev_b32 v{P(st,'key')}, 3, v{P(st,'t0')}")
        g(f"v_lshlrev_b32 v{P(st,'t0')}, 5, v{P(st,'t0')}")
    for st in range(2):
        lab = g.newlab()
        g(f"s_mov_b64 exec, {s(sV[st],2)}")
        g(f"s_cbranch_execz {lab}")
        g(f"buffer_load_dword v{P(st,'src')}, v{P(st,'t1')}, {s(SRC,4)}, 0 offen")
        g(f"buffer_load_dwordx2 {v(P(st,'sh'),2)}, v{P(st,'key')}, {s(SH,4)}, 0 offen")
        g(f"buffer_load_dwordx4 {v(P(st,'ea'),4)}, v{P(st,'t0')}, {s(EA,4)}, 0 offen")
        g(f"buffer_load_dwordx4 {v(P(st,'ea')+4,4)}, v{P(st,'t0')}, {s(EA,4)}, 0 offen offset:16")
        g.label(lab)
    g("s_mov_b64 exec, -1")
    g("s_waitcnt vmcnt(0)")
    g("v_mov_b32 v72, 1")
    for st in range(2):
        g(f"v_mul_u32_u24 v{P(st,'t0')}, 6711, v{P(st,'src')}")
        g(f"v_lshrrev_b32 v{P(st,'t0')}, 22, v{P(st,'t0')}")
        g(f"v_min_u32 v{P(st,'t0')}, 15, v{P(st,'t0')}")
        g(f"v_bfe_u32 v{P(st,'t1')}, v{P(st,'ent')}, 8, 6")
        g(f"v_lshlrev_b32 v{P(st,'t0')}, 2, v{P(st,'t0')}")
        g(f"v_lshl_add_u32 v{P(st,'key')}, v{P(st,'t1')}, 6, v{P(st,'t0')}")
        g(f"v_add_u32 v{P(st,'key')}, {HIST}, v{P(st,'key')}")
    for st in range(2):
        g(f"s_mov_b64 exec, {s(sV[st],2)}")
        g(f"ds_add_rtn_u32 v{P(st,'rank')}, v{P(st,'key')}, v72")
    g("s_mov_b64 exec, -1")
    g("s_waitcnt lgkmcnt(0)")
    g("s_barrier")
    g.c("A coefficients via 4x4x4 MFMA: CGW[w] in v72..79")
    for w in range(4):
        p, x = w >> 1, w & 1
        sel = sP1 if x else sP0
        g(f"v_perm_b32 v{72+2*w}, v{CGR+2+p}, v{CGR+p}, s{sel}")
        g(f"v_perm_b32 v{72+2*w+1}, v{CGR+6+p}, v{CGR+4+p}, s{sel}")
    g.nop(2)
    for st in range(2):
        for wp in range(2):
            for x in range(2):
                w = 2 * wp + x
                g(f"v_mfma_f32_4x4x4_16b_bf16 {v(64+4*x,4)}, {v(72+2*w,2)}, {v(P(st,'sh'),2)}, 0")
            g.nop(6)
            for x in range(2):
                w = 2 * wp + x
                g(f"v_cvt_pk_bf16_f32 v{P(st,'apk')+2*w}, v{64+4*x}, v{64+4*x+1}")
                g(f"v_cvt_pk_bf16_f32 v{P(st,'apk')+2*w+1}, v{64+4*x+2}, v{64+4*x+3}")
            g.nop(2)
    g.c("================ degrees, assignment, offsets")
    g(f"v_lshlrev_b32 v{P(0,'t0')}, 6, v{vLane}")
    g(f"v_add_u32 v{P(0,'t0')}, {HIST}, v{P(0,'t0')}")
    g(f"v_mov_b32 v{P(0,'t1')}, {FLAG}")
    for q in range(4):
        g(f"ds_read_b128 {v(64+4*q,4)}, v{P(0,'t0')} offset:{16*q}")
    g(f"ds_read_b32 v{P(0,'t1')}, v{P(0,'t1')}")
    g("s_waitcnt lgkmcnt(0)")
    g(f"v_readfirstlane_b32 s{sMore}, v{P(0,'t1')}")
    for q in range(5):
        g(f"v_add3_u32 v{64+3*q}, v{64+3*q}, v{64+3*q+1}, v{64+3*q+2}")
    g("v_add3_u32 v64, v64, v67, v70")
    g("v_add3_u32 v73, v73, v76, v79")
    vDeg, vKey, vRank = 64, 65, 66
    g(f"v_add_u32 v{vDeg}, v64, v73")
    g(f"s_cmp_lg_u32 s{sRound}, 0")
    g("s_cbranch_scc1 L_assigned")
    g(f"v_sub_u32 v{vKey}, 63, v{vLane}")
    g(f"v_lshl_add_u32 v{vKey}, v{vDeg}, 6, v{vKey}")
    g(f"v_mov_b32 v{vRank}, 0")
    masks = ["vcc", "s[4:5]", "s[6:7]", "s[52:53]"]
    masks = masks[:3]
    for b0 in range(0, 40, 16):
        nb = min(16, 40 - b0)
        for j in range(nb):
            g(f"v_readlane_b32 s{sKey+j}, v{vKey}, {b0+j}")
        g.nop(2)
        j = 0
        while j < nb:
            m = min(3, nb - j)
            for t in range(m):
                g(f"v_cmp_gt_u32 {masks[t]}, s{sKey+j+t}, v{vKey}")
            if m < 3:
                g.nop(3 - m)
            for t in range(m):
                g(f"v_addc_co_u32 v{vRank}, {masks[t]}, 0, v{vRank}, {masks[t]}")
            j += m
    g(f"v_bfe_u32 v67, v{vRank}, 3, 1")
    g(f"v_mul_u32_u24 v67, 7, v67")
    g(f"v_and_b32 v68, 7, v{vRank}")
    g(f"v_xor_b32 v{vOwner}, v67, v68")
    g(f"s_sub_u32 s{sT}, 7, s{sWV}")
    for k in range(5):
        g(f"s_add_u32 s{sN}, s{sT if k & 1 else sWV}, {8*k}")
        g(f"v_cmp_eq_u32 vcc, s{sN}, v{vRank}")
        g(f"s_ff1_i32_b64 s{sSlot+k}, vcc")
    g.label("L_assigned")
    g(f"v_cmp_gt_u32 vcc, s{sWV}, v{vOwner}")
    g(f"v_and_b32 v68, 15, v{vLane}")
    g(f"v_lshlrev_b32 v68, 2, v68")
    g(f"v_cndmask_b32 v67, 0, v{vDeg}, vcc")
    g(f"v_add_u32 v68, {HIST}, v68")
    for k in range(5):
        g(f"s_lshl_b32 s{sKey+k}, s{sSlot+k}, 6")
        g(f"v_add_u32 v{70+k}, s{sKey+k}, v68")
        g(f"ds_read_b32 v{75+k}, v{70+k}")
    for sh_ in (1, 2, 4, 8):
        g.nop(2)
        g(f"v_add_u32_dpp v67, v67, v67 row_shr:{sh_} row_mask:0xf bank_mask:0xf bound_ctrl:1")
    g.nop(1)
    g(f"v_readlane_b32 s{sBase}, v67, 15")
    g(f"v_readlane_b32 s{sT}, v67, 31")
    g(f"v_readlane_b32 s{sN}, v67, 47")
    for k in range(5):
        g(f"v_readlane_b32 s{sKey+8+k}, v{vDeg}, s{sSlot+k}")
    g(f"s_add_u32 s{sBase}, s{sBase}, s{sT}")
    g(f"s_add_u32 s{sBase}, s{sBase}, s{sN}")
    g(f"s_add_u32 s{sBase}, s{sBase}, 3")
    g(f"s_andn2_b32 s{sBase}, s{sBase}, 3")
    g(f"s_lshl2_add_u32 s{sBase}, s{sWV}, s{sBase}")
    g(f"s_add_u32 s{sRem}, s{sKey+8}, s{sKey+9}")
    for k in range(2, 5):
        g(f"s_add_u32 s{sRem}, s{sRem}, s{sKey+8+k}")
    g("s_waitcnt lgkmcnt(0)")
    g("v_add3_u32 v67, v75, v76, v77")
    g("v_add3_u32 v67, v67, v78, v79")
    g("v_mov_b32 v68, v67")
    for sh_ in (1, 2, 4, 8):
        g.nop(2)
        g(f"v_add_u32_dpp v68, v68, v68 row_shr:{sh_} row_mask:0xf bank_mask:0xf bound_ctrl:1")
    g("v_sub_u32 v68, v68, v67")
    g(f"v_add_u32 v68, s{sBase}, v68")
    for k in range(5):
        g(f"v_lshl_add_u32 v69, v68, 3, {k}")
        g(f"ds_write_b32 v{70+k}, v69 offset:{OFF-HIST}")
        if k < 4:
            g(f"v_add_u32 v68, v68, v{75+k}")
            g.nop(1)
    g("s_waitcnt lgkmcnt(0)")
    g("s_barrier")
    g.c("================ placement (+ re-zero HIST/FLAG)")
    for st in range(2):
        g(f"ds_read_b32 v{P(st,'t0')}, v{P(st,'key')} offset:{OFF-HIST}")
    g("v_mov_b32 v64, 0")
    g("v_mov_b32 v65, 0")
    g(f"v_lshlrev_b32 v66, 3, v0")
    g(f"v_add_u32 v66, {HIST}, v66")
    g("ds_write_b64 v66, v[64:65]")
    g(f"v_mov_b32 v66, {FLAG}")
    g("ds_write_b32 v66, v64")
    g("s_waitcnt lgkmcnt(0)")
    for st in range(2):
        g(f"v_lshrrev_b32 v{P(st,'t1')}, 3, v{P(st,'t0')}")
        g(f"v_add_u32 v{P(st,'t1')}, v{P(st,'t1')}, v{P(st,'rank')}")
        g(f"v_and_b32 v{P(st,'t0')}, 7, v{P(st,'t0')}")
        g(f"v_lshl_or_b32 v{P(st,'t0')}, v{P(st,'src')}, 11, v{P(st,'t0')}")
        g(f"v_lshlrev_b32 v{P(st,'key')}, 2, v{P(st,'t1')}")
        g(f"v_add_u32 v{P(st,'key')}, {META}, v{P(st,'key')}")
        g(f"v_lshlrev_b32 v{P(st,'t1')}, 6, v{P(st,'t1')}")
        g(f"v_add_u32 v{P(st,'t1')}, {REC}, v{P(st,'t1')}")
    for st in range(2):
        g(f"s_mov_b64 exec, {s(sV[st],2)}")
        g(f"ds_write_b32 v{P(st,'key')}, v{P(st,'t0')}")
        g(f"ds_write_b128 v{P(st,'t1')}, {v(P(st,'apk'),4)}")
        g(f"ds_write_b128 v{P(st,'t1')}, {v(P(st,'apk')+4,4)} offset:16")
        g(f"ds_write_b128 v{P(st,'t1')}, {v(P(st,'ea'),4)} offset:32")
        g(f"ds_write_b128 v{P(st,'t1')}, {v(P(st,'ea')+4,4)} offset:48")
    g("s_mov_b64 exec, -1")
    g(f"s_lshl_b32 s{sT}, s{sBase}, 6")
    g(f"s_add_u32 s{sT}, s{sT}, {REC}")
    g(f"v_and_b32 v64, 3, v{vLane}")
    g(f"v_lshlrev_b32 v65, 3, v64")
    g(f"v_add_u32 v{vRecA}, s{sT}, v65")
    g(f"v_bfe_u32 v65, v{vLane}, 4, 1")
    g(f"v_lshlrev_b32 v65, 4, v65")
    g(f"v_lshl_add_u32 v65, v64, 6, v65")
    g(f"v_add3_u32 v65, v65, s{sT}, 32")
    g(f"v_mov_b32 v66, {ZERO}")
    g(f"v_cmp_ne_u32 vcc, 0, v{vInc1}")
    g(f"v_cmp_ne_u32 s[4:5], 0, v{vInc2}")
    g.nop(1)
    g(f"v_cndmask_b32 v{vEa1}, v66, v65, vcc")
    g(f"v_cndmask_b32 v{vEa2}, v66, v65, s[4:5]")
    g(f"s_lshl_b32 s{sT}, s{sBase}, 2")
    g(f"s_add_u32 s{sT}, s{sT}, {META}")
    g(f"v_mov_b32 v{vMetaA}, s{sT}")
    g("s_waitcnt lgkmcnt(0)")
    g("s_barrier")
    g.stamp(3)

    g.c("================ sweep")
    RW, D, B, A, EA1, EA2, M4 = 16, 32, 48, 56, 60, 64, 68
    g(f"s_cmp_eq_u32 s{sRem}, 0")
    g("s_cbranch_scc1 L_sweep_done")
    g(f"ds_read_b128 {v(M4,4)}, v{vMetaA}")
    g("s_waitcnt lgkmcnt(0)")
    for r in range(4):
        g(f"v_readfirstlane_b32 s{sMn+r}, v{M4+r}")

    def issue(r):
        g(f"s_add_u32 m0, s{sRing}, {r*2048}")
        g(f"s_andn2_b32 s{sOff}, s{sMn+r}, 7")
        g(f"buffer_load_dwordx4 v{vDma0}, {s(X,4)}, s{sOff} offen lds")
        g(f"buffer_load_dwordx4 v{vDma1}, {s(X,4)}, s{sOff} offen offset:1024 lds")
    for r in range(4):
        if r > 0:
            g(f"s_cmp_le_u32 s{sRem}, {r}")
            g("s_cbranch_scc1 L_group")
        issue(r)
        g(f"s_and_b32 s{sIdx+r}, s{sMn+r}, 7")
    g.label("L_group")
    g(f"ds_read_b128 {v(EA1,4)}, v{vEa1}")
    g(f"ds_read_b128 {v(EA2,4)}, v{vEa2}")
    g(f"ds_read_b128 {v(M4,4)}, v{vMetaA} offset:16")
    g(f"v_add_u32 v{vEa1}, v{vEa1}, v{vInc1}")
    g(f"v_add_u32 v{vEa2}, v{vEa2}, v{vInc2}")
    g(f"v_add_u32 v{vMetaA}, 16, v{vMetaA}")
    g("s_waitcnt lgkmcnt(0)")
    for i in range(4):
        g(f"v_mfma_f32_16x16x32_bf16 {v(RW+4*i,4)}, {v(EA1,4)}, {a_(64+8*i,4)}, 0")
    for i in range(4):
        g(f"v_mfma_f32_16x16x32_bf16 {v(RW+4*i,4)}, {v(EA2,4)}, {a_(64+8*i+4,4)}, {v(RW+4*i,4)}")
    for r in range(4):
        g(f"v_readfirstlane_b32 s{sMn+r}, v{M4+r}")
    for r in range(4):
        g.c(f"-- edge {r}")
        g(f"ds_read_b64 {v(A,2)}, v{vRecA} offset:{r*64}")
        l1 = g.newlab()
        g(f"s_cmp_ge_u32 s{sRem}, {R}")
        g(f"s_cbranch_scc1 {l1}")
        g("s_waitcnt vmcnt(0)")
        g.label(l1)
        g(f"s_waitcnt vmcnt({2*(R-1)})")
        for i in range(4):
            g(f"ds_read_b64_tr_b16 {v(B+2*i,2)}, v{vTr} offset:{r*2048+i*256}")
        g("s_waitcnt lgkmcnt(0)")
        l2 = g.newlab()
        g(f"s_cmp_le_u32 s{sRem}, {R}")
        g(f"s_cbranch_scc1 {l2}")
        issue(r)
        g.label(l2)
        for i in range(4):
            g(f"v_mfma_f32_4x4x4_16b_bf16 {v(D+4*i,4)}, {v(A,2)}, {v(B+2*i,2)}, 0")
        g.nop(2)
        labs = [g.newlab("L_acc") for _ in range(5)]
        join = g.newlab("L_join")
        g(f"s_cmp_ge_u32 s{sIdx+r}, 2")
        g(f"s_cbranch_scc1 {labs[2]}")
        g(f"s_cmp_eq_u32 s{sIdx+r}, 1")
        g(f"s_cbranch_scc1 {labs[1]}")

        def fma(k):
            x = r & 1
            for i in range(4):
                rw = RW + 4 * i + (r & ~1)
                for wp in range(2):
                    g(f"v_pk_fma_f32 {v(acc(k,i,2*wp),2)}, {v(D+4*i+2*wp,2)}, {v(rw,2)}, {v(acc(k,i,2*wp),2)} op_sel:[0,{x},0] op_sel_hi:[1,{x},1]")
        fma(0)
        g(f"s_branch {join}")
        g.label(labs[1])
        fma(1)
        g(f"s_branch {join}")
        g.label(labs[2])
        g(f"s_cmp_eq_u32 s{sIdx+r}, 3")
        g(f"s_cbranch_scc1 {labs[3]}")
        g(f"s_cmp_eq_u32 s{sIdx+r}, 4")
        g(f"s_cbranch_scc1 {labs[4]}")
        fma(2)
        g(f"s_branch {join}")
        g.label(labs[3])
        fma(3)
        g(f"s_branch {join}")
        g.label(labs[4])
        fma(4)
        g.label(join)
        g(f"s_and_b32 s{sIdx+r}, s{sMn+r}, 7")
        g(f"s_sub_u32 s{sRem}, s{sRem}, 1")
        g(f"s_cmp_eq_u32 s{sRem}, 0")
        g("s_cbranch_scc1 L_sweep_done")
    g(f"v_add_u32 v{vRecA}, 256, v{vRecA}")
    g("s_branch L_group")
    g.label("L_sweep_done")
    g(f"s_add_u32 s{sRound}, s{sRound}, 1")
    g(f"s_cmp_lg_u32 s{sMore}, 0")
    g("s_cbranch_scc1 L_round")
    g.stamp(4)

    g.c("================ agg image -> LDS")
    g("s_barrier")
    g.stamp(5)
    g(f"v_mul_u32_u24 v16, 320, v{vLane}")
    g(f"v_lshrrev_b32 v17, 2, v{vLane}")
    g(f"v_lshl_add_u32 v16, v17, 3, v16")
    for k in range(5):
        g(f"s_lshl_b32 s{sT}, s{sSlot+k}, 3")
        g(f"v_add_u32 v{17+k}, s{sT}, v16")
    t = 0
    for k in range(5):
        for i in range(4):
            p = 24 + 2 * (t % 8)
            t += 1
            g(f"v_cvt_pk_bf16_f32 v{p}, v{acc(k,i,0)}, v{acc(k,i,1)}")
            g(f"v_cvt_pk_bf16_f32 v{p+1}, v{acc(k,i,2)}, v{acc(k,i,3)}")
            g(f"ds_write_b64 v{17+k}, {v(p,2)} offset:{i*20608}")
    g(f"v_lshrrev_b32 v40, 5, v{vLane}")
    g(f"v_mul_u32_u24 v41, 2576, v40")
    g(f"v_bfe_u32 v42, v{vLane}, 2, 2")
    g(f"v_mul_u32_u24 v42, 320, v42")
    g(f"v_bfe_u32 v43, v{vLane}, 4, 1")
    g(f"v_lshl_add_u32 v41, v43, 5, v41")
    g(f"v_and_b32 v43, 3, v{vLane}")
    g(f"v_lshl_add_u32 v41, v43, 3, v41")
    vG0, vG1, vO = 2, 3, 4
    g(f"v_add_u32 v{vG0}, v41, v42")
    g(f"v_add_u32 v{vG1}, {8*5152}, v{vG0}")
    g(f"v_bfe_u32 v42, v{vLane}, 2, 3")
    g(f"v_lshlrev_b32 v42, 19, v42")
    g(f"v_lshl_add_u32 v42, v43, 9, v42")
    g(f"v_lshl_add_u32 v42, v40, 4, v42")
    g(f"s_lshl_b32 s{sT}, s{sB}, 11")
    g(f"s_lshl_b32 s{sN}, s{sWV}, 6")
    g(f"s_add_u32 s{sT}, s{sT}, s{sN}")
    g(f"v_add_u32 v{vO}, s{sT}, v42")
    g("s_waitcnt lgkmcnt(0)")
    g("s_barrier")
    g.stamp(6)
    g.c("================ GEMM: out^T tile = W^T (A) x agg^T (B)")
    FB = [16, 32]
    DD = [48, 64]
    PK = [80, 88]
    chunks = [(t, c) for t in range(5) for c in range(4)]

    def rd(n):
        t, c = chunks[n]
        for kk in range(4):
            ks = 4 * c + kk
            base = vG0 if ks < 8 else vG1
            for tt in range(2):
                g(f"ds_read_b64_tr_b16 {v(FB[n%2]+4*kk+2*tt,2)}, v{base} offset:{(ks%8)*5152 + tt*1288 + t*64}")

    def epi(t):
        d = DD[t % 2]
        p = PK[t % 2]
        for q in range(8):
            g(f"v_cvt_pk_bf16_f32 v{p+q}, v{d+2*q}, v{d+2*q+1}")
        g.nop(2)
        g(f"v_permlane32_swap_b32 v{p}, v{p+2}")
        g(f"v_permlane32_swap_b32 v{p+1}, v{p+3}")
        g(f"v_permlane32_swap_b32 v{p+4}, v{p+6}")
        g(f"v_permlane32_swap_b32 v{p+5}, v{p+7}")
        g(f"buffer_store_dwordx4 {v(p,4)}, v{vO}, {s(OUT,4)}, 0 offen")
        g(f"buffer_store_dwordx4 {v(p+4,4)}, v{vO}, {s(OUT,4)}, 0 offen offset:32")
        g(f"v_add_u32 v{vO}, {8<<19}, v{vO}")
    rd(0)
    for n, (t, c) in enumerate(chunks):
        if n + 1 < len(chunks):
            rd(n + 1)
            g("s_waitcnt lgkmcnt(8)")
        else:
            g("s_waitcnt lgkmcnt(0)")
        for kk in range(4):
            ks = 4 * c + kk
            cin = "0" if ks == 0 else v(DD[t % 2], 16)
            g(f"v_mfma_f32_32x32x16_bf16 {v(DD[t%2],16)}, {a_(4*ks,4)}, {v(FB[n%2]+4*kk,4)}, {cin}")
        if c == 0 and t > 0:
            g.nop(8)
            epi(t - 1)
    g.nop(12)
    epi(4)
    if stamps:
        g("s_waitcnt vmcnt(0)")
        g.stamp(7)
        g(f"s_lshl_b32 s{sT}, s{sB}, 3")
        g(f"s_add_u32 s{sT}, s{sT}, s{sWV}")
        g(f"s_lshl_b32 s{sT}, s{sT}, 8")
        g(f"v_lshlrev_b32 v16, 2, v{vLane}")
        g(f"v_add_u32 v16, s{sT}, v16")
        g(f"buffer_store_dword v{vStamp}, v16, {s(DBG,4)}, 0 offen")
    g.label("L_end")
    g("s_endpgm")
    return g.L


HEADER = open("/code/" + NAME + ".s.ref").read().split("; @launch")[0]


def emit(path, stamps=False):
    body = build(stamps)
    out = HEADER
    out += f"; @launch grid=(256,1,1) block=(512,1,1) lds={LDS_BYTES}\n"
    out += "; generated by dev/gen.py\n"
    out += '.amdgcn_target "amdgcn-amd-amdhsa--gfx950"\n.text\n'
    out += f".globl {NAME}_kernel\n.p2align 8\n.type {NAME}_kernel,@function\n{NAME}_kernel:\n"
    out += "\n".join(body) + "\n"
    out += f""".section .rodata,"a"
.p2align 6
.amdhsa_kernel {NAME}_kernel
  .amdhsa_next_free_vgpr 256
  .amdhsa_next_free_sgpr 102
  .amdhsa_accum_offset 160
  .amdhsa_group_segment_fixed_size 0
  .amdhsa_kernarg_size 88
  .amdhsa_user_sgpr_count 2
  .amdhsa_user_sgpr_kernarg_segment_ptr 1
  .amdhsa_system_sgpr_workgroup_id_x 1
  .amdhsa_float_denorm_mode_32 3
.end_amdhsa_kernel
"""
    open(path, "w").write(out)


if __name__ == "__main__":
    ap = argparse.ArgumentParser()
    ap.add_argument("-o", default="/code/" + NAME + ".s")
    ap.add_argument("--stamps", action="store_true")
    a = ap.parse_args()
    emit(a.o, a.stamps)
```

```python
import sys, argparse

NAME = "standalone__tensor_product_equiv_mace__graph"
N, E = 10000, 160000

RING = 0
REC = 65536
CAP = 2096
META = 131072
META2 = META + CAP * 4
HIST = META2 + CAP * 4
OFF = HIST + 4096
ZERO = OFF + 4096
FLAG = ZERO + 16
LDS_BYTES = 156160
assert FLAG + 16 <= LDS_BYTES and META % 16 == 0 and HIST % 16 == 0
WS_CELLS = 0
WS_WF = 256 * 64 * 128
WS_WRF = WS_WF + 131072
WS_CGF = WS_WRF + 8192
WS_STAMP = 4 << 20
WS_BYTES = 8 << 20

sB, sWV = 2, 3
X, SRC, DST, SH, EA, OUT, WS = 8, 12, 16, 20, 24, 28, 32
sM = [36, 38, 40, 42]
sNomatch, sAddr, sLimit, sKskip, sT, sN, sC = 49, 50, 51, 52, 53, 54, 55
sSlot = 56
sBase, sRem, sRing = 61, 62, 63
sMn = 64
sIdx = 68
sOff, sRound, sMore, sCnt, sL, sTot, sRec = 72, 73, 74, 75, 76, 77, 78
sKey = 84
sMc = 44

vLane, vDma0, vDma1, vTr, vRecA, vEa1, vEa2, vInc1, vInc2, vMetaA, vOwner, vStamp, vS0, vS1 = range(1, 15)
ACC = 80
def acc(k, i, w): return ACC + 16 * k + 4 * i + w
aWR, aCG, aW = 0, 32, 32


class Gen:
    def __init__(self, stamps=False):
        self.L = []
        self.stamps = stamps
        self.nlab = 0

    def __call__(self, s):
        self.L.append("    " + s)

    def label(self, s):
        self.L.append(s + ":")

    def c(self, s):
        self.L.append("    ; " + s)

    def newlab(self, p="L"):
        self.nlab += 1
        return f"{p}_{self.nlab}"

    def nop(self, n):
        while n > 0:
            k = min(n, 16)
            self(f"s_nop {k-1}")
            n -= k

    def stamp(self, i):
        if not self.stamps:
            return
        self(f"s_memrealtime s[4:5]")
        self("s_waitcnt lgkmcnt(0)")
        self(f"v_writelane_b32 v{vStamp}, s4, {i}")


def srd(g, d, ptr, nbytes):
    g(f"s_mov_b32 s{d}, s{ptr}")
    g(f"s_mov_b32 s{d+1}, s{ptr+1}")
    g(f"s_mov_b32 s{d+2}, {nbytes}")
    g(f"s_mov_b32 s{d+3}, 0x00020000")


def v(a, n=1):
    return f"v{a}" if n == 1 else f"v[{a}:{a+n-1}]"


def a_(a, n=1):
    return f"a{a}" if n == 1 else f"a[{a}:{a+n-1}]"


def s(a, n=1):
    return f"s{a}" if n == 1 else f"s[{a}:{a+n-1}]"


def build(o):
    g = Gen(o.stamps)
    R = o.R
    cM, cE, cS, cK, cR, cT = 16, 20, 24, 28, 32, 36
    g(f"s_cmp_ge_u32 s{sB}, 256")
    g("s_cbranch_scc1 L_end")
    g("s_load_dwordx2 s[84:85], s[0:1], 80")
    g("s_load_dwordx16 s[64:79], s[0:1], 0")
    g("s_load_dwordx2 s[80:81], s[0:1], 64")
    g(f"v_and_b32 v{vLane}, 63, v0")
    g(f"v_lshrrev_b32 v40, 6, v0")
    g(f"v_mov_b32 v{vStamp}, 0")
    g(f"v_readfirstlane_b32 s{sWV}, v40")
    g(f"s_lshl_b32 s{sT}, s{sB}, 13")
    g(f"v_lshlrev_b32 v40, 4, v0")
    g(f"v_add_u32 v40, s{sT}, v40")
    g(f"v_lshlrev_b32 v44, 4, v{vLane}")
    g(f"v_add_u32 v41, {WS_WRF}, v44")
    g(f"v_add_u32 v42, {WS_WRF+4096}, v44")
    g(f"v_add_u32 v43, {WS_CGF}, v44")
    g("s_waitcnt lgkmcnt(0)")
    srd(g, WS, 84, WS_BYTES)
    g(f"buffer_load_dwordx4 {v(cM,4)}, v40, {s(WS,4)}, 0 offen")
    srd(g, X, 64, N * 2048)
    srd(g, SRC, 66, E * 4)
    srd(g, DST, 68, E * 4)
    srd(g, SH, 70, E * 8)
    srd(g, EA, 72, E * 32)
    srd(g, OUT, 80, N * 2048)
    for f in range(8):
        g(f"buffer_load_dwordx4 {a_(aWR+4*f,4)}, v{41 if f < 4 else 42}, {s(WS,4)}, 0 offen offset:{(f%4)*1024}")
    for p in range(2):
        g(f"buffer_load_dwordx4 {a_(aCG+4*p,4)}, v43, {s(WS,4)}, 0 offen offset:{p*1024}")
    nvm = 10
    g(f"s_lshl_b32 s{sRing}, s{sWV}, 13")
    g(f"s_add_u32 s{sRec}, s{sRing}, {REC}")
    if o.pf:
        g.c("L2 warm-up of the first x rows: workgroups b, b+8, .. (one XCD when dealt round-robin; speed only)")
        g(f"s_lshr_b32 s{sT}, s{sB}, 3")
        g(f"s_lshl_b32 s{sT}, s{sT}, 3")
        g(f"s_add_u32 s{sT}, s{sT}, s{sWV}")
        g(f"s_lshl_b32 s{sT}, s{sT}, 10")
        g(f"s_mov_b32 m0, s{sRec}")
        g(f"v_add_u32 v45, s{sT}, v44")
        for i in range(o.pf):
            g(f"buffer_load_dwordx4 v45, {s(X,4)}, 0 offen lds")
            if i + 1 < o.pf:
                g(f"v_add_u32 v45, {256*1024}, v45")
        nvm += o.pf
    g.stamp(0)
    g.c("---- zero HIST (4096 B: 512 threads x 8 B), ZERO block, FLAG")
    g("v_mov_b32 v48, 0")
    g("v_mov_b32 v49, 0")
    g(f"v_lshlrev_b32 v40, 3, v0")
    g(f"v_add_u32 v40, {HIST}, v40")
    g("ds_write_b64 v40, v[48:49]")
    g(f"v_and_b32 v40, 3, v{vLane}")
    g(f"v_lshlrev_b32 v40, 3, v40")
    g(f"v_add_u32 v40, {ZERO}, v40")
    g("ds_write_b64 v40, v[48:49]")
    g(f"s_mov_b32 s{sKskip}, 0")
    g(f"s_mov_b32 s{sRound}, 0")
    g(f"s_add_u32 s{sLimit}, s{sRing}, 2048")
    g(f"v_lshrrev_b32 v47, 3, v0")
    g(f"v_mul_u32_u24 v47, 2500, v47")
    g("s_waitcnt lgkmcnt(0)")
    g("s_barrier")
    g.c("---- persistent per-lane constants")
    g(f"v_lshrrev_b32 v46, 4, v{vLane}")
    g(f"v_and_b32 v41, 7, v{vLane}")
    g(f"v_bfe_u32 v45, v{vLane}, 3, 1")
    g(f"v_lshlrev_b32 v45, 9, v45")
    g(f"v_lshl_add_u32 v45, v46, 7, v45")
    g(f"v_lshl_add_u32 v{vDma0}, v41, 4, v45")
    g(f"v_xor_b32 v41, 4, v41")
    g(f"v_lshl_add_u32 v{vDma1}, v41, 4, v45")
    g(f"v_bfe_u32 v40, v{vLane}, 2, 2")
    g(f"v_bfe_u32 v42, v{vLane}, 1, 1")
    g(f"v_lshl_add_u32 v42, v46, 1, v42")
    g(f"v_lshrrev_b32 v43, 1, v40")
    g(f"v_lshlrev_b32 v44, 2, v43")
    g(f"v_xor_b32 v42, v42, v44")
    g(f"v_and_b32 v44, 1, v40")
    g(f"v_lshl_add_u32 v42, v44, 3, v42")
    g(f"v_lshlrev_b32 v42, 4, v42")
    g(f"v_lshl_add_u32 v42, v43, 10, v42")
    g(f"v_and_b32 v44, 1, v{vLane}")
    g(f"v_lshl_add_u32 v42, v44, 3, v42")
    g(f"v_add_u32 v{vTr}, s{sRing}, v42")
    g(f"v_lshrrev_b32 v41, 5, v{vLane}")
    g(f"v_mov_b32 v43, 128")
    g(f"v_cmp_eq_u32 vcc, v40, v41")
    g(f"v_add_u32 v41, 2, v41")
    g.nop(1)
    g(f"v_cndmask_b32 v{vInc1}, 0, v43, vcc")
    g(f"v_cmp_eq_u32 vcc, v40, v41")
    g.nop(2)
    g(f"v_cndmask_b32 v{vInc2}, 0, v43, vcc")
    g.c("================ front end: decode the cells")
    g(f"s_waitcnt vmcnt({nvm})")
    g.stamp(1)
    g(f"v_cmp_eq_u32 vcc, -2, v{cM+3}")
    g(f"s_mov_b32 s{sL}, 0")
    g("s_cbranch_vccnz L_scan")
    g(f"s_mov_b32 s{sL}, 79")
    for k in range(4):
        g(f"v_cmp_gt_u32 {s(sM[k],2)}, -2, v{cM+k}")
        g(f"v_lshrrev_b32 v{cE+k}, 20, v{cM+k}")
        g(f"v_add_u32 v{cE+k}, v{cE+k}, v47")
        g(f"v_bfe_u32 v{cS+k}, v{cM+k}, 6, 14")
        g(f"v_and_b32 v{cM+k}, 63, v{cM+k}")
    g("s_branch L_have")

    g.label("L_scan")
    g.c("================ fallback scan of this wave's 20000 dst entries (rare path)")
    BUF = 40
    g(f"s_mov_b32 s{sAddr}, s{sRing}")
    g(f"s_xor_b32 s{sNomatch}, s{sB}, 1")
    g.label("L_sloop")
    g(f"s_cmp_ge_u32 s{sL}, 79")
    g("s_cbranch_scc1 L_scan_done")
    g(f"s_mul_i32 s{sT}, s{sWV}, 20000")
    g(f"s_lshl_b32 s{sN}, s{sL}, 8")
    g(f"s_add_u32 s{sC}, s{sT}, s{sN}")
    g(f"v_lshlrev_b32 v{vS0}, 2, v{vLane}")
    g(f"v_add_u32 v{vS0}, s{sC}, v{vS0}")
    g(f"v_lshlrev_b32 v{vS1}, 2, v{vS0}")
    g(f"buffer_load_dwordx4 {v(BUF,4)}, v{vS1}, {s(DST,4)}, 0 offen")
    g("s_waitcnt vmcnt(0)")
    g(f"s_cmp_lg_u32 s{sL}, 78")
    g("s_cbranch_scc1 L_snotlast")
    g(f"s_mov_b32 exec_lo, 0xffffff00")
    for k in range(4):
        g(f"v_mov_b32 v{BUF+k}, s{sNomatch}")
    g("s_mov_b64 exec, -1")
    g.label("L_snotlast")
    for k in range(4):
        lab = g.newlab()
        g(f"s_cmp_gt_u32 s{sKskip}, {k}")
        g(f"s_cbranch_scc1 {lab}")
        g(f"v_cmp_eq_u32_sdwa vcc, v{BUF+k}, s{sB} src0_sel:BYTE_0 src1_sel:DWORD")
        g(f"s_cbranch_vccz {lab}")
        g(f"s_bcnt1_i32_b64 s{sT}, vcc")
        g(f"s_lshl3_add_u32 s{sN}, s{sT}, s{sAddr}")
        g(f"s_mov_b32 s{sKskip}, {k}")
        g(f"s_cmp_gt_u32 s{sN}, s{sLimit}")
        g(f"s_cbranch_scc1 L_ovf")
        g(f"v_mbcnt_lo_u32_b32 v48, vcc_lo, 0")
        g(f"v_mbcnt_hi_u32_b32 v48, vcc_hi, v48")
        g(f"v_lshl_add_u32 v48, v48, 3, s{sAddr}")
        g(f"v_add_u32 v49, {k}, v{vS0}")
        g("s_mov_b64 exec, vcc")
        g(f"ds_write2_b32 v48, v{BUF+k}, v49 offset0:0 offset1:1")
        g("s_mov_b64 exec, -1")
        g(f"s_mov_b32 s{sAddr}, s{sN}")
        g.label(lab)
    g(f"s_mov_b32 s{sKskip}, 0")
    g(f"s_add_u32 s{sL}, s{sL}, 1")
    g("s_branch L_sloop")
    g.label("L_ovf")
    g("v_mov_b32 v48, 1")
    g(f"v_mov_b32 v49, {FLAG}")
    g("ds_write_b32 v49, v48")
    g.label("L_scan_done")
    g(f"s_sub_u32 s{sCnt}, s{sAddr}, s{sRing}")
    g(f"s_lshr_b32 s{sCnt}, s{sCnt}, 3")
    g(f"v_lshlrev_b32 v48, 3, v{vLane}")
    g(f"v_add_u32 v48, s{sRing}, v48")
    g("s_waitcnt lgkmcnt(0)")
    for k in range(4):
        g(f"ds_read_b32 v{cM+k}, v48 offset:{512*k}")
        g(f"ds_read_b32 v{cE+k}, v48 offset:{512*k+4}")
        g(f"s_sub_u32 s{sT}, s{sCnt}, {64*k}")
        g(f"v_cmp_gt_i32 {s(sM[k],2)}, s{sT}, v{vLane}")
    g("s_waitcnt lgkmcnt(0)")
    for k in range(4):
        g(f"v_lshlrev_b32 v{cT+k}, 2, v{cE+k}")
        g(f"buffer_load_dword v{cS+k}, v{cT+k}, {s(SRC,4)}, 0 offen")
        g(f"v_bfe_u32 v{cM+k}, v{cM+k}, 8, 6")
    g("s_waitcnt vmcnt(0)")
    g.label("L_have")
    g.c("================ histogram over (slot, src bin)")
    g("v_mov_b32 v48, 1")
    for k in range(4):
        g(f"v_mul_u32_u24 v{cT+k}, 6711, v{cS+k}")
        g(f"v_lshrrev_b32 v{cT+k}, 22, v{cT+k}")
        g(f"v_min_u32 v{cT+k}, 15, v{cT+k}")
        g(f"v_lshlrev_b32 v{cT+k}, 2, v{cT+k}")
        g(f"v_lshl_add_u32 v{cK+k}, v{cM+k}, 6, v{cT+k}")
        g(f"v_add_u32 v{cK+k}, {HIST}, v{cK+k}")
        g(f"s_mov_b64 exec, {s(sM[k],2)}")
        g(f"ds_add_rtn_u32 v{cR+k}, v{cK+k}, v48")
        g("s_mov_b64 exec, -1")
    g(f"v_lshlrev_b32 v40, 6, v{vLane}")
    g(f"v_add_u32 v40, {HIST}, v40")
    g(f"v_mov_b32 v41, {FLAG}")
    g("s_waitcnt lgkmcnt(0)")
    g("s_barrier")
    g.stamp(2)
    g.c("================ degrees, assignment, offsets")
    for q in range(4):
        g(f"ds_read_b128 {v(64+4*q,4)}, v40 offset:{16*q}")
    g(f"ds_read_b32 v41, v41")
    g(f"s_cmp_lg_u32 s{sRound}, 0")
    lz = g.newlab()
    g(f"s_cbranch_scc1 {lz}")
    for r in range(ACC, ACC + 80, 2):
        g(f"v_mov_b64 {v(r,2)}, 0")
    g.label(lz)
    g("s_waitcnt lgkmcnt(0)")
    g(f"v_readfirstlane_b32 s{sMore}, v41")
    for q in range(5):
        g(f"v_add3_u32 v{64+3*q}, v{64+3*q}, v{64+3*q+1}, v{64+3*q+2}")
    g("v_add3_u32 v64, v64, v67, v70")
    g("v_add3_u32 v73, v73, v76, v79")
    vDeg, vKey, vRank = 64, 65, 66
    g(f"v_add_u32 v{vDeg}, v64, v73")
    g(f"s_cmp_lg_u32 s{sRound}, 0")
    g("s_cbranch_scc1 L_assigned")
    g(f"v_sub_u32 v{vKey}, 63, v{vLane}")
    g(f"v_lshl_add_u32 v{vKey}, v{vDeg}, 6, v{vKey}")
    g(f"v_mov_b32 v{vRank}, 0")
    masks = ["vcc", "s[4:5]", "s[6:7]"]
    for b0 in range(0, 40, 16):
        nb = min(16, 40 - b0)
        for j in range(nb):
            g(f"v_readlane_b32 s{sKey+j}, v{vKey}, {b0+j}")
        j = 0
        while j < nb:
            m = min(3, nb - j)
            for t in range(m):
                g(f"v_cmp_gt_u32 {masks[t]}, s{sKey+j+t}, v{vKey}")
            if m < 3:
                g.nop(3 - m)
            for t in range(m):
                g(f"v_addc_co_u32 v{vRank}, {masks[t]}, 0, v{vRank}, {masks[t]}")
            j += m
    g(f"v_bfe_u32 v67, v{vRank}, 3, 1")
    g(f"v_mul_u32_u24 v67, 7, v67")
    g(f"v_and_b32 v68, 7, v{vRank}")
    g(f"v_xor_b32 v{vOwner}, v67, v68")
    g(f"s_sub_u32 s{sT}, 7, s{sWV}")
    for k in range(5):
        g(f"s_add_u32 s{sN}, s{sT if k & 1 else sWV}, {8*k}")
        g(f"v_cmp_eq_u32 vcc, s{sN}, v{vRank}")
        g(f"s_ff1_i32_b64 s{sSlot+k}, vcc")
    g.label("L_assigned")
    g(f"v_cmp_gt_u32 vcc, s{sWV}, v{vOwner}")
    g(f"v_and_b32 v68, 15, v{vLane}")
    g(f"v_lshlrev_b32 v68, 2, v68")
    g(f"v_cndmask_b32 v67, 0, v{vDeg}, vcc")
    g(f"v_add_u32 v68, {HIST}, v68")
    for k in range(5):
        g(f"s_lshl_b32 s{sKey+k}, s{sSlot+k}, 6")
        g(f"v_add_u32 v{70+k}, s{sKey+k}, v68")
        g(f"ds_read_b32 v{75+k}, v{70+k}")
    for n_, sh_ in enumerate((1, 2, 4, 8)):
        g(f"v_add_u32_dpp v67, v67, v67 row_shr:{sh_} row_mask:0xf bank_mask:0xf bound_ctrl:1")
        g(f"v_readlane_b32 s{sKey+8+n_}, v{vDeg}, s{sSlot+n_}")
        g.nop(1)
    g(f"v_readlane_b32 s{sKey+12}, v{vDeg}, s{sSlot+4}")
    g(f"v_readlane_b32 s{sBase}, v67, 15")
    g(f"v_readlane_b32 s{sT}, v67, 31")
    g(f"v_readlane_b32 s{sN}, v67, 47")
    g(f"s_add_u32 s{sTot}, s{sKey+8}, s{sKey+9}")
    for k in range(2, 5):
        g(f"s_add_u32 s{sTot}, s{sTot}, s{sKey+8+k}")
    g(f"s_add_u32 s{sBase}, s{sBase}, s{sT}")
    g(f"s_add_u32 s{sBase}, s{sBase}, s{sN}")
    g(f"s_add_u32 s{sBase}, s{sBase}, 3")
    g(f"s_andn2_b32 s{sBase}, s{sBase}, 3")
    g(f"s_lshl2_add_u32 s{sBase}, s{sWV}, s{sBase}")
    g("s_waitcnt lgkmcnt(0)")
    g("v_add3_u32 v67, v75, v76, v77")
    g("v_add3_u32 v67, v67, v78, v79")
    g("v_mov_b32 v68, v67")
    for sh_ in (1, 2, 4, 8):
        g.nop(2)
        g(f"v_add_u32_dpp v68, v68, v68 row_shr:{sh_} row_mask:0xf bank_mask:0xf bound_ctrl:1")
    g("v_sub_u32 v68, v68, v67")
    g(f"v_add_u32 v68, s{sBase}, v68")
    for k in range(5):
        g(f"v_lshl_add_u32 v{40+k}, v68, 3, {k}")
        g(f"ds_write_b32 v{70+k}, v{40+k} offset:{OFF-HIST}")
        if k < 4:
            g(f"v_add_u32 v68, v68, v{75+k}")
    g("s_waitcnt lgkmcnt(0)")
    g("s_barrier")
    g.stamp(8)
    g.c("================ placement of (row offset | acc index, eid); re-zero HIST/FLAG")
    for k in range(4):
        g(f"ds_read_b32 v{cT+k}, v{cK+k} offset:{OFF-HIST}")
    g("v_mov_b32 v64, 0")
    g("v_mov_b32 v65, 0")
    g(f"v_lshlrev_b32 v66, 3, v0")
    g(f"v_add_u32 v66, {HIST}, v66")
    g("ds_write_b64 v66, v[64:65]")
    g(f"v_mov_b32 v66, {FLAG}")
    g("ds_write_b32 v66, v64")
    g(f"s_mov_b32 s{sT}, {META}")
    g("s_waitcnt lgkmcnt(2)")
    for k in range(4):
        g(f"v_lshrrev_b32 v{cK+k}, 3, v{cT+k}")
        g(f"v_add_u32 v{cK+k}, v{cK+k}, v{cR+k}")
        g(f"v_and_b32 v{cT+k}, 7, v{cT+k}")
        g(f"v_lshl_or_b32 v{cT+k}, v{cS+k}, 11, v{cT+k}")
        g(f"v_lshl_add_u32 v{cK+k}, v{cK+k}, 2, s{sT}")
        g(f"s_mov_b64 exec, {s(sM[k],2)}")
        g(f"ds_write_b32 v{cK+k}, v{cT+k}")
        g(f"ds_write_b32 v{cK+k}, v{cE+k} offset:{META2-META}")
        g("s_mov_b64 exec, -1")
    g(f"s_lshl_b32 s{sBase}, s{sBase}, 2")
    g(f"s_add_u32 s{sBase}, s{sBase}, {META}")
    g("s_waitcnt lgkmcnt(0)")
    g("s_barrier")
    g.stamp(3)

    RW, D, B, A, EA1, EA2, M4 = 16, 32, 48, 56, 60, 64, 68

    def issue(r, sm=sMn):
        g(f"s_add_u32 m0, s{sRing}, {r*2048}")
        g(f"s_andn2_b32 s{sOff}, s{sm+r}, 7")
        g(f"buffer_load_dwordx4 v{vDma0}, {s(X,4)}, s{sOff} offen lds")
        g(f"buffer_load_dwordx4 v{vDma1}, {s(X,4)}, s{sOff} offen offset:1024 lds")

    g.label("L_block")
    g.c("================ block of <=128 own edges: first rows, payload (edge_attr by DMA, A from sh)")
    g(f"s_cmp_eq_u32 s{sTot}, 0")
    g("s_cbranch_scc1 L_round_done")
    g(f"s_min_u32 s{sRem}, s{sTot}, 128")
    g(f"s_sub_u32 s{sTot}, s{sTot}, s{sRem}")
    g(f"v_mov_b32 v{vMetaA}, s{sBase}")
    g(f"v_lshl_add_u32 v40, v{vLane}, 2, s{sBase}")
    g(f"v_lshrrev_b32 v42, 1, v{vLane}")
    g(f"v_lshl_add_u32 v41, v42, 2, s{sBase}")
    g(f"ds_read_b128 {v(M4,4)}, v{vMetaA}")
    g(f"ds_read_b32 v44, v40 offset:{META2-META}")
    g(f"ds_read_b32 v45, v40 offset:{META2-META+256}")
    for q in range(4):
        g(f"ds_read_b32 v{48+q}, v41 offset:{META2-META+128*q}")
    g(f"s_add_u32 s{sBase}, s{sBase}, 512")
    g(f"v_and_b32 v43, 1, v{vLane}")
    g(f"v_lshlrev_b32 v43, 4, v43")
    g("s_waitcnt lgkmcnt(6)")
    for r in range(4):
        g(f"v_readfirstlane_b32 s{sMn+r}, v{M4+r}")
    lp = g.newlab()
    for r in range(4):
        g(f"s_and_b32 s{sIdx+r}, s{sMn+r}, 7")
        g(f"s_mov_b32 s{sMc+r}, s{sMn+r}")
    for r in range(R):
        if r > 0:
            g(f"s_cmp_le_u32 s{sRem}, {r}")
            g(f"s_cbranch_scc1 {lp}")
        issue(r)
    g.label(lp)
    g("s_waitcnt lgkmcnt(0)")
    g(f"v_lshlrev_b32 v44, 3, v44")
    g(f"v_lshlrev_b32 v45, 3, v45")
    for q in range(4):
        g(f"v_lshl_add_u32 v{48+q}, v{48+q}, 5, v43")
    SHR = [52, 54]
    lq = g.newlab()
    for q in range(4):
        if q:
            g(f"s_cmp_le_u32 s{sRem}, {32*q}")
            g(f"s_cbranch_scc1 {lq}")
        g(f"s_sub_u32 s{sT}, s{sRem}, {32*q}")
        if q % 2 == 0:
            g(f"v_cmp_gt_u32 vcc, s{sT}, v{vLane}")
            g("s_mov_b64 exec, vcc")
            g(f"buffer_load_dwordx2 {v(SHR[q//2],2)}, v{44+q//2}, {s(SH,4)}, 0 offen")
            g("s_mov_b64 exec, -1")
        g(f"v_cmp_gt_u32 vcc, s{sT}, v42")
        g(f"s_add_u32 m0, s{sRec}, {4096+1024*q}")
        g("s_mov_b64 exec, vcc")
        g(f"buffer_load_dwordx4 v{48+q}, {s(EA,4)}, 0 offen lds")
        g("s_mov_b64 exec, -1")
    g.label(lq)
    g(f"v_and_b32 v40, 3, v{vLane}")
    g(f"v_lshl_add_u32 v{vRecA}, v40, 3, s{sRec}")
    g(f"v_bfe_u32 v41, v{vLane}, 4, 1")
    g(f"v_lshlrev_b32 v41, 4, v41")
    g(f"v_lshl_add_u32 v41, v40, 5, v41")
    g(f"s_add_u32 s{sT}, s{sRec}, 4096")
    g(f"v_add_u32 v41, s{sT}, v41")
    g(f"v_mov_b32 v42, {ZERO}")
    g(f"v_cmp_ne_u32 vcc, 0, v{vInc1}")
    g(f"v_cmp_ne_u32 s[4:5], 0, v{vInc2}")
    g(f"v_lshl_add_u32 v43, v{vLane}, 5, s{sRec}")
    g(f"v_cndmask_b32 v{vEa1}, v42, v41, vcc")
    g(f"v_cndmask_b32 v{vEa2}, v42, v41, s[4:5]")
    g("s_waitcnt vmcnt(0)")
    g.stamp(9)
    for st in range(2):
        for w in range(4):
            g(f"v_mfma_f32_4x4x4_16b_bf16 {v(16+4*w,4)}, {a_(aCG+2*w,2)}, {v(SHR[st],2)}, 0")
        g.nop(3)
        for w in range(4):
            g(f"v_cvt_pk_bf16_f32 v{32+2*w}, v{16+4*w}, v{16+4*w+1}")
            g(f"v_cvt_pk_bf16_f32 v{32+2*w+1}, v{16+4*w+2}, v{16+4*w+3}")
        g(f"ds_write_b128 v43, v[32:35] offset:{2048*st}")
        g(f"ds_write_b128 v43, v[36:39] offset:{2048*st+16}")
        if st == 0:
            g(f"s_cmp_le_u32 s{sRem}, 64")
            g("s_cbranch_scc1 L_group")
    g.c("================ sweep")
    g.label("L_group")
    g(f"ds_read_b128 {v(EA1,4)}, v{vEa1}")
    g(f"ds_read_b128 {v(EA2,4)}, v{vEa2}")
    g(f"ds_read_b128 {v(M4,4)}, v{vMetaA} offset:16")
    g(f"v_add_u32 v{vEa1}, v{vEa1}, v{vInc1}")
    g(f"v_add_u32 v{vEa2}, v{vEa2}, v{vInc2}")
    g(f"v_add_u32 v{vMetaA}, 16, v{vMetaA}")
    g("s_waitcnt lgkmcnt(0)")
    for i in range(4):
        g(f"v_mfma_f32_16x16x32_bf16 {v(RW+4*i,4)}, {v(EA1,4)}, {a_(aWR+8*i,4)}, 0")
    for i in range(4):
        g(f"v_mfma_f32_16x16x32_bf16 {v(RW+4*i,4)}, {v(EA2,4)}, {a_(aWR+8*i+4,4)}, {v(RW+4*i,4)}")
    for r in range(4):
        g(f"v_readfirstlane_b32 s{sMn+r}, v{M4+r}")
    for r in range(4):
        g.c(f"-- edge {r}")
        g(f"ds_read_b64 {v(A,2)}, v{vRecA} offset:{r*32}")
        l1 = g.newlab()
        g(f"s_cmp_ge_u32 s{sRem}, {R}")
        g(f"s_cbranch_scc1 {l1}")
        g("s_waitcnt vmcnt(0)")
        g.label(l1)
        g(f"s_waitcnt vmcnt({2*(R-1)})")
        for i in range(4):
            g(f"ds_read_b64_tr_b16 {v(B+2*i,2)}, v{vTr} offset:{r*2048+i*256}")
        g("s_waitcnt lgkmcnt(0)")
        l2 = g.newlab()
        g(f"s_cmp_le_u32 s{sRem}, {R}")
        g(f"s_cbranch_scc1 {l2}")
        issue((r + R) % 4, sMn if r + R >= 4 else sMc)
        g.label(l2)
        if o.nocomp:
            g(f"s_cmp_lg_u32 s{sRem}, 1")
            g(f"s_cbranch_scc1 L_nc{r}")
        for i in range(4):
            g(f"v_mfma_f32_4x4x4_16b_bf16 {v(D+4*i,4)}, {v(A,2)}, {v(B+2*i,2)}, 0")
        g.nop(2)
        labs = [g.newlab("L_acc") for _ in range(5)]
        join = g.newlab("L_join")
        g(f"s_cmp_ge_u32 s{sIdx+r}, 2")
        g(f"s_cbranch_scc1 {labs[2]}")
        g(f"s_cmp_eq_u32 s{sIdx+r}, 1")
        g(f"s_cbranch_scc1 {labs[1]}")

        def fma(k):
            x = r & 1
            for i in range(4):
                rw = RW + 4 * i + (r & ~1)
                for wp in range(2):
                    g(f"v_pk_fma_f32 {v(acc(k,i,2*wp),2)}, {v(D+4*i+2*wp,2)}, {v(rw,2)}, {v(acc(k,i,2*wp),2)} op_sel:[0,{x},0] op_sel_hi:[1,{x},1]")
        fma(0)
        g(f"s_branch {join}")
        g.label(labs[1])
        fma(1)
        g(f"s_branch {join}")
        g.label(labs[2])
        g(f"s_cmp_eq_u32 s{sIdx+r}, 3")
        g(f"s_cbranch_scc1 {labs[3]}")
        g(f"s_cmp_eq_u32 s{sIdx+r}, 4")
        g(f"s_cbranch_scc1 {labs[4]}")
        fma(2)
        g(f"s_branch {join}")
        g.label(labs[3])
        fma(3)
        g(f"s_branch {join}")
        g.label(labs[4])
        fma(4)
        g.label(join)
        if o.nocomp:
            g.label(f"L_nc{r}")
        g(f"s_and_b32 s{sIdx+r}, s{sMn+r}, 7")
        if R < 4:
            g(f"s_mov_b32 s{sMc+r}, s{sMn+r}")
        g(f"s_sub_u32 s{sRem}, s{sRem}, 1")
        g(f"s_cmp_eq_u32 s{sRem}, 0")
        g("s_cbranch_scc1 L_block")
    g(f"v_add_u32 v{vRecA}, 128, v{vRecA}")
    g("s_branch L_group")
    g.label("L_round_done")
    g(f"s_add_u32 s{sRound}, s{sRound}, 1")
    g(f"s_cmp_lg_u32 s{sMore}, 0")
    g("s_cbranch_scc1 L_scan")
    g.stamp(4)

    g.c("================ W fragments -> AGPRs; agg image -> LDS")
    g(f"s_lshl_b32 s{sT}, s{sWV}, 14")
    g(f"s_add_u32 s{sT}, s{sT}, {WS_WF}")
    g(f"v_lshlrev_b32 v16, 4, v{vLane}")
    g(f"v_add_u32 v16, s{sT}, v16")
    g("s_waitcnt vmcnt(0)")
    for ks in range(16):
        g(f"buffer_load_dwordx4 {a_(aW+4*ks,4)}, v16, {s(WS,4)}, 0 offen offset:{(ks%4)*1024}")
        if ks % 4 == 3:
            g(f"v_add_u32 v16, 4096, v16")
    g(f"v_mul_u32_u24 v16, 320, v{vLane}")
    g(f"v_lshrrev_b32 v17, 2, v{vLane}")
    g(f"v_lshl_add_u32 v16, v17, 3, v16")
    for k in range(5):
        g(f"s_lshl_b32 s{sT}, s{sSlot+k}, 3")
        g(f"v_add_u32 v{17+k}, s{sT}, v16")
    t = 0
    for k in range(5):
        for i in range(4):
            p = 24 + 2 * t
            t += 1
            g(f"v_cvt_pk_bf16_f32 v{p}, v{acc(k,i,0)}, v{acc(k,i,1)}")
            g(f"v_cvt_pk_bf16_f32 v{p+1}, v{acc(k,i,2)}, v{acc(k,i,3)}")
    g(f"v_lshrrev_b32 v70, 5, v{vLane}")
    g(f"v_mul_u32_u24 v71, 2576, v70")
    g(f"v_bfe_u32 v72, v{vLane}, 2, 2")
    g(f"v_mul_u32_u24 v72, 320, v72")
    g(f"v_bfe_u32 v73, v{vLane}, 4, 1")
    g(f"v_lshl_add_u32 v71, v73, 5, v71")
    g(f"v_and_b32 v73, 3, v{vLane}")
    g(f"v_lshl_add_u32 v71, v73, 3, v71")
    vG0, vG1, vO = 2, 3, 4
    g(f"v_add_u32 v{vG0}, v71, v72")
    g(f"v_add_u32 v{vG1}, {8*5152}, v{vG0}")
    g(f"v_bfe_u32 v72, v{vLane}, 2, 3")
    g(f"v_lshlrev_b32 v72, 19, v72")
    g(f"v_lshl_add_u32 v72, v73, 9, v72")
    g(f"v_lshl_add_u32 v72, v70, 4, v72")
    g(f"s_lshl_b32 s{sT}, s{sB}, 11")
    g(f"s_lshl_b32 s{sN}, s{sWV}, 6")
    g(f"s_add_u32 s{sT}, s{sT}, s{sN}")
    g(f"v_add_u32 v{vO}, s{sT}, v72")
    g("s_barrier")
    g.stamp(5)
    t = 0
    for k in range(5):
        for i in range(4):
            p = 24 + 2 * t
            t += 1
            g(f"ds_write_b64 v{17+k}, {v(p,2)} offset:{i*20608}")
    g("s_waitcnt lgkmcnt(0)")
    g("s_barrier")
    g.stamp(6)
    g.c("================ GEMM: out^T tile = W^T (A) x agg^T (B)")
    FB = [16, 32]
    DD = [48, 64]
    PK = [80, 88]
    chunks = [(t, c) for t in range(5) for c in range(4)]

    def rd(n):
        t, c = chunks[n]
        for kk in range(4):
            ks = 4 * c + kk
            base = vG0 if ks < 8 else vG1
            for tt in range(2):
                g(f"ds_read_b64_tr_b16 {v(FB[n%2]+4*kk+2*tt,2)}, v{base} offset:{(ks%8)*5152 + tt*1288 + t*64}")

    def epi(t):
        d = DD[t % 2]
        p = PK[t % 2]
        for q in range(8):
            g(f"v_cvt_pk_bf16_f32 v{p+q}, v{d+2*q}, v{d+2*q+1}")
        g.nop(2)
        g(f"v_permlane32_swap_b32 v{p}, v{p+2}")
        g(f"v_permlane32_swap_b32 v{p+1}, v{p+3}")
        g(f"v_permlane32_swap_b32 v{p+4}, v{p+6}")
        g(f"v_permlane32_swap_b32 v{p+5}, v{p+7}")
        g(f"buffer_store_dwordx4 {v(p,4)}, v{vO}, {s(OUT,4)}, 0 offen{o.stflag}")
        g(f"buffer_store_dwordx4 {v(p+4,4)}, v{vO}, {s(OUT,4)}, 0 offen offset:32{o.stflag}")
        g(f"v_add_u32 v{vO}, {8<<19}, v{vO}")
    rd(0)
    g("s_waitcnt vmcnt(0)")
    for n, (t, c) in enumerate(chunks):
        if n + 1 < len(chunks):
            rd(n + 1)
            g("s_waitcnt lgkmcnt(8)")
        else:
            g("s_waitcnt lgkmcnt(0)")
        for kk in range(4):
            ks = 4 * c + kk
            cin = "0" if ks == 0 else v(DD[t % 2], 16)
            g(f"v_mfma_f32_32x32x16_bf16 {v(DD[t%2],16)}, {a_(aW+4*ks,4)}, {v(FB[n%2]+4*kk,4)}, {cin}")
        if c == 0 and t > 0:
            epi(t - 1)
    g.nop(12)
    epi(4)
    if o.stamps:
        g.stamp(10)
        g("s_waitcnt vmcnt(0)")
        g.stamp(7)
        g(f"s_lshl_b32 s{sT}, s{sB}, 3")
        g(f"s_add_u32 s{sT}, s{sT}, s{sWV}")
        g(f"s_lshl_b32 s{sT}, s{sT}, 8")
        g(f"s_add_u32 s{sT}, s{sT}, {WS_STAMP}")
        g(f"v_lshlrev_b32 v16, 2, v{vLane}")
        g(f"v_add_u32 v16, s{sT}, v16")
        g(f"buffer_store_dword v{vStamp}, v16, {s(WS,4)}, 0 offen")
    g.label("L_end")
    g("s_endpgm")
    return g.L


K1_LDS = 32768 + 1024
K1_CNT = 32768
K1_BASE = 78


def build_k1(o):
    g = Gen(False)
    nwg = K1_BASE + o.k1pf
    g(f"s_cmp_ge_u32 s2, {nwg}")
    g("s_cbranch_scc1 K_end")
    g("s_load_dwordx16 s[16:31], s[0:1], 0")
    g("s_load_dwordx2 s[32:33], s[0:1], 80")
    g("s_cmp_ge_u32 s2, 64")
    g("s_cbranch_scc1 K_weights")
    g.c("---- sorter: chunk s2 = edges [2500*s2, +2500), thread t<625 takes 4 edges")
    g("s_mul_i32 s3, s2, 10000")
    g("v_lshlrev_b32 v1, 4, v0")
    g("v_add_u32 v2, s3, v1")
    g("s_mov_b32 s14, 625")
    g("v_cmp_gt_u32 s[34:35], s14, v0")
    g("s_waitcnt lgkmcnt(0)")
    srd(g, 4, 20, E * 4)
    g("buffer_load_dwordx4 v[4:7], v2, s[4:7], 0 offen")
    srd(g, 8, 18, E * 4)
    g("buffer_load_dwordx4 v[8:11], v2, s[8:11], 0 offen")
    srd(g, 12, 32, WS_BYTES)
    g.c("fill the cell image with 0xFFFFFFFF (2048 x 16 B), zero the counters")
    for k in range(4):
        g(f"v_mov_b32 v{12+k}, -1")
    g("ds_write_b128 v1, v[12:15]")
    g("ds_write_b128 v1, v[12:15] offset:10240")
    g("ds_write_b128 v1, v[12:15] offset:20480")
    g("v_cmp_gt_u32 vcc, 128, v0")
    g("v_mov_b32 v16, 0")
    g("v_mov_b32 v17, 0")
    g("v_lshlrev_b32 v3, 3, v0")
    g("s_mov_b64 exec, vcc")
    g("ds_write_b128 v1, v[12:15] offset:30720")
    g(f"ds_write_b64 v3, v[16:17] offset:{K1_CNT}")
    g("s_mov_b64 exec, -1")
    g("v_mov_b32 v18, 1")
    g("v_lshlrev_b32 v19, 22, v0")
    g("v_lshrrev_b32 v2, 3, v0")
    g("v_lshlrev_b32 v2, 13, v2")
    g("v_and_b32 v3, 7, v0")
    g("v_lshl_add_u32 v2, v3, 4, v2")
    g("s_lshl_b32 s3, s2, 7")
    g("v_add_u32 v2, s3, v2")
    g("s_waitcnt lgkmcnt(0)")
    g("s_barrier")
    g("s_waitcnt vmcnt(1)")
    for k in range(4):
        g(f"v_and_b32 v{20+k}, 255, v{4+k}")
        g(f"v_lshlrev_b32 v{24+k}, 2, v{20+k}")
    g("s_mov_b64 exec, s[34:35]")
    for k in range(4):
        g(f"ds_add_rtn_u32 v{28+k}, v{24+k}, v18 offset:{K1_CNT}")
    g("s_mov_b64 exec, -1")
    g("s_waitcnt vmcnt(0)")
    for k in range(4):
        g(f"v_bfe_u32 v{4+k}, v{4+k}, 8, 6")
        g(f"v_and_b32 v{8+k}, 0x3fff, v{8+k}")
        g(f"v_lshl_or_b32 v{4+k}, v{8+k}, 6, v{4+k}")
        g(f"v_add_u32 v{8+k}, {k<<20}, v19")
        g(f"v_or_b32 v{4+k}, v{4+k}, v{8+k}")
    g("v_mov_b32 v12, -2")
    g("s_waitcnt lgkmcnt(0)")
    for k in range(4):
        g(f"v_cmp_gt_u32 vcc, 31, v{28+k}")
        g(f"v_min_u32 v{28+k}, 31, v{28+k}")
        g(f"v_lshlrev_b32 v{28+k}, 2, v{28+k}")
        g(f"v_cndmask_b32 v{4+k}, v12, v{4+k}, vcc")
        g(f"v_lshl_add_u32 v{28+k}, v{20+k}, 7, v{28+k}")
    g("s_mov_b64 exec, s[34:35]")
    for k in range(4):
        g(f"ds_write_b32 v{28+k}, v{4+k}")
    g("s_mov_b64 exec, -1")
    g("v_cmp_gt_u32 vcc, 128, v0")
    g("s_waitcnt lgkmcnt(0)")
    g("s_barrier")
    for i in range(4):
        g(f"ds_read_b128 v[{32+4*i}:{35+4*i}], v1 offset:{10240*i}")
    for i in range(3):
        g(f"s_waitcnt lgkmcnt({3-i})")
        g(f"buffer_store_dwordx4 v[{32+4*i}:{35+4*i}], v2, s[12:15], 0 offen")
        g(f"v_add_u32 v2, {80*8192}, v2")
    g("s_and_saveexec_b64 s[36:37], vcc")
    g("s_cbranch_execz K_end")
    g("s_waitcnt lgkmcnt(0)")
    g("buffer_store_dwordx4 v[44:47], v2, s[12:15], 0 offen")
    g("s_branch K_end")
    g.label("K_weights")
    if o.k1pf:
        g(f"s_cmp_ge_u32 s2, {K1_BASE}")
        g("s_cbranch_scc1 K_pf")
    g.c("---- weight fragments: wave gw<128: W frag (j=gw>>4, ks=gw&15); gw<136: w_r frag f=gw-128; gw<138: cg")
    g("v_lshrrev_b32 v1, 6, v0")
    g("v_and_b32 v2, 63, v0")
    g("v_readfirstlane_b32 s3, v1")
    g("s_sub_u32 s34, s2, 64")
    g("s_mul_i32 s34, s34, 10")
    g("s_add_u32 s3, s3, s34")
    g("s_cmp_ge_u32 s3, 138")
    g("s_cbranch_scc1 K_end")
    g("s_waitcnt lgkmcnt(0)")
    srd(g, 12, 32, WS_BYTES)
    g("s_lshl_b32 s34, s3, 10")
    g(f"s_add_u32 s34, s34, {WS_WF}")
    g("v_lshlrev_b32 v3, 4, v2")
    g("v_add_u32 v3, s34, v3")
    g("s_cmp_ge_u32 s3, 136")
    g("s_cbranch_scc1 K_cg")
    g("s_cmp_ge_u32 s3, 128")
    g("s_cbranch_scc1 K_wr")
    srd(g, 4, 30, 131072)
    g("s_and_b32 s34, s3, 15")
    g("s_lshl_b32 s34, s34, 13")
    g("s_lshr_b32 s35, s3, 4")
    g("s_lshl_b32 s35, s35, 6")
    g("s_add_u32 s34, s34, s35")
    g("v_lshrrev_b32 v4, 5, v2")
    g("v_lshlrev_b32 v4, 12, v4")
    g("v_and_b32 v5, 31, v2")
    g("v_lshl_add_u32 v4, v5, 1, v4")
    g("v_add_u32 v4, s34, v4")
    g("s_branch K_wgo")
    g.label("K_wr")
    srd(g, 4, 28, 8192)
    g("s_sub_u32 s34, s3, 128")
    g("s_lshl_b32 s34, s34, 6")
    g("v_bfe_u32 v4, v2, 4, 1")
    g("v_lshlrev_b32 v4, 12, v4")
    g("v_lshrrev_b32 v5, 5, v2")
    g("v_lshl_add_u32 v4, v5, 5, v4")
    g("v_and_b32 v5, 15, v2")
    g("v_lshl_add_u32 v4, v5, 1, v4")
    g("v_add_u32 v4, s34, v4")
    g.label("K_wgo")
    for q in range(8):
        g(f"buffer_load_ushort v{16+q}, v4, s[4:7], 0 offen offset:{q*512}")
    g("s_branch K_wst")
    g.label("K_cg")
    srd(g, 4, 26, 128)
    g("s_sub_u32 s34, s3, 136")
    g("s_lshl_b32 s34, s34, 2")
    g("v_and_b32 v4, 3, v2")
    g("v_lshlrev_b32 v4, 5, v4")
    g("v_add_u32 v4, s34, v4")
    for q in range(8):
        g(f"buffer_load_ushort v{16+q}, v4, s[4:7], 0 offen offset:{(q&3)*8+(q>>2)*2}")
    g.label("K_wst")
    g("s_waitcnt vmcnt(0)")
    for q in range(4):
        g(f"v_lshl_or_b32 v{8+q}, v{17+2*q}, 16, v{16+2*q}")
    g("buffer_store_dwordx4 v[8:11], v3, s[12:15], 0 offen")
    if o.k1pf:
        g("s_branch K_end")
        g.label("K_pf")
        g.c("---- touch edge_attr, sh and the start of x so that the main kernel finds them in the Infinity Cache")
        g(f"s_sub_u32 s3, s2, {K1_BASE}")
        g("s_mul_i32 s3, s3, 10240")
        g("v_lshlrev_b32 v1, 4, v0")
        g("v_add_u32 v1, s3, v1")
        g("s_waitcnt lgkmcnt(0)")
        step = o.k1pf * 10240
        reg = 4
        for ptr, nb, lim in ((24, E * 32, E * 32), (22, E * 8, E * 8), (16, N * 2048, o.k1pfx)):
            srd(g, 4, ptr, nb) if ptr == 24 else srd(g, 8 if ptr == 22 else 12, ptr, nb)
            sr = {24: 4, 22: 8, 16: 12}[ptr]
            g("v_mov_b32 v2, v1")
            for off in range(0, lim, step):
                g(f"buffer_load_dwordx4 v[{reg}:{reg+3}], v2, s[{sr}:{sr+3}], 0 offen")
                g(f"v_add_u32 v2, {step}, v2")
                reg = 4 + (reg % 40)
        if not o.k1nowait:
            g("s_waitcnt vmcnt(0)")
    g.label("K_end")
    g("s_endpgm")
    return g.L


HEADER = open("/code/" + NAME + ".s.ref").read().split("; Override launch")[0]


def kd(name, vg, sg, acc):
    return f""".section .rodata,"a"
.p2align 6
.amdhsa_kernel {name}
  .amdhsa_next_free_vgpr {vg}
  .amdhsa_next_free_sgpr {sg}
  .amdhsa_accum_offset {acc}
  .amdhsa_group_segment_fixed_size 0
  .amdhsa_kernarg_size 88
  .amdhsa_user_sgpr_count 2
  .amdhsa_user_sgpr_kernarg_segment_ptr 1
  .amdhsa_system_sgpr_workgroup_id_x 1
  .amdhsa_float_denorm_mode_32 3
.end_amdhsa_kernel
"""


def emit(o):
    out = HEADER
    out += f"; @launch kernel=bin_edges_kernel grid=({K1_BASE+o.k1pf},1,1) block=(640,1,1) lds={K1_LDS}\n"
    out += f"; @launch kernel={NAME}_kernel grid=(256,1,1) block=(512,1,1) lds={LDS_BYTES}\n"
    out += "; generated by dev/gen.py\n"
    out += '.amdgcn_target "amdgcn-amd-amdhsa--gfx950"\n.text\n'
    out += f".globl bin_edges_kernel\n.p2align 8\n.type bin_edges_kernel,@function\nbin_edges_kernel:\n"
    out += "\n".join(build_k1(o)) + "\n"
    out += f".globl {NAME}_kernel\n.p2align 8\n.type {NAME}_kernel,@function\n{NAME}_kernel:\n"
    out += "\n".join(build(o)) + "\n"
    out += kd("bin_edges_kernel", 48, 40, 48)
    out += kd(NAME + "_kernel", 256, 102, 160)
    open(o.o, "w").write(out)


if __name__ == "__main__":
    ap = argparse.ArgumentParser()
    ap.add_argument("-o", default="/code/" + NAME + ".s")
    ap.add_argument("--stamps", action="store_true")
    ap.add_argument("--pf", type=int, default=0, help="L2 warm-up loads per wave (256 KB per XCD each)")
    ap.add_argument("--k1pf", type=int, default=0, help="extra K1 workgroups that touch inputs")
    ap.add_argument("--k1pfx", type=int, default=0, help="bytes of x they touch")
    ap.add_argument("--stflag", default="")
    ap.add_argument("--R", type=int, default=4)
    ap.add_argument("--nocomp", action="store_true")
    ap.add_argument("--k1nowait", action="store_true")
    emit(ap.parse_args())
```

```python
import sys, argparse

NAME = "standalone__tensor_product_equiv_mace__graph"
N, E = 10000, 160000

RING = 0
REC = 65536
CAP = 2096
META = 131072
META2 = META + CAP * 4
HIST = META2 + CAP * 4
OFF = HIST + 4096
ZERO = OFF + 4096
FLAG = ZERO + 16
LDS_BYTES = 156160
assert FLAG + 16 <= LDS_BYTES and META % 16 == 0 and HIST % 16 == 0
WS_CELLS = 0
WS_WF = 256 * 64 * 128
WS_WRF = WS_WF + 131072
WS_CGF = WS_WRF + 8192
WS_STAMP = 4 << 20
WS_BYTES = 8 << 20

sB, sWV = 2, 3
X, SRC, DST, SH, EA, OUT, WS = 8, 12, 16, 20, 24, 28, 32
sM = [36, 38, 40, 42]
sNomatch, sAddr, sLimit, sKskip, sT, sN, sC = 49, 50, 51, 52, 53, 54, 55
sSlot = 56
sBase, sRem, sRing = 61, 62, 63
sMn = 64
sIdx = 68
sOff, sRound, sMore, sCnt, sL, sTot, sRec = 72, 73, 74, 75, 76, 77, 78
sKey = 84
sMc = 44

vLane, vDma0, vDma1, vTr, vRecA, vEa1, vEa2, vInc1, vInc2, vMetaA, vOwner, vStamp, vS0, vS1 = range(1, 15)
ACC = 80
def acc(k, i, w): return ACC + 16 * k + 4 * i + w
aWR, aCG, aW = 0, 32, 32


class Gen:
    def __init__(self, stamps=False):
        self.L = []
        self.stamps = stamps
        self.nlab = 0

    def __call__(self, s):
        self.L.append("    " + s)

    def label(self, s):
        self.L.append(s + ":")

    def c(self, s):
        self.L.append("    ; " + s)

    def newlab(self, p="L"):
        self.nlab += 1
        return f"{p}_{self.nlab}"

    def nop(self, n):
        while n > 0:
            k = min(n, 16)
            self(f"s_nop {k-1}")
            n -= k

    def stamp(self, i):
        if not self.stamps:
            return
        self(f"s_memrealtime s[4:5]")
        self("s_waitcnt lgkmcnt(0)")
        self(f"v_writelane_b32 v{vStamp}, s4, {i}")


def srd(g, d, ptr, nbytes):
    g(f"s_mov_b32 s{d}, s{ptr}")
    g(f"s_mov_b32 s{d+1}, s{ptr+1}")
    g(f"s_mov_b32 s{d+2}, {nbytes}")
    g(f"s_mov_b32 s{d+3}, 0x00020000")


def v(a, n=1):
    return f"v{a}" if n == 1 else f"v[{a}:{a+n-1}]"


def a_(a, n=1):
    return f"a{a}" if n == 1 else f"a[{a}:{a+n-1}]"


def s(a, n=1):
    return f"s{a}" if n == 1 else f"s[{a}:{a+n-1}]"


def build(o):
    g = Gen(o.stamps)
    R = o.R
    cM, cE, cS, cK, cR, cT = 16, 20, 24, 28, 32, 36
    g(f"s_cmp_ge_u32 s{sB}, 256")
    g("s_cbranch_scc1 L_end")
    g("s_load_dwordx2 s[84:85], s[0:1], 80")
    g("s_load_dwordx16 s[64:79], s[0:1], 0")
    g("s_load_dwordx2 s[80:81], s[0:1], 64")
    g(f"v_and_b32 v{vLane}, 63, v0")
    g(f"v_lshrrev_b32 v40, 6, v0")
    g(f"v_mov_b32 v{vStamp}, 0")
    g(f"v_readfirstlane_b32 s{sWV}, v40")
    g(f"s_lshl_b32 s{sT}, s{sB}, 13")
    g(f"v_lshlrev_b32 v40, 4, v0")
    g(f"v_add_u32 v40, s{sT}, v40")
    g(f"v_lshlrev_b32 v44, 4, v{vLane}")
    g(f"v_add_u32 v41, {WS_WRF}, v44")
    g(f"v_add_u32 v42, {WS_WRF+4096}, v44")
    g(f"v_add_u32 v43, {WS_CGF}, v44")
    g("s_waitcnt lgkmcnt(0)")
    srd(g, WS, 84, WS_BYTES)
    g(f"buffer_load_dwordx4 {v(cM,4)}, v40, {s(WS,4)}, 0 offen")
    srd(g, X, 64, N * 2048)
    srd(g, SRC, 66, E * 4)
    srd(g, DST, 68, E * 4)
    srd(g, SH, 70, E * 8)
    srd(g, EA, 72, E * 32)
    srd(g, OUT, 80, N * 2048)
    for f in range(8):
        g(f"buffer_load_dwordx4 {a_(aWR+4*f,4)}, v{41 if f < 4 else 42}, {s(WS,4)}, 0 offen offset:{(f%4)*1024}")
    for p in range(2):
        g(f"buffer_load_dwordx4 {a_(aCG+4*p,4)}, v43, {s(WS,4)}, 0 offen offset:{p*1024}")
    nvm = 10
    g(f"s_lshl_b32 s{sRing}, s{sWV}, 13")
    g(f"s_add_u32 s{sRec}, s{sRing}, {REC}")
    if o.pf:
        g.c("L2 warm-up of the first x rows: workgroups b, b+8, .. (one XCD when dealt round-robin; speed only)")
        g(f"s_lshr_b32 s{sT}, s{sB}, 3")
        g(f"s_lshl_b32 s{sT}, s{sT}, 3")
        g(f"s_add_u32 s{sT}, s{sT}, s{sWV}")
        g(f"s_lshl_b32 s{sT}, s{sT}, 10")
        g(f"s_mov_b32 m0, s{sRec}")
        g(f"v_add_u32 v45, s{sT}, v44")
        for i in range(o.pf):
            g(f"buffer_load_dwordx4 v45, {s(X,4)}, 0 offen lds")
            if i + 1 < o.pf:
                g(f"v_add_u32 v45, {256*1024}, v45")
        nvm += o.pf
    g.stamp(0)
    g.c("---- zero HIST (4096 B: 512 threads x 8 B), ZERO block, FLAG")
    g("v_mov_b32 v48, 0")
    g("v_mov_b32 v49, 0")
    g(f"v_lshlrev_b32 v40, 3, v0")
    g(f"v_add_u32 v40, {HIST}, v40")
    g("ds_write_b64 v40, v[48:49]")
    g(f"v_and_b32 v40, 3, v{vLane}")
    g(f"v_lshlrev_b32 v40, 3, v40")
    g(f"v_add_u32 v40, {ZERO}, v40")
    g("ds_write_b64 v40, v[48:49]")
    g(f"s_mov_b32 s{sKskip}, 0")
    g(f"s_mov_b32 s{sRound}, 0")
    g(f"s_add_u32 s{sLimit}, s{sRing}, 2048")
    g(f"v_lshrrev_b32 v47, 3, v0")
    g(f"v_mul_u32_u24 v47, 2500, v47")
    g("s_waitcnt lgkmcnt(0)")
    g("s_barrier")
    g.c("---- persistent per-lane constants")
    g(f"v_lshrrev_b32 v46, 4, v{vLane}")
    g(f"v_and_b32 v41, 7, v{vLane}")
    g(f"v_bfe_u32 v45, v{vLane}, 3, 1")
    g(f"v_lshlrev_b32 v45, 9, v45")
    g(f"v_lshl_add_u32 v45, v46, 7, v45")
    g(f"v_lshl_add_u32 v{vDma0}, v41, 4, v45")
    g(f"v_xor_b32 v41, 4, v41")
    g(f"v_lshl_add_u32 v{vDma1}, v41, 4, v45")
    g(f"v_bfe_u32 v40, v{vLane}, 2, 2")
    g(f"v_bfe_u32 v42, v{vLane}, 1, 1")
    g(f"v_lshl_add_u32 v42, v46, 1, v42")
    g(f"v_lshrrev_b32 v43, 1, v40")
    g(f"v_lshlrev_b32 v44, 2, v43")
    g(f"v_xor_b32 v42, v42, v44")
    g(f"v_and_b32 v44, 1, v40")
    g(f"v_lshl_add_u32 v42, v44, 3, v42")
    g(f"v_lshlrev_b32 v42, 4, v42")
    g(f"v_lshl_add_u32 v42, v43, 10, v42")
    g(f"v_and_b32 v44, 1, v{vLane}")
    g(f"v_lshl_add_u32 v42, v44, 3, v42")
    g(f"v_add_u32 v{vTr}, s{sRing}, v42")
    g(f"v_lshrrev_b32 v41, 5, v{vLane}")
    g(f"v_mov_b32 v43, 128")
    g(f"v_cmp_eq_u32 vcc, v40, v41")
    g(f"v_add_u32 v41, 2, v41")
    g.nop(1)
    g(f"v_cndmask_b32 v{vInc1}, 0, v43, vcc")
    g(f"v_cmp_eq_u32 vcc, v40, v41")
    g.nop(2)
    g(f"v_cndmask_b32 v{vInc2}, 0, v43, vcc")
    g.c("================ front end: decode the cells")
    g(f"s_waitcnt vmcnt({nvm})")
    g.stamp(1)
    g(f"v_cmp_eq_u32 vcc, -2, v{cM+3}")
    g(f"s_mov_b32 s{sL}, 0")
    g("s_cbranch_vccnz L_scan")
    g(f"s_mov_b32 s{sL}, 79")
    for k in range(4):
        g(f"v_cmp_gt_u32 {s(sM[k],2)}, -2, v{cM+k}")
        g(f"v_lshrrev_b32 v{cE+k}, 20, v{cM+k}")
        g(f"v_add_u32 v{cE+k}, v{cE+k}, v47")
        g(f"v_bfe_u32 v{cS+k}, v{cM+k}, 6, 14")
        g(f"v_and_b32 v{cM+k}, 63, v{cM+k}")
    g("s_branch L_have")

    g.label("L_scan")
    g.c("================ fallback scan of this wave's 20000 dst entries (rare path)")
    BUF = 40
    g(f"s_mov_b32 s{sAddr}, s{sRing}")
    g(f"s_xor_b32 s{sNomatch}, s{sB}, 1")
    g.label("L_sloop")
    g(f"s_cmp_ge_u32 s{sL}, 79")
    g("s_cbranch_scc1 L_scan_done")
    g(f"s_mul_i32 s{sT}, s{sWV}, 20000")
    g(f"s_lshl_b32 s{sN}, s{sL}, 8")
    g(f"s_add_u32 s{sC}, s{sT}, s{sN}")
    g(f"v_lshlrev_b32 v{vS0}, 2, v{vLane}")
    g(f"v_add_u32 v{vS0}, s{sC}, v{vS0}")
    g(f"v_lshlrev_b32 v{vS1}, 2, v{vS0}")
    g(f"buffer_load_dwordx4 {v(BUF,4)}, v{vS1}, {s(DST,4)}, 0 offen")
    g("s_waitcnt vmcnt(0)")
    g(f"s_cmp_lg_u32 s{sL}, 78")
    g("s_cbranch_scc1 L_snotlast")
    g(f"s_mov_b32 exec_lo, 0xffffff00")
    for k in range(4):
        g(f"v_mov_b32 v{BUF+k}, s{sNomatch}")
    g("s_mov_b64 exec, -1")
    g.label("L_snotlast")
    for k in range(4):
        lab = g.newlab()
        g(f"s_cmp_gt_u32 s{sKskip}, {k}")
        g(f"s_cbranch_scc1 {lab}")
        g(f"v_cmp_eq_u32_sdwa vcc, v{BUF+k}, s{sB} src0_sel:BYTE_0 src1_sel:DWORD")
        g(f"s_cbranch_vccz {lab}")
        g(f"s_bcnt1_i32_b64 s{sT}, vcc")
        g(f"s_lshl3_add_u32 s{sN}, s{sT}, s{sAddr}")
        g(f"s_mov_b32 s{sKskip}, {k}")
        g(f"s_cmp_gt_u32 s{sN}, s{sLimit}")
        g(f"s_cbranch_scc1 L_ovf")
        g(f"v_mbcnt_lo_u32_b32 v48, vcc_lo, 0")
        g(f"v_mbcnt_hi_u32_b32 v48, vcc_hi, v48")
        g(f"v_lshl_add_u32 v48, v48, 3, s{sAddr}")
        g(f"v_add_u32 v49, {k}, v{vS0}")
        g("s_mov_b64 exec, vcc")
        g(f"ds_write2_b32 v48, v{BUF+k}, v49 offset0:0 offset1:1")
        g("s_mov_b64 exec, -1")
        g(f"s_mov_b32 s{sAddr}, s{sN}")
        g.label(lab)
    g(f"s_mov_b32 s{sKskip}, 0")
    g(f"s_add_u32 s{sL}, s{sL}, 1")
    g("s_branch L_sloop")
    g.label("L_ovf")
    g("v_mov_b32 v48, 1")
    g(f"v_mov_b32 v49, {FLAG}")
    g("ds_write_b32 v49, v48")
    g.label("L_scan_done")
    g(f"s_sub_u32 s{sCnt}, s{sAddr}, s{sRing}")
    g(f"s_lshr_b32 s{sCnt}, s{sCnt}, 3")
    g(f"v_lshlrev_b32 v48, 3, v{vLane}")
    g(f"v_add_u32 v48, s{sRing}, v48")
    g("s_waitcnt lgkmcnt(0)")
    for k in range(4):
        g(f"ds_read_b32 v{cM+k}, v48 offset:{512*k}")
        g(f"ds_read_b32 v{cE+k}, v48 offset:{512*k+4}")
        g(f"s_sub_u32 s{sT}, s{sCnt}, {64*k}")
        g(f"v_cmp_gt_i32 {s(sM[k],2)}, s{sT}, v{vLane}")
    g("s_waitcnt lgkmcnt(0)")
    for k in range(4):
        g(f"v_lshlrev_b32 v{cT+k}, 2, v{cE+k}")
        g(f"buffer_load_dword v{cS+k}, v{cT+k}, {s(SRC,4)}, 0 offen")
        g(f"v_bfe_u32 v{cM+k}, v{cM+k}, 8, 6")
    g("s_waitcnt vmcnt(0)")
    g.label("L_have")
    g.c("================ histogram over (slot, src bin)")
    g("v_mov_b32 v48, 1")
    for k in range(4):
        g(f"v_mul_u32_u24 v{cT+k}, 6711, v{cS+k}")
        g(f"v_lshrrev_b32 v{cT+k}, 22, v{cT+k}")
        g(f"v_min_u32 v{cT+k}, 15, v{cT+k}")
        g(f"v_lshlrev_b32 v{cT+k}, 2, v{cT+k}")
        g(f"v_lshl_add_u32 v{cK+k}, v{cM+k}, 6, v{cT+k}")
        g(f"v_add_u32 v{cK+k}, {HIST}, v{cK+k}")
        g(f"s_mov_b64 exec, {s(sM[k],2)}")
        g(f"ds_add_rtn_u32 v{cR+k}, v{cK+k}, v48")
        g("s_mov_b64 exec, -1")
    g(f"v_lshlrev_b32 v40, 6, v{vLane}")
    g(f"v_add_u32 v40, {HIST}, v40")
    g(f"v_mov_b32 v41, {FLAG}")
    g("s_waitcnt lgkmcnt(0)")
    g("s_barrier")
    g.stamp(2)
    g.c("================ degrees, assignment, offsets")
    for q in range(4):
        g(f"ds_read_b128 {v(64+4*q,4)}, v40 offset:{16*q}")
    g(f"ds_read_b32 v41, v41")
    g(f"s_cmp_lg_u32 s{sRound}, 0")
    lz = g.newlab()
    g(f"s_cbranch_scc1 {lz}")
    for r in range(ACC, ACC + 80, 2):
        g(f"v_mov_b64 {v(r,2)}, 0")
    g.label(lz)
    g("s_waitcnt lgkmcnt(0)")
    g(f"v_readfirstlane_b32 s{sMore}, v41")
    for q in range(5):
        g(f"v_add3_u32 v{64+3*q}, v{64+3*q}, v{64+3*q+1}, v{64+3*q+2}")
    g("v_add3_u32 v64, v64, v67, v70")
    g("v_add3_u32 v73, v73, v76, v79")
    vDeg, vKey, vRank = 64, 65, 66
    g(f"v_add_u32 v{vDeg}, v64, v73")
    g(f"s_cmp_lg_u32 s{sRound}, 0")
    g("s_cbranch_scc1 L_assigned")
    g(f"v_sub_u32 v{vKey}, 63, v{vLane}")
    g(f"v_lshl_add_u32 v{vKey}, v{vDeg}, 6, v{vKey}")
    g(f"v_mov_b32 v{vRank}, 0")
    masks = ["vcc", "s[4:5]", "s[6:7]"]
    for b0 in range(0, 40, 16):
        nb = min(16, 40 - b0)
        for j in range(nb):
            g(f"v_readlane_b32 s{sKey+j}, v{vKey}, {b0+j}")
        j = 0
        while j < nb:
            m = min(3, nb - j)
            for t in range(m):
                g(f"v_cmp_gt_u32 {masks[t]}, s{sKey+j+t}, v{vKey}")
            if m < 3:
                g.nop(3 - m)
            for t in range(m):
                g(f"v_addc_co_u32 v{vRank}, {masks[t]}, 0, v{vRank}, {masks[t]}")
            j += m
    g(f"v_bfe_u32 v67, v{vRank}, 3, 1")
    g(f"v_mul_u32_u24 v67, 7, v67")
    g(f"v_and_b32 v68, 7, v{vRank}")
    g(f"v_xor_b32 v{vOwner}, v67, v68")
    g(f"s_sub_u32 s{sT}, 7, s{sWV}")
    for k in range(5):
        g(f"s_add_u32 s{sN}, s{sT if k & 1 else sWV}, {8*k}")
        g(f"v_cmp_eq_u32 vcc, s{sN}, v{vRank}")
        g(f"s_ff1_i32_b64 s{sSlot+k}, vcc")
    g.label("L_assigned")
    g(f"v_cmp_gt_u32 vcc, s{sWV}, v{vOwner}")
    g(f"v_and_b32 v68, 15, v{vLane}")
    g(f"v_lshlrev_b32 v68, 2, v68")
    g(f"v_cndmask_b32 v67, 0, v{vDeg}, vcc")
    g(f"v_add_u32 v68, {HIST}, v68")
    for k in range(5):
        g(f"s_lshl_b32 s{sKey+k}, s{sSlot+k}, 6")
        g(f"v_add_u32 v{70+k}, s{sKey+k}, v68")
        g(f"ds_read_b32 v{75+k}, v{70+k}")
    for n_, sh_ in enumerate((1, 2, 4, 8)):
        g(f"v_add_u32_dpp v67, v67, v67 row_shr:{sh_} row_mask:0xf bank_mask:0xf bound_ctrl:1")
        g(f"v_readlane_b32 s{sKey+8+n_}, v{vDeg}, s{sSlot+n_}")
        g.nop(1)
    g(f"v_readlane_b32 s{sKey+12}, v{vDeg}, s{sSlot+4}")
    g(f"v_readlane_b32 s{sBase}, v67, 15")
    g(f"v_readlane_b32 s{sT}, v67, 31")
    g(f"v_readlane_b32 s{sN}, v67, 47")
    g(f"s_add_u32 s{sTot}, s{sKey+8}, s{sKey+9}")
    for k in range(2, 5):
        g(f"s_add_u32 s{sTot}, s{sTot}, s{sKey+8+k}")
    g(f"s_add_u32 s{sBase}, s{sBase}, s{sT}")
    g(f"s_add_u32 s{sBase}, s{sBase}, s{sN}")
    g(f"s_add_u32 s{sBase}, s{sBase}, 3")
    g(f"s_andn2_b32 s{sBase}, s{sBase}, 3")
    g(f"s_lshl2_add_u32 s{sBase}, s{sWV}, s{sBase}")
    g("s_waitcnt lgkmcnt(0)")
    g("v_add3_u32 v67, v75, v76, v77")
    g("v_add3_u32 v67, v67, v78, v79")
    g("v_mov_b32 v68, v67")
    for sh_ in (1, 2, 4, 8):
        g.nop(2)
        g(f"v_add_u32_dpp v68, v68, v68 row_shr:{sh_} row_mask:0xf bank_mask:0xf bound_ctrl:1")
    g("v_sub_u32 v68, v68, v67")
    g(f"v_add_u32 v68, s{sBase}, v68")
    for k in range(5):
        g(f"v_lshl_add_u32 v{40+k}, v68, 3, {k}")
        g(f"ds_write_b32 v{70+k}, v{40+k} offset:{OFF-HIST}")
        if k < 4:
            g(f"v_add_u32 v68, v68, v{75+k}")
    g("s_waitcnt lgkmcnt(0)")
    g("s_barrier")
    g.stamp(8)
    g.c("================ placement of (row offset | acc index, eid); re-zero HIST/FLAG")
    for k in range(4):
        g(f"ds_read_b32 v{cT+k}, v{cK+k} offset:{OFF-HIST}")
    g("v_mov_b32 v64, 0")
    g("v_mov_b32 v65, 0")
    g(f"v_lshlrev_b32 v66, 3, v0")
    g(f"v_add_u32 v66, {HIST}, v66")
    g("ds_write_b64 v66, v[64:65]")
    g(f"v_mov_b32 v66, {FLAG}")
    g("ds_write_b32 v66, v64")
    g(f"s_mov_b32 s{sT}, {META}")
    g("s_waitcnt lgkmcnt(2)")
    for k in range(4):
        g(f"v_lshrrev_b32 v{cK+k}, 3, v{cT+k}")
        g(f"v_add_u32 v{cK+k}, v{cK+k}, v{cR+k}")
        g(f"v_and_b32 v{cT+k}, 7, v{cT+k}")
        g(f"v_lshl_or_b32 v{cT+k}, v{cS+k}, 11, v{cT+k}")
        g(f"v_lshl_add_u32 v{cK+k}, v{cK+k}, 2, s{sT}")
        g(f"s_mov_b64 exec, {s(sM[k],2)}")
        g(f"ds_write_b32 v{cK+k}, v{cT+k}")
        g(f"ds_write_b32 v{cK+k}, v{cE+k} offset:{META2-META}")
        g("s_mov_b64 exec, -1")
    g(f"s_lshl_b32 s{sBase}, s{sBase}, 2")
    g(f"s_add_u32 s{sBase}, s{sBase}, {META}")
    g("s_waitcnt lgkmcnt(0)")
    g("s_barrier")
    g.stamp(3)

    RW, D, B, A, EA1, EA2, M4 = 16, 32, 48, 56, 60, 64, 68

    def issue(r, sm=sMn):
        g(f"s_add_u32 m0, s{sRing}, {r*2048}")
        g(f"s_andn2_b32 s{sOff}, s{sm+r}, 7")
        g(f"buffer_load_dwordx4 v{vDma0}, {s(X,4)}, s{sOff} offen lds")
        g(f"buffer_load_dwordx4 v{vDma1}, {s(X,4)}, s{sOff} offen offset:1024 lds")

    g.label("L_block")
    g.c("================ block of <=128 own edges: first rows, payload (edge_attr by DMA, A from sh)")
    g(f"s_cmp_eq_u32 s{sTot}, 0")
    g("s_cbranch_scc1 L_round_done")
    g(f"s_min_u32 s{sRem}, s{sTot}, 128")
    g(f"s_sub_u32 s{sTot}, s{sTot}, s{sRem}")
    g(f"v_mov_b32 v{vMetaA}, s{sBase}")
    g(f"v_lshl_add_u32 v40, v{vLane}, 2, s{sBase}")
    g(f"v_lshrrev_b32 v42, 1, v{vLane}")
    g(f"v_lshl_add_u32 v41, v42, 2, s{sBase}")
    g(f"ds_read_b128 {v(M4,4)}, v{vMetaA}")
    g(f"ds_read_b32 v44, v40 offset:{META2-META}")
    g(f"ds_read_b32 v45, v40 offset:{META2-META+256}")
    for q in range(4):
        g(f"ds_read_b32 v{48+q}, v41 offset:{META2-META+128*q}")
    g(f"s_add_u32 s{sBase}, s{sBase}, 512")
    g(f"v_and_b32 v43, 1, v{vLane}")
    g(f"v_lshlrev_b32 v43, 4, v43")
    g("s_waitcnt lgkmcnt(6)")
    for r in range(4):
        g(f"v_readfirstlane_b32 s{sMn+r}, v{M4+r}")
    lp = g.newlab()
    for r in range(4):
        g(f"s_and_b32 s{sIdx+r}, s{sMn+r}, 7")
        g(f"s_mov_b32 s{sMc+r}, s{sMn+r}")
    for r in range(R):
        if r > 0:
            g(f"s_cmp_le_u32 s{sRem}, {r}")
            g(f"s_cbranch_scc1 {lp}")
        issue(r)
    g.label(lp)
    g("s_waitcnt lgkmcnt(0)")
    g(f"v_lshlrev_b32 v44, 3, v44")
    g(f"v_lshlrev_b32 v45, 3, v45")
    for q in range(4):
        g(f"v_lshl_add_u32 v{48+q}, v{48+q}, 5, v43")
    SHR = [52, 54]
    lq = g.newlab()
    for q in range(4):
        if q:
            g(f"s_cmp_le_u32 s{sRem}, {32*q}")
            g(f"s_cbranch_scc1 {lq}")
        g(f"s_sub_u32 s{sT}, s{sRem}, {32*q}")
        if q % 2 == 0:
            g(f"v_cmp_gt_u32 vcc, s{sT}, v{vLane}")
            g("s_mov_b64 exec, vcc")
            g(f"buffer_load_dwordx2 {v(SHR[q//2],2)}, v{44+q//2}, {s(SH,4)}, 0 offen")
            g("s_mov_b64 exec, -1")
        g(f"v_cmp_gt_u32 vcc, s{sT}, v42")
        g(f"s_add_u32 m0, s{sRec}, {4096+1024*q}")
        g("s_mov_b64 exec, vcc")
        g(f"buffer_load_dwordx4 v{48+q}, {s(EA,4)}, 0 offen lds")
        g("s_mov_b64 exec, -1")
    g.label(lq)
    g(f"v_and_b32 v40, 3, v{vLane}")
    g(f"v_lshl_add_u32 v{vRecA}, v40, 3, s{sRec}")
    g(f"v_bfe_u32 v41, v{vLane}, 4, 1")
    g(f"v_lshlrev_b32 v41, 4, v41")
    g(f"v_lshl_add_u32 v41, v40, 5, v41")
    g(f"s_add_u32 s{sT}, s{sRec}, 4096")
    g(f"v_add_u32 v41, s{sT}, v41")
    g(f"v_mov_b32 v42, {ZERO}")
    g(f"v_cmp_ne_u32 vcc, 0, v{vInc1}")
    g(f"v_cmp_ne_u32 s[4:5], 0, v{vInc2}")
    g(f"v_lshl_add_u32 v43, v{vLane}, 5, s{sRec}")
    g(f"v_cndmask_b32 v{vEa1}, v42, v41, vcc")
    g(f"v_cndmask_b32 v{vEa2}, v42, v41, s[4:5]")
    g("s_waitcnt vmcnt(0)")
    g.stamp(9)
    for st in range(2):
        for w in range(4):
            g(f"v_mfma_f32_4x4x4_16b_bf16 {v(16+4*w,4)}, {a_(aCG+2*w,2)}, {v(SHR[st],2)}, 0")
        g.nop(3)
        for w in range(4):
            g(f"v_cvt_pk_bf16_f32 v{32+2*w}, v{16+4*w}, v{16+4*w+1}")
            g(f"v_cvt_pk_bf16_f32 v{32+2*w+1}, v{16+4*w+2}, v{16+4*w+3}")
        g(f"ds_write_b128 v43, v[32:35] offset:{2048*st}")
        g(f"ds_write_b128 v43, v[36:39] offset:{2048*st+16}")
        if st == 0:
            g(f"s_cmp_le_u32 s{sRem}, 64")
            g("s_cbranch_scc1 L_group")
    g.c("================ sweep")
    g.label("L_group")
    g(f"ds_read_b128 {v(EA1,4)}, v{vEa1}")
    g(f"ds_read_b128 {v(EA2,4)}, v{vEa2}")
    g(f"ds_read_b128 {v(M4,4)}, v{vMetaA} offset:16")
    g(f"v_add_u32 v{vEa1}, v{vEa1}, v{vInc1}")
    g(f"v_add_u32 v{vEa2}, v{vEa2}, v{vInc2}")
    g(f"v_add_u32 v{vMetaA}, 16, v{vMetaA}")
    g("s_waitcnt lgkmcnt(0)")
    for i in range(4):
        g(f"v_mfma_f32_16x16x32_bf16 {v(RW+4*i,4)}, {v(EA1,4)}, {a_(aWR+8*i,4)}, 0")
    for i in range(4):
        g(f"v_mfma_f32_16x16x32_bf16 {v(RW+4*i,4)}, {v(EA2,4)}, {a_(aWR+8*i+4,4)}, {v(RW+4*i,4)}")
    for r in range(4):
        g(f"v_readfirstlane_b32 s{sMn+r}, v{M4+r}")
    for r in range(4):
        g.c(f"-- edge {r}")
        g(f"ds_read_b64 {v(A,2)}, v{vRecA} offset:{r*32}")
        l1 = g.newlab()
        g(f"s_cmp_ge_u32 s{sRem}, {R}")
        g(f"s_cbranch_scc1 {l1}")
        g("s_waitcnt vmcnt(0)")
        g.label(l1)
        g(f"s_waitcnt vmcnt({2*(R-1)})")
        for i in range(4):
            g(f"ds_read_b64_tr_b16 {v(B+2*i,2)}, v{vTr} offset:{r*2048+i*256}")
        g("s_waitcnt lgkmcnt(0)")
        l2 = g.newlab()
        g(f"s_cmp_le_u32 s{sRem}, {R}")
        g(f"s_cbranch_scc1 {l2}")
        issue((r + R) % 4, sMn if r + R >= 4 else sMc)
        g.label(l2)
        if o.nocomp:
            g(f"s_cmp_lg_u32 s{sRem}, 1")
            g(f"s_cbranch_scc1 L_nc{r}")
        for i in range(4):
            g(f"v_mfma_f32_4x4x4_16b_bf16 {v(D+4*i,4)}, {v(A,2)}, {v(B+2*i,2)}, 0")
        g.nop(2)
        labs = [g.newlab("L_acc") for _ in range(5)]
        join = g.newlab("L_join")
        g(f"s_cmp_ge_u32 s{sIdx+r}, 2")
        g(f"s_cbranch_scc1 {labs[2]}")
        g(f"s_cmp_eq_u32 s{sIdx+r}, 1")
        g(f"s_cbranch_scc1 {labs[1]}")

        def fma(k):
            x = r & 1
            for i in range(4):
                rw = RW + 4 * i + (r & ~1)
                for wp in range(2):
                    g(f"v_pk_fma_f32 {v(acc(k,i,2*wp),2)}, {v(D+4*i+2*wp,2)}, {v(rw,2)}, {v(acc(k,i,2*wp),2)} op_sel:[0,{x},0] op_sel_hi:[1,{x},1]")
        fma(0)
        g(f"s_branch {join}")
        g.label(labs[1])
        fma(1)
        g(f"s_branch {join}")
        g.label(labs[2])
        g(f"s_cmp_eq_u32 s{sIdx+r}, 3")
        g(f"s_cbranch_scc1 {labs[3]}")
        g(f"s_cmp_eq_u32 s{sIdx+r}, 4")
        g(f"s_cbranch_scc1 {labs[4]}")
        fma(2)
        g(f"s_branch {join}")
        g.label(labs[3])
        fma(3)
        g(f"s_branch {join}")
        g.label(labs[4])
        fma(4)
        g.label(join)
        if o.nocomp:
            g.label(f"L_nc{r}")
        g(f"s_and_b32 s{sIdx+r}, s{sMn+r}, 7")
        if R < 4:
            g(f"s_mov_b32 s{sMc+r}, s{sMn+r}")
        g(f"s_sub_u32 s{sRem}, s{sRem}, 1")
        g(f"s_cmp_eq_u32 s{sRem}, 0")
        g("s_cbranch_scc1 L_block")
    g(f"v_add_u32 v{vRecA}, 128, v{vRecA}")
    g("s_branch L_group")
    g.label("L_round_done")
    g(f"s_add_u32 s{sRound}, s{sRound}, 1")
    g(f"s_cmp_lg_u32 s{sMore}, 0")
    g("s_cbranch_scc1 L_scan")
    g.stamp(4)

    g.c("================ W fragments -> AGPRs; agg image -> LDS")
    g(f"s_lshl_b32 s{sT}, s{sWV}, 14")
    g(f"s_add_u32 s{sT}, s{sT}, {WS_WF}")
    g(f"v_lshlrev_b32 v16, 4, v{vLane}")
    g(f"v_add_u32 v16, s{sT}, v16")
    g("s_waitcnt vmcnt(0)")
    for ks in range(16):
        g(f"buffer_load_dwordx4 {a_(aW+4*ks,4)}, v16, {s(WS,4)}, 0 offen offset:{(ks%4)*1024}")
        if ks % 4 == 3:
            g(f"v_add_u32 v16, 4096, v16")
    g(f"v_mul_u32_u24 v16, 320, v{vLane}")
    g(f"v_lshrrev_b32 v17, 2, v{vLane}")
    g(f"v_lshl_add_u32 v16, v17, 3, v16")
    for k in range(5):
        g(f"s_lshl_b32 s{sT}, s{sSlot+k}, 3")
        g(f"v_add_u32 v{17+k}, s{sT}, v16")
    t = 0
    for k in range(5):
        for i in range(4):
            p = 24 + 2 * t
            t += 1
            g(f"v_cvt_pk_bf16_f32 v{p}, v{acc(k,i,0)}, v{acc(k,i,1)}")
            g(f"v_cvt_pk_bf16_f32 v{p+1}, v{acc(k,i,2)}, v{acc(k,i,3)}")
    g(f"v_lshrrev_b32 v70, 5, v{vLane}")
    g(f"v_mul_u32_u24 v71, 2576, v70")
    g(f"v_bfe_u32 v72, v{vLane}, 2, 2")
    g(f"v_mul_u32_u24 v72, 320, v72")
    g(f"v_bfe_u32 v73, v{vLane}, 4, 1")
    g(f"v_lshl_add_u32 v71, v73, 5, v71")
    g(f"v_and_b32 v73, 3, v{vLane}")
    g(f"v_lshl_add_u32 v71, v73, 3, v71")
    vG0, vG1, vO = 2, 3, 4
    g(f"v_add_u32 v{vG0}, v71, v72")
    g(f"v_add_u32 v{vG1}, {8*5152}, v{vG0}")
    g(f"v_bfe_u32 v72, v{vLane}, 2, 3")
    g(f"v_lshlrev_b32 v72, 19, v72")
    g(f"v_lshl_add_u32 v72, v73, 9, v72")
    g(f"v_lshl_add_u32 v72, v70, 4, v72")
    g(f"s_lshl_b32 s{sT}, s{sB}, 11")
    g(f"s_lshl_b32 s{sN}, s{sWV}, 6")
    g(f"s_add_u32 s{sT}, s{sT}, s{sN}")
    g(f"v_add_u32 v{vO}, s{sT}, v72")
    g("s_barrier")
    g.stamp(5)
    t = 0
    for k in range(5):
        for i in range(4):
            p = 24 + 2 * t
            t += 1
            g(f"ds_write_b64 v{17+k}, {v(p,2)} offset:{i*20608}")
    g("s_waitcnt lgkmcnt(0)")
    g("s_barrier")
    g.stamp(6)
    g.c("================ GEMM: out^T tile = W^T (A) x agg^T (B)")
    FB = [16, 32]
    DD = [48, 64]
    PK = [80, 88]
    chunks = [(t, c) for t in range(5) for c in range(4)]

    def rd(n):
        t, c = chunks[n]
        for kk in range(4):
            ks = 4 * c + kk
            base = vG0 if ks < 8 else vG1
            for tt in range(2):
                g(f"ds_read_b64_tr_b16 {v(FB[n%2]+4*kk+2*tt,2)}, v{base} offset:{(ks%8)*5152 + tt*1288 + t*64}")

    def epi(t):
        d = DD[t % 2]
        p = PK[t % 2]
        for q in range(8):
            g(f"v_cvt_pk_bf16_f32 v{p+q}, v{d+2*q}, v{d+2*q+1}")
        g.nop(2)
        g(f"v_permlane32_swap_b32 v{p}, v{p+2}")
        g(f"v_permlane32_swap_b32 v{p+1}, v{p+3}")
        g(f"v_permlane32_swap_b32 v{p+4}, v{p+6}")
        g(f"v_permlane32_swap_b32 v{p+5}, v{p+7}")
        g(f"buffer_store_dwordx4 {v(p,4)}, v{vO}, {s(OUT,4)}, 0 offen{o.stflag}")
        g(f"buffer_store_dwordx4 {v(p+4,4)}, v{vO}, {s(OUT,4)}, 0 offen offset:32{o.stflag}")
        g(f"v_add_u32 v{vO}, {8<<19}, v{vO}")
    rd(0)
    g("s_waitcnt vmcnt(0)")
    for n, (t, c) in enumerate(chunks):
        if n + 1 < len(chunks):
            rd(n + 1)
            g("s_waitcnt lgkmcnt(8)")
        else:
            g("s_waitcnt lgkmcnt(0)")
        for kk in range(4):
            ks = 4 * c + kk
            cin = "0" if ks == 0 else v(DD[t % 2], 16)
            g(f"v_mfma_f32_32x32x16_bf16 {v(DD[t%2],16)}, {a_(aW+4*ks,4)}, {v(FB[n%2]+4*kk,4)}, {cin}")
        if c == 0 and t > 0:
            epi(t - 1)
    g.nop(12)
    epi(4)
    if o.stamps:
        g.stamp(10)
        g("s_waitcnt vmcnt(0)")
        g.stamp(7)
        g(f"s_lshl_b32 s{sT}, s{sB}, 3")
        g(f"s_add_u32 s{sT}, s{sT}, s{sWV}")
        g(f"s_lshl_b32 s{sT}, s{sT}, 8")
        g(f"s_add_u32 s{sT}, s{sT}, {WS_STAMP}")
        g(f"v_lshlrev_b32 v16, 2, v{vLane}")
        g(f"v_add_u32 v16, s{sT}, v16")
        g(f"buffer_store_dword v{vStamp}, v16, {s(WS,4)}, 0 offen")
    g.label("L_end")
    g("s_endpgm")
    return g.L


K1_LDS = 32768 + 1024
K1_CNT = 32768
K1_BASE = 78


def build_k1(o):
    g = Gen(False)
    nwg = K1_BASE + o.k1pf
    g(f"s_cmp_ge_u32 s2, {nwg}")
    g("s_cbranch_scc1 K_end")
    g("s_load_dwordx16 s[16:31], s[0:1], 0")
    g("s_load_dwordx2 s[32:33], s[0:1], 80")
    g("s_cmp_ge_u32 s2, 64")
    g("s_cbranch_scc1 K_weights")
    g.c("---- sorter: chunk s2 = edges [2500*s2, +2500), thread t<625 takes 4 edges")
    g("s_mul_i32 s3, s2, 10000")
    g("v_lshlrev_b32 v1, 4, v0")
    g("v_add_u32 v2, s3, v1")
    g("s_mov_b32 s14, 625")
    g("v_cmp_gt_u32 s[34:35], s14, v0")
    g("s_waitcnt lgkmcnt(0)")
    srd(g, 4, 20, E * 4)
    g("buffer_load_dwordx4 v[4:7], v2, s[4:7], 0 offen")
    srd(g, 8, 18, E * 4)
    g("buffer_load_dwordx4 v[8:11], v2, s[8:11], 0 offen")
    srd(g, 12, 32, WS_BYTES)
    g.c("fill the cell image with 0xFFFFFFFF (2048 x 16 B), zero the counters")
    for k in range(4):
        g(f"v_mov_b32 v{12+k}, -1")
    g("ds_write_b128 v1, v[12:15]")
    g("ds_write_b128 v1, v[12:15] offset:10240")
    g("ds_write_b128 v1, v[12:15] offset:20480")
    g("v_cmp_gt_u32 vcc, 128, v0")
    g("v_mov_b32 v16, 0")
    g("v_mov_b32 v17, 0")
    g("v_lshlrev_b32 v3, 3, v0")
    g("s_mov_b64 exec, vcc")
    g("ds_write_b128 v1, v[12:15] offset:30720")
    g(f"ds_write_b64 v3, v[16:17] offset:{K1_CNT}")
    g("s_mov_b64 exec, -1")
    g("v_mov_b32 v18, 1")
    g("v_lshlrev_b32 v19, 22, v0")
    g("v_lshrrev_b32 v2, 3, v0")
    g("v_lshlrev_b32 v2, 13, v2")
    g("v_and_b32 v3, 7, v0")
    g("v_lshl_add_u32 v2, v3, 4, v2")
    g("s_lshl_b32 s3, s2, 7")
    g("v_add_u32 v2, s3, v2")
    g("s_waitcnt lgkmcnt(0)")
    g("s_barrier")
    g("s_waitcnt vmcnt(1)")
    for k in range(4):
        g(f"v_and_b32 v{20+k}, 255, v{4+k}")
        g(f"v_lshlrev_b32 v{24+k}, 2, v{20+k}")
    g("s_mov_b64 exec, s[34:35]")
    for k in range(4):
        g(f"ds_add_rtn_u32 v{28+k}, v{24+k}, v18 offset:{K1_CNT}")
    g("s_mov_b64 exec, -1")
    g("s_waitcnt vmcnt(0)")
    for k in range(4):
        g(f"v_bfe_u32 v{4+k}, v{4+k}, 8, 6")
        g(f"v_and_b32 v{8+k}, 0x3fff, v{8+k}")
        g(f"v_lshl_or_b32 v{4+k}, v{8+k}, 6, v{4+k}")
        g(f"v_add_u32 v{8+k}, {k<<20}, v19")
        g(f"v_or_b32 v{4+k}, v{4+k}, v{8+k}")
    g("v_mov_b32 v12, -2")
    g("s_waitcnt lgkmcnt(0)")
    for k in range(4):
        g(f"v_cmp_gt_u32 vcc, 31, v{28+k}")
        g(f"v_min_u32 v{28+k}, 31, v{28+k}")
        g(f"v_lshlrev_b32 v{28+k}, 2, v{28+k}")
        g(f"v_cndmask_b32 v{4+k}, v12, v{4+k}, vcc")
        g(f"v_lshl_add_u32 v{28+k}, v{20+k}, 7, v{28+k}")
    g("s_mov_b64 exec, s[34:35]")
    for k in range(4):
        g(f"ds_write_b32 v{28+k}, v{4+k}")
    g("s_mov_b64 exec, -1")
    g("v_cmp_gt_u32 vcc, 128, v0")
    g("s_waitcnt lgkmcnt(0)")
    g("s_barrier")
    for i in range(4):
        g(f"ds_read_b128 v[{32+4*i}:{35+4*i}], v1 offset:{10240*i}")
    for i in range(3):
        g(f"s_waitcnt lgkmcnt({3-i})")
        g(f"buffer_store_dwordx4 v[{32+4*i}:{35+4*i}], v2, s[12:15], 0 offen")
        g(f"v_add_u32 v2, {80*8192}, v2")
    g("s_and_saveexec_b64 s[36:37], vcc")
    g("s_cbranch_execz K_end")
    g("s_waitcnt lgkmcnt(0)")
    g("buffer_store_dwordx4 v[44:47], v2, s[12:15], 0 offen")
    g("s_branch K_end")
    g.label("K_weights")
    if o.k1pf:
        g(f"s_cmp_ge_u32 s2, {K1_BASE}")
        g("s_cbranch_scc1 K_pf")
    g.c("---- weight fragments: wave gw<128: W frag (j=gw>>4, ks=gw&15); gw<136: w_r frag f=gw-128; gw<138: cg")
    g("v_lshrrev_b32 v1, 6, v0")
    g("v_and_b32 v2, 63, v0")
    g("v_readfirstlane_b32 s3, v1")
    g("s_sub_u32 s34, s2, 64")
    g("s_mul_i32 s34, s34, 10")
    g("s_add_u32 s3, s3, s34")
    g("s_cmp_ge_u32 s3, 138")
    g("s_cbranch_scc1 K_end")
    g("s_waitcnt lgkmcnt(0)")
    srd(g, 12, 32, WS_BYTES)
    g("s_lshl_b32 s34, s3, 10")
    g(f"s_add_u32 s34, s34, {WS_WF}")
    g("v_lshlrev_b32 v3, 4, v2")
    g("v_add_u32 v3, s34, v3")
    g("s_cmp_ge_u32 s3, 136")
    g("s_cbranch_scc1 K_cg")
    g("s_cmp_ge_u32 s3, 128")
    g("s_cbranch_scc1 K_wr")
    srd(g, 4, 30, 131072)
    g("s_and_b32 s34, s3, 15")
    g("s_lshl_b32 s34, s34, 13")
    g("s_lshr_b32 s35, s3, 4")
    g("s_lshl_b32 s35, s35, 6")
    g("s_add_u32 s34, s34, s35")
    g("v_lshrrev_b32 v4, 5, v2")
    g("v_lshlrev_b32 v4, 12, v4")
    g("v_and_b32 v5, 31, v2")
    g("v_lshl_add_u32 v4, v5, 1, v4")
    g("v_add_u32 v4, s34, v4")
    g("s_branch K_wgo")
    g.label("K_wr")
    srd(g, 4, 28, 8192)
    g("s_sub_u32 s34, s3, 128")
    g("s_lshl_b32 s34, s34, 6")
    g("v_bfe_u32 v4, v2, 4, 1")
    g("v_lshlrev_b32 v4, 12, v4")
    g("v_lshrrev_b32 v5, 5, v2")
    g("v_lshl_add_u32 v4, v5, 5, v4")
    g("v_and_b32 v5, 15, v2")
    g("v_lshl_add_u32 v4, v5, 1, v4")
    g("v_add_u32 v4, s34, v4")
    g.label("K_wgo")
    for q in range(8):
        g(f"buffer_load_ushort v{16+q}, v4, s[4:7], 0 offen offset:{q*512}")
    g("s_branch K_wst")
    g.label("K_cg")
    srd(g, 4, 26, 128)
    g("s_sub_u32 s34, s3, 136")
    g("s_lshl_b32 s34, s34, 2")
    g("v_and_b32 v4, 3, v2")
    g("v_lshlrev_b32 v4, 5, v4")
    g("v_add_u32 v4, s34, v4")
    for q in range(8):
        g(f"buffer_load_ushort v{16+q}, v4, s[4:7], 0 offen offset:{(q&3)*8+(q>>2)*2}")
    g.label("K_wst")
    g("s_waitcnt vmcnt(0)")
    for q in range(4):
        g(f"v_lshl_or_b32 v{8+q}, v{17+2*q}, 16, v{16+2*q}")
    g("buffer_store_dwordx4 v[8:11], v3, s[12:15], 0 offen")
    if o.k1pf:
        g("s_branch K_end")
        g.label("K_pf")
        if o.k1tlb:
            g.c("---- touch one line per few KB of x, edge_attr, sh, out (address translation warm-up)")
            g("s_load_dwordx2 s[34:35], s[0:1], 64")
            g("v_lshlrev_b32 v1, 15, v0")
            g("v_lshlrev_b32 v2, 13, v0")
            g("v_lshlrev_b32 v3, 11, v0")
            g("s_waitcnt lgkmcnt(0)")
            srd(g, 4, 16, N * 2048)
            srd(g, 8, 24, E * 32)
            srd(g, 12, 22, E * 8)
            srd(g, 36, 34, N * 2048)
            g("buffer_load_dword v4, v1, s[4:7], 0 offen")
            g("buffer_load_dword v5, v2, s[8:11], 0 offen")
            g("buffer_load_dword v6, v3, s[12:15], 0 offen")
            g("buffer_load_dword v7, v1, s[36:39], 0 offen")
            g("s_waitcnt vmcnt(0)")
        else:
            g.c("---- touch edge_attr, sh and the start of x so that the main kernel finds them in the Infinity Cache")
            g(f"s_sub_u32 s3, s2, {K1_BASE}")
            g("s_mul_i32 s3, s3, 10240")
            g("v_lshlrev_b32 v1, 4, v0")
            g("v_add_u32 v1, s3, v1")
            g("s_waitcnt lgkmcnt(0)")
            step = o.k1pf * 10240
            reg = 4
            for ptr, nb, lim in ((24, E * 32, E * 32), (22, E * 8, E * 8), (16, N * 2048, o.k1pfx)):
                sr = {24: 4, 22: 8, 16: 12}[ptr]
                srd(g, sr, ptr, nb)
                g("v_mov_b32 v2, v1")
                for off in range(0, lim, step):
                    g(f"buffer_load_dwordx4 v[{reg}:{reg+3}], v2, s[{sr}:{sr+3}], 0 offen")
                    g(f"v_add_u32 v2, {step}, v2")
                    reg = 4 + (reg % 40)
            g("s_waitcnt vmcnt(0)")
    g.label("K_end")
    g("s_endpgm")
    return g.L


HEADER = open("/code/" + NAME + ".s.ref").read().split("; Override launch")[0]


def kd(name, vg, sg, acc):
    return f""".section .rodata,"a"
.p2align 6
.amdhsa_kernel {name}
  .amdhsa_next_free_vgpr {vg}
  .amdhsa_next_free_sgpr {sg}
  .amdhsa_accum_offset {acc}
  .amdhsa_group_segment_fixed_size 0
  .amdhsa_kernarg_size 88
  .amdhsa_user_sgpr_count 2
  .amdhsa_user_sgpr_kernarg_segment_ptr 1
  .amdhsa_system_sgpr_workgroup_id_x 1
  .amdhsa_float_denorm_mode_32 3
.end_amdhsa_kernel
"""


def emit(o):
    out = HEADER
    out += f"; @launch kernel=bin_edges_kernel grid=({K1_BASE+o.k1pf},1,1) block=(640,1,1) lds={K1_LDS}\n"
    out += f"; @launch kernel={NAME}_kernel grid=(256,1,1) block=(512,1,1) lds={LDS_BYTES}\n"
    out += "; generated by dev/gen.py\n"
    out += '.amdgcn_target "amdgcn-amd-amdhsa--gfx950"\n.text\n'
    out += f".globl bin_edges_kernel\n.p2align 8\n.type bin_edges_kernel,@function\nbin_edges_kernel:\n"
    out += "\n".join(build_k1(o)) + "\n"
    out += f".globl {NAME}_kernel\n.p2align 8\n.type {NAME}_kernel,@function\n{NAME}_kernel:\n"
    out += "\n".join(build(o)) + "\n"
    out += kd("bin_edges_kernel", 48, 40, 48)
    out += kd(NAME + "_kernel", 256, 102, 160)
    open(o.o, "w").write(out)


if __name__ == "__main__":
    ap = argparse.ArgumentParser()
    ap.add_argument("-o", default="/code/" + NAME + ".s")
    ap.add_argument("--stamps", action="store_true")
    ap.add_argument("--pf", type=int, default=0, help="L2 warm-up loads per wave (256 KB per XCD each)")
    ap.add_argument("--k1pf", type=int, default=0, help="extra K1 workgroups that touch inputs")
    ap.add_argument("--k1pfx", type=int, default=0, help="bytes of x they touch")
    ap.add_argument("--stflag", default="")
    ap.add_argument("--R", type=int, default=4)
    ap.add_argument("--nocomp", action="store_true")
    ap.add_argument("--k1tlb", action="store_true")
    emit(ap.parse_args())
```

```python
import sys, argparse

NAME = "standalone__tensor_product_equiv_mace__graph"
N, E = 10000, 160000

R = 4
RING = 0
REC = 65536
CAP = 1088
META = REC + CAP * 64
CAND = META + CAP * 4
HIST = CAND + 8 * 512
OFF = HIST + 4096
ZERO = OFF + 4096
FLAG = ZERO + 16
LDS_BYTES = 152320
WRIMG = 131072
assert FLAG + 16 <= LDS_BYTES and WRIMG + 8192 <= CAND

sB, sWV = 2, 3
X, SRC, DST, SH, EA, WO, OUT, WR, CG, DBG = 8, 12, 16, 20, 24, 28, 32, 36, 40, 44
sRemain, sIter, sAddr, sLimit, sKskip, sT, sN, sC = 48, 49, 50, 51, 52, 53, 54, 55
sSlot = 56
sBase, sRem, sRing = 61, 62, 63
sMn = 64
sIdx = 68
sOff, sRound, sMore, sCnt, sL, sEnd = 72, 73, 74, 75, 76, 77
sV = [78, 80]
sP0, sP1 = 82, 83
sKey = 84
sCandBase = 100

vLane, vDma0, vDma1, vTr, vRecA, vEa1, vEa2, vInc1, vInc2, vMetaA, vOwner, vStamp, vS0, vE, vS1 = range(1, 16)
ACC = 80
def acc(k, i, w): return ACC + 16 * k + 4 * i + w


class Gen:
    def __init__(self, stamps=False):
        self.L = []
        self.stamps = stamps
        self.nlab = 0

    def __call__(self, s):
        self.L.append("    " + s)

    def label(self, s):
        self.L.append(s + ":")

    def c(self, s):
        self.L.append("    ; " + s)

    def newlab(self, p="L"):
        self.nlab += 1
        return f"{p}_{self.nlab}"

    def nop(self, n):
        while n > 0:
            k = min(n, 16)
            self(f"s_nop {k-1}")
            n -= k

    def stamp(self, i):
        if not self.stamps:
            return
        self(f"s_memrealtime s[4:5]")
        self("s_waitcnt lgkmcnt(0)")
        self(f"v_writelane_b32 v{vStamp}, s4, {i}")


def srd(g, d, ptr, nbytes):
    g(f"s_mov_b32 s{d}, s{ptr}")
    g(f"s_mov_b32 s{d+1}, s{ptr+1}")
    g(f"s_mov_b32 s{d+2}, {nbytes}")
    g(f"s_mov_b32 s{d+3}, 0x00020000")


def v(a, n=1):
    return f"v{a}" if n == 1 else f"v[{a}:{a+n-1}]"


def a_(a, n=1):
    return f"a{a}" if n == 1 else f"a[{a}:{a+n-1}]"


def s(a, n=1):
    return f"s{a}" if n == 1 else f"s[{a}:{a+n-1}]"


def build(stamps=False):
    g = Gen(stamps)
    g(f"s_cmp_ge_u32 s{sB}, 256")
    g("s_cbranch_scc1 L_end")
    g("s_load_dwordx16 s[64:79], s[0:1], 0")
    g("s_load_dwordx4 s[80:83], s[0:1], 64")
    g("s_load_dwordx2 s[84:85], s[0:1], 80")
    g(f"v_and_b32 v{vLane}, 63, v0")
    g(f"v_lshrrev_b32 v16, 6, v0")
    g(f"v_mov_b32 v{vStamp}, 0")
    g(f"v_readfirstlane_b32 s{sWV}, v16")
    g("s_waitcnt lgkmcnt(0)")
    srd(g, X, 64, N * 2048)
    srd(g, SRC, 66, E * 4)
    srd(g, DST, 68, E * 4)
    srd(g, SH, 70, E * 8)
    srd(g, EA, 72, E * 32)
    srd(g, CG, 74, 128)
    srd(g, WR, 76, 8192)
    srd(g, WO, 78, 131072)
    srd(g, OUT, 80, N * 2048)
    srd(g, DBG, 82, 256)
    g.stamp(0)
    g.c("---- weights: DMA w_out image (each wave 8 c-groups x 2 halves) and w_r image")
    g(f"v_bfe_u32 v16, v{vLane}, 2, 2")
    g(f"v_lshlrev_b32 v16, 9, v16")
    g(f"v_lshrrev_b32 v17, 4, v{vLane}")
    g(f"v_lshl_add_u32 v16, v17, 6, v16")
    g(f"v_and_b32 v17, 3, v{vLane}")
    g(f"v_lshl_add_u32 v16, v17, 4, v16")
    g(f"s_lshl_b32 s{sT}, s{sWV}, 14")
    for cgi in range(8):
        for half in range(2):
            g(f"s_add_u32 m0, s{sT}, {cgi*2048 + half*1024}")
            g(f"s_add_u32 s{sN}, s{sT}, {cgi*2048 + half*256}")
            g(f"buffer_load_dwordx4 v16, {s(WO,4)}, s{sN} offen lds")
    g(f"s_lshl_b32 s{sT}, s{sWV}, 10")
    g(f"s_add_u32 m0, s{sT}, {WRIMG}")
    g(f"v_lshlrev_b32 v17, 4, v{vLane}")
    g(f"buffer_load_dwordx4 v17, {s(WR,4)}, s{sT} offen lds")
    g.c("---- zero HIST (4096 B: 512 threads x 8 B), ZERO block, FLAG")
    g("v_mov_b32 v18, 0")
    g("v_mov_b32 v19, 0")
    g(f"v_lshlrev_b32 v20, 3, v0")
    g(f"v_add_u32 v20, {HIST}, v20")
    g("ds_write_b64 v20, v[18:19]")
    g(f"v_and_b32 v20, 3, v{vLane}")
    g(f"v_lshlrev_b32 v20, 3, v20")
    g(f"v_add_u32 v20, {ZERO}, v20")
    g("ds_write_b64 v20, v[18:19]")
    g.c("---- zero accumulators")
    for r in range(ACC, ACC + 80):
        g(f"v_mov_b32 v{r}, 0")
    g.c("---- persistent per-lane constants")
    g(f"v_lshrrev_b32 v16, 4, v{vLane}")
    g(f"v_and_b32 v17, 7, v{vLane}")
    g(f"v_bfe_u32 v18, v{vLane}, 3, 1")
    g(f"v_lshlrev_b32 v18, 9, v18")
    g(f"v_lshl_add_u32 v18, v16, 7, v18")
    g(f"v_lshl_add_u32 v{vDma0}, v17, 4, v18")
    g(f"v_xor_b32 v17, 4, v17")
    g(f"v_lshl_add_u32 v{vDma1}, v17, 4, v18")
    g(f"s_lshl_b32 s{sRing}, s{sWV}, 13")
    g(f"v_bfe_u32 v20, v{vLane}, 2, 2")
    g(f"v_lshrrev_b32 v21, 4, v{vLane}")
    g(f"v_bfe_u32 v22, v{vLane}, 1, 1")
    g(f"v_lshl_add_u32 v22, v21, 1, v22")
    g(f"v_lshrrev_b32 v23, 1, v20")
    g(f"v_lshlrev_b32 v24, 2, v23")
    g(f"v_xor_b32 v22, v22, v24")
    g(f"v_and_b32 v24, 1, v20")
    g(f"v_lshl_add_u32 v22, v24, 3, v22")
    g(f"v_lshlrev_b32 v22, 4, v22")
    g(f"v_lshl_add_u32 v22, v23, 10, v22")
    g(f"v_and_b32 v24, 1, v{vLane}")
    g(f"v_lshl_add_u32 v22, v24, 3, v22")
    g(f"v_add_u32 v{vTr}, s{sRing}, v22")
    g(f"v_lshrrev_b32 v21, 5, v{vLane}")
    g(f"v_mov_b32 v23, 256")
    g(f"v_cmp_eq_u32 vcc, v20, v21")
    g(f"v_add_u32 v21, 2, v21")
    g.nop(1)
    g(f"v_cndmask_b32 v{vInc1}, 0, v23, vcc")
    g(f"v_cmp_eq_u32 vcc, v20, v21")
    g.nop(2)
    g(f"v_cndmask_b32 v{vInc2}, 0, v23, vcc")
    g(f"v_lshlrev_b32 v{vE}, 16, v{vLane}")
    g(f"s_mov_b32 s{sP0}, 0x05040100")
    g(f"s_mov_b32 s{sP1}, 0x07060302")
    g(f"s_mul_i32 s{sL}, s{sWV}, 78")
    g(f"s_add_u32 s{sEnd}, s{sL}, 79")
    g(f"s_cmp_lg_u32 s{sWV}, 0")
    g(f"s_addc_u32 s{sL}, s{sL}, 0")
    g(f"s_mov_b32 s{sKskip}, 0")
    g(f"s_mov_b32 s{sRound}, 0")
    g(f"s_lshl_b32 s{sCandBase}, s{sWV}, 9")
    g(f"s_add_u32 s{sCandBase}, s{sCandBase}, {CAND}")
    g(f"s_add_u32 s{sLimit}, s{sCandBase}, 512")
    g.c("---- weights fragments -> AGPRs")
    g(f"v_lshrrev_b32 v16, 5, v{vLane}")
    g(f"v_lshlrev_b32 v16, 12, v16")
    g(f"v_lshl_add_u32 v16, v20, 6, v16")
    g(f"v_bfe_u32 v17, v{vLane}, 4, 1")
    g(f"v_lshl_add_u32 v16, v17, 5, v16")
    g(f"v_and_b32 v18, 3, v{vLane}")
    g(f"v_lshl_add_u32 v16, v18, 3, v16")
    g(f"s_lshl_b32 s{sT}, s{sWV}, 8")
    g(f"v_add_u32 v16, s{sT}, v16")
    g(f"v_add_u32 v19, 0x10000, v16")
    g(f"v_lshlrev_b32 v21, 12, v17")
    g(f"v_lshl_add_u32 v21, v20, 9, v21")
    g(f"v_lshrrev_b32 v22, 5, v{vLane}")
    g(f"v_lshl_add_u32 v21, v22, 5, v21")
    g(f"v_lshl_add_u32 v21, v18, 3, v21")
    g(f"v_add_u32 v21, {WRIMG}, v21")
    g("s_waitcnt vmcnt(0) lgkmcnt(0)")
    g("s_barrier")
    for ks in range(16):
        for t in range(2):
            base = 16 if ks < 8 else 19
            g(f"ds_read_b64_tr_b16 {a_(4*ks+2*t,2)}, v{base} offset:{(ks%8)*8192 + t*2048}")
        if ks % 4 == 3:
            g("s_waitcnt lgkmcnt(0)")
    for i in range(4):
        for be in range(2):
            for t in range(2):
                g(f"ds_read_b64_tr_b16 {a_(64+8*i+4*be+2*t,2)}, v21 offset:{t*2048 + (64*i+32*be)*2}")
        if i % 2 == 1:
            g("s_waitcnt lgkmcnt(0)")
    g.stamp(1)

    g.label("L_round")
    g.c("================ scan")
    BUF = 16
    g(f"s_mov_b32 s{sAddr}, s{sCandBase}")
    g(f"s_sub_u32 s{sRemain}, s{sEnd}, s{sL}")
    g(f"s_cmp_eq_u32 s{sRemain}, 0")
    g("s_cbranch_scc1 L_scan_done")
    g(f"s_lshl_b32 s{sIter}, s{sL}, 22")
    g(f"s_lshl_b32 s{sT}, s{sL}, 10")
    g(f"v_lshlrev_b32 v{vS0}, 4, v{vLane}")
    g(f"v_add_u32 v{vS0}, s{sT}, v{vS0}")
    g(f"v_add_u32 v{vS1}, 4096, v{vS0}")

    def ld(u):
        g(f"buffer_load_dwordx4 {v(BUF+4*u,4)}, v{vS0 if u < 4 else vS1}, {s(DST,4)}, 0 offen offset:{(u%4)*1024}")
    for u in range(8):
        ld(u)
    g(f"v_add_u32 v{vS0}, 0x2000, v{vS0}")
    g(f"v_add_u32 v{vS1}, 0x2000, v{vS1}")
    g(f"s_cmp_eq_u32 s{sKskip}, 0")
    g("s_cbranch_scc1 L_scanA")
    g("s_waitcnt vmcnt(7)")
    g(f"s_xor_b32 s{sT}, s{sB}, 1")
    g(f"v_mov_b32 v{BUF}, s{sT}")
    g(f"s_cmp_lt_u32 s{sKskip}, 2")
    g("s_cbranch_scc1 L_scanA")
    g(f"v_mov_b32 v{BUF+1}, s{sT}")
    g(f"s_cmp_lt_u32 s{sKskip}, 3")
    g("s_cbranch_scc1 L_scanA")
    g(f"v_mov_b32 v{BUF+2}, s{sT}")
    handlers = []

    def checks(ph, u):
        for k in range(4):
            g(f"v_cmp_eq_u32_sdwa vcc, v{BUF+4*u+k}, s{sB} src0_sel:BYTE_0 src1_sel:DWORD")
            g(f"s_cbranch_vccnz L_h{ph}_{u}_{k}")
            g.label(f"L_r{ph}_{u}_{k}")
            handlers.append((ph, u, k))
    g.label("L_scanA")
    g(f"s_cmp_lt_u32 s{sRemain}, 16")
    g("s_cbranch_scc1 L_scanB")
    for u in range(8):
        g("s_waitcnt vmcnt(7)")
        checks("A", u)
        ld(u)
    g(f"v_add_u32 v{vS0}, 0x2000, v{vS0}")
    g(f"v_add_u32 v{vS1}, 0x2000, v{vS1}")
    g(f"s_add_u32 s{sIter}, s{sIter}, {8<<22}")
    g(f"s_sub_u32 s{sRemain}, s{sRemain}, 8")
    g("s_branch L_scanA")
    g.label("L_scanB")
    for u in range(8):
        g(f"s_cmp_eq_u32 s{sRemain}, 0")
        g("s_cbranch_scc1 L_scan_fin")
        l1 = g.newlab()
        g(f"s_cmp_ge_u32 s{sRemain}, 8")
        g(f"s_cbranch_scc1 {l1}")
        g("s_waitcnt vmcnt(0)")
        g.label(l1)
        g("s_waitcnt vmcnt(7)")
        checks("B", u)
        l2 = g.newlab()
        g(f"s_cmp_le_u32 s{sRemain}, 8")
        g(f"s_cbranch_scc1 {l2}")
        ld(u)
        g.label(l2)
        g(f"s_sub_u32 s{sRemain}, s{sRemain}, 1")
    g(f"s_add_u32 s{sIter}, s{sIter}, {8<<22}")
    g("s_branch L_scanB")
    for ph, u, k in handlers:
        g.label(f"L_h{ph}_{u}_{k}")
        g(f"s_bcnt1_i32_b64 s{sT}, vcc")
        g(f"s_lshl2_add_u32 s{sN}, s{sT}, s{sAddr}")
        g(f"s_cmp_gt_u32 s{sN}, s{sLimit}")
        g(f"s_cbranch_scc1 L_ovf_{u}_{k}")
        g(f"v_mbcnt_lo_u32_b32 v48, vcc_lo, 0")
        g(f"v_mbcnt_hi_u32_b32 v48, vcc_hi, v48")
        g(f"s_add_u32 s{sC}, s{sIter}, {(u*256+k)<<14}")
        g(f"v_lshl_add_u32 v48, v48, 2, s{sAddr}")
        g(f"v_add3_u32 v49, v{BUF+4*u+k}, v{vE}, s{sC}")
        g("s_mov_b64 exec, vcc")
        g("ds_write_b32 v48, v49")
        g("s_mov_b64 exec, -1")
        g(f"s_mov_b32 s{sAddr}, s{sN}")
        g(f"s_branch L_r{ph}_{u}_{k}")
    for u in range(8):
        for k in range(4):
            g.label(f"L_ovf_{u}_{k}")
            g(f"s_movk_i32 s{sT}, {u*4+k}")
            g("s_branch L_ovf")
    g.label("L_ovf")
    g(f"s_lshr_b32 s{sL}, s{sIter}, 22")
    g(f"s_lshr_b32 s{sN}, s{sT}, 2")
    g(f"s_add_u32 s{sL}, s{sL}, s{sN}")
    g(f"s_and_b32 s{sKskip}, s{sT}, 3")
    g("v_mov_b32 v48, 1")
    g(f"v_mov_b32 v49, {FLAG}")
    g("ds_write_b32 v49, v48")
    g("s_branch L_scan_done")
    g.label("L_scan_fin")
    g(f"s_mov_b32 s{sL}, s{sEnd}")
    g(f"s_mov_b32 s{sKskip}, 0")
    g.label("L_scan_done")
    g("s_waitcnt vmcnt(0) lgkmcnt(0)")
    g.stamp(2)

    g.c("================ payload gather + histogram")
    g(f"s_sub_u32 s{sCnt}, s{sAddr}, s{sCandBase}")
    g(f"s_lshr_b32 s{sCnt}, s{sCnt}, 2")
    SET = [16, 40]
    def P(st, name):
        o = {"ea": 0, "apk": 8, "sh": 16, "ent": 18, "src": 19, "key": 20, "rank": 21, "t0": 22, "t1": 23}[name]
        return SET[st] + o
    CGR = 64
    g(f"v_lshlrev_b32 v72, 2, v{vLane}")
    g(f"v_add_u32 v72, s{sCandBase}, v72")
    g(f"ds_read_b32 v{P(0,'ent')}, v72")
    g(f"ds_read_b32 v{P(1,'ent')}, v72 offset:256")
    g(f"v_and_b32 v73, 3, v{vLane}")
    g(f"v_lshlrev_b32 v73, 5, v73")
    g(f"buffer_load_dwordx4 {v(CGR,4)}, v73, {s(CG,4)}, 0 offen")
    g(f"buffer_load_dwordx4 {v(CGR+4,4)}, v73, {s(CG,4)}, 0 offen offset:16")
    g(f"v_cmp_gt_i32 {s(sV[0],2)}, s{sCnt}, v{vLane}")
    g(f"s_sub_u32 s{sT}, s{sCnt}, 64")
    g(f"v_cmp_gt_i32 {s(sV[1],2)}, s{sT}, v{vLane}")
    g("s_waitcnt lgkmcnt(0)")
    for st in range(2):
        g(f"v_lshrrev_b32 v{P(st,'t0')}, 14, v{P(st,'ent')}")
        g(f"v_lshlrev_b32 v{P(st,'t1')}, 2, v{P(st,'t0')}")
        g(f"v_lshlrev_b32 v{P(st,'key')}, 3, v{P(st,'t0')}")
        g(f"v_lshlrev_b32 v{P(st,'t0')}, 5, v{P(st,'t0')}")
    for st in range(2):
        lab = g.newlab()
        g(f"s_mov_b64 exec, {s(sV[st],2)}")
        g(f"s_cbranch_execz {lab}")
        g(f"buffer_load_dword v{P(st,'src')}, v{P(st,'t1')}, {s(SRC,4)}, 0 offen")
        g(f"buffer_load_dwordx2 {v(P(st,'sh'),2)}, v{P(st,'key')}, {s(SH,4)}, 0 offen")
        g(f"buffer_load_dwordx4 {v(P(st,'ea'),4)}, v{P(st,'t0')}, {s(EA,4)}, 0 offen")
        g(f"buffer_load_dwordx4 {v(P(st,'ea')+4,4)}, v{P(st,'t0')}, {s(EA,4)}, 0 offen offset:16")
        g.label(lab)
    g("s_mov_b64 exec, -1")
    g("s_waitcnt vmcnt(0)")
    g("v_mov_b32 v72, 1")
    for st in range(2):
        g(f"v_mul_u32_u24 v{P(st,'t0')}, 6711, v{P(st,'src')}")
        g(f"v_lshrrev_b32 v{P(st,'t0')}, 22, v{P(st,'t0')}")
        g(f"v_min_u32 v{P(st,'t0')}, 15, v{P(st,'t0')}")
        g(f"v_bfe_u32 v{P(st,'t1')}, v{P(st,'ent')}, 8, 6")
        g(f"v_lshlrev_b32 v{P(st,'t0')}, 2, v{P(st,'t0')}")
        g(f"v_lshl_add_u32 v{P(st,'key')}, v{P(st,'t1')}, 6, v{P(st,'t0')}")
        g(f"v_add_u32 v{P(st,'key')}, {HIST}, v{P(st,'key')}")
    for st in range(2):
        g(f"s_mov_b64 exec, {s(sV[st],2)}")
        g(f"ds_add_rtn_u32 v{P(st,'rank')}, v{P(st,'key')}, v72")
    g("s_mov_b64 exec, -1")
    g("s_waitcnt lgkmcnt(0)")
    g("s_barrier")
    g.c("A coefficients via 4x4x4 MFMA: CGW[w] in v72..79")
    for w in range(4):
        p, x = w >> 1, w & 1
        sel = sP1 if x else sP0
        g(f"v_perm_b32 v{72+2*w}, v{CGR+2+p}, v{CGR+p}, s{sel}")
        g(f"v_perm_b32 v{72+2*w+1}, v{CGR+6+p}, v{CGR+4+p}, s{sel}")
    g.nop(2)
    for st in range(2):
        for wp in range(2):
            for x in range(2):
                w = 2 * wp + x
                g(f"v_mfma_f32_4x4x4_16b_bf16 {v(64+4*x,4)}, {v(72+2*w,2)}, {v(P(st,'sh'),2)}, 0")
            g.nop(6)
            for x in range(2):
                w = 2 * wp + x
                g(f"v_cvt_pk_bf16_f32 v{P(st,'apk')+2*w}, v{64+4*x}, v{64+4*x+1}")
                g(f"v_cvt_pk_bf16_f32 v{P(st,'apk')+2*w+1}, v{64+4*x+2}, v{64+4*x+3}")
            g.nop(2)
    g.c("================ degrees, assignment, offsets")
    g(f"v_lshlrev_b32 v{P(0,'t0')}, 6, v{vLane}")
    g(f"v_add_u32 v{P(0,'t0')}, {HIST}, v{P(0,'t0')}")
    g(f"v_mov_b32 v{P(0,'t1')}, {FLAG}")
    for q in range(4):
        g(f"ds_read_b128 {v(64+4*q,4)}, v{P(0,'t0')} offset:{16*q}")
    g(f"ds_read_b32 v{P(0,'t1')}, v{P(0,'t1')}")
    g("s_waitcnt lgkmcnt(0)")
    g(f"v_readfirstlane_b32 s{sMore}, v{P(0,'t1')}")
    for q in range(5):
        g(f"v_add3_u32 v{64+3*q}, v{64+3*q}, v{64+3*q+1}, v{64+3*q+2}")
    g("v_add3_u32 v64, v64, v67, v70")
    g("v_add3_u32 v73, v73, v76, v79")
    vDeg, vKey, vRank = 64, 65, 66
    g(f"v_add_u32 v{vDeg}, v64, v73")
    g(f"s_cmp_lg_u32 s{sRound}, 0")
    g("s_cbranch_scc1 L_assigned")
    g(f"v_sub_u32 v{vKey}, 63, v{vLane}")
    g(f"v_lshl_add_u32 v{vKey}, v{vDeg}, 6, v{vKey}")
    g(f"v_mov_b32 v{vRank}, 0")
    masks = ["vcc", "s[4:5]", "s[6:7]", "s[52:53]"]
    masks = masks[:3]
    for b0 in range(0, 40, 16):
        nb = min(16, 40 - b0)
        for j in range(nb):
            g(f"v_readlane_b32 s{sKey+j}, v{vKey}, {b0+j}")
        g.nop(2)
        j = 0
        while j < nb:
            m = min(3, nb - j)
            for t in range(m):
                g(f"v_cmp_gt_u32 {masks[t]}, s{sKey+j+t}, v{vKey}")
            if m < 3:
                g.nop(3 - m)
            for t in range(m):
                g(f"v_addc_co_u32 v{vRank}, {masks[t]}, 0, v{vRank}, {masks[t]}")
            j += m
    g(f"v_bfe_u32 v67, v{vRank}, 3, 1")
    g(f"v_mul_u32_u24 v67, 7, v67")
    g(f"v_and_b32 v68, 7, v{vRank}")
    g(f"v_xor_b32 v{vOwner}, v67, v68")
    g(f"s_sub_u32 s{sT}, 7, s{sWV}")
    for k in range(5):
        g(f"s_add_u32 s{sN}, s{sT if k & 1 else sWV}, {8*k}")
        g(f"v_cmp_eq_u32 vcc, s{sN}, v{vRank}")
        g(f"s_ff1_i32_b64 s{sSlot+k}, vcc")
    g.label("L_assigned")
    g(f"v_cmp_gt_u32 vcc, s{sWV}, v{vOwner}")
    g(f"v_and_b32 v68, 15, v{vLane}")
    g(f"v_lshlrev_b32 v68, 2, v68")
    g(f"v_cndmask_b32 v67, 0, v{vDeg}, vcc")
    g(f"v_add_u32 v68, {HIST}, v68")
    for k in range(5):
        g(f"s_lshl_b32 s{sKey+k}, s{sSlot+k}, 6")
        g(f"v_add_u32 v{70+k}, s{sKey+k}, v68")
        g(f"ds_read_b32 v{75+k}, v{70+k}")
    for sh_ in (1, 2, 4, 8):
        g.nop(2)
        g(f"v_add_u32_dpp v67, v67, v67 row_shr:{sh_} row_mask:0xf bank_mask:0xf bound_ctrl:1")
    g.nop(1)
    g(f"v_readlane_b32 s{sBase}, v67, 15")
    g(f"v_readlane_b32 s{sT}, v67, 31")
    g(f"v_readlane_b32 s{sN}, v67, 47")
    for k in range(5):
        g(f"v_readlane_b32 s{sKey+8+k}, v{vDeg}, s{sSlot+k}")
    g(f"s_add_u32 s{sBase}, s{sBase}, s{sT}")
    g(f"s_add_u32 s{sBase}, s{sBase}, s{sN}")
    g(f"s_add_u32 s{sBase}, s{sBase}, 3")
    g(f"s_andn2_b32 s{sBase}, s{sBase}, 3")
    g(f"s_lshl2_add_u32 s{sBase}, s{sWV}, s{sBase}")
    g(f"s_add_u32 s{sRem}, s{sKey+8}, s{sKey+9}")
    for k in range(2, 5):
        g(f"s_add_u32 s{sRem}, s{sRem}, s{sKey+8+k}")
    g("s_waitcnt lgkmcnt(0)")
    g("v_add3_u32 v67, v75, v76, v77")
    g("v_add3_u32 v67, v67, v78, v79")
    g("v_mov_b32 v68, v67")
    for sh_ in (1, 2, 4, 8):
        g.nop(2)
        g(f"v_add_u32_dpp v68, v68, v68 row_shr:{sh_} row_mask:0xf bank_mask:0xf bound_ctrl:1")
    g("v_sub_u32 v68, v68, v67")
    g(f"v_add_u32 v68, s{sBase}, v68")
    for k in range(5):
        g(f"v_lshl_add_u32 v69, v68, 3, {k}")
        g(f"ds_write_b32 v{70+k}, v69 offset:{OFF-HIST}")
        if k < 4:
            g(f"v_add_u32 v68, v68, v{75+k}")
            g.nop(1)
    g("s_waitcnt lgkmcnt(0)")
    g("s_barrier")
    g.c("================ placement (+ re-zero HIST/FLAG)")
    for st in range(2):
        g(f"ds_read_b32 v{P(st,'t0')}, v{P(st,'key')} offset:{OFF-HIST}")
    g("v_mov_b32 v64, 0")
    g("v_mov_b32 v65, 0")
    g(f"v_lshlrev_b32 v66, 3, v0")
    g(f"v_add_u32 v66, {HIST}, v66")
    g("ds_write_b64 v66, v[64:65]")
    g(f"v_mov_b32 v66, {FLAG}")
    g("ds_write_b32 v66, v64")
    g("s_waitcnt lgkmcnt(0)")
    for st in range(2):
        g(f"v_lshrrev_b32 v{P(st,'t1')}, 3, v{P(st,'t0')}")
        g(f"v_add_u32 v{P(st,'t1')}, v{P(st,'t1')}, v{P(st,'rank')}")
        g(f"v_and_b32 v{P(st,'t0')}, 7, v{P(st,'t0')}")
        g(f"v_lshl_or_b32 v{P(st,'t0')}, v{P(st,'src')}, 11, v{P(st,'t0')}")
        g(f"v_lshlrev_b32 v{P(st,'key')}, 2, v{P(st,'t1')}")
        g(f"v_add_u32 v{P(st,'key')}, {META}, v{P(st,'key')}")
        g(f"v_lshlrev_b32 v{P(st,'t1')}, 6, v{P(st,'t1')}")
        g(f"v_add_u32 v{P(st,'t1')}, {REC}, v{P(st,'t1')}")
    for st in range(2):
        g(f"s_mov_b64 exec, {s(sV[st],2)}")
        g(f"ds_write_b32 v{P(st,'key')}, v{P(st,'t0')}")
        g(f"ds_write_b128 v{P(st,'t1')}, {v(P(st,'apk'),4)}")
        g(f"ds_write_b128 v{P(st,'t1')}, {v(P(st,'apk')+4,4)} offset:16")
        g(f"ds_write_b128 v{P(st,'t1')}, {v(P(st,'ea'),4)} offset:32")
        g(f"ds_write_b128 v{P(st,'t1')}, {v(P(st,'ea')+4,4)} offset:48")
    g("s_mov_b64 exec, -1")
    g(f"s_lshl_b32 s{sT}, s{sBase}, 6")
    g(f"s_add_u32 s{sT}, s{sT}, {REC}")
    g(f"v_and_b32 v64, 3, v{vLane}")
    g(f"v_lshlrev_b32 v65, 3, v64")
    g(f"v_add_u32 v{vRecA}, s{sT}, v65")
    g(f"v_bfe_u32 v65, v{vLane}, 4, 1")
    g(f"v_lshlrev_b32 v65, 4, v65")
    g(f"v_lshl_add_u32 v65, v64, 6, v65")
    g(f"v_add3_u32 v65, v65, s{sT}, 32")
    g(f"v_mov_b32 v66, {ZERO}")
    g(f"v_cmp_ne_u32 vcc, 0, v{vInc1}")
    g(f"v_cmp_ne_u32 s[4:5], 0, v{vInc2}")
    g.nop(1)
    g(f"v_cndmask_b32 v{vEa1}, v66, v65, vcc")
    g(f"v_cndmask_b32 v{vEa2}, v66, v65, s[4:5]")
    g(f"s_lshl_b32 s{sT}, s{sBase}, 2")
    g(f"s_add_u32 s{sT}, s{sT}, {META}")
    g(f"v_mov_b32 v{vMetaA}, s{sT}")
    g("s_waitcnt lgkmcnt(0)")
    g("s_barrier")
    g.stamp(3)

    g.c("================ sweep")
    RW, D, B, A, EA1, EA2, M4 = 16, 32, 48, 56, 60, 64, 68
    g(f"s_cmp_eq_u32 s{sRem}, 0")
    g("s_cbranch_scc1 L_sweep_done")
    g(f"ds_read_b128 {v(M4,4)}, v{vMetaA}")
    g("s_waitcnt lgkmcnt(0)")
    for r in range(4):
        g(f"v_readfirstlane_b32 s{sMn+r}, v{M4+r}")

    def issue(r):
        g(f"s_add_u32 m0, s{sRing}, {r*2048}")
        g(f"s_andn2_b32 s{sOff}, s{sMn+r}, 7")
        g(f"buffer_load_dwordx4 v{vDma0}, {s(X,4)}, s{sOff} offen lds")
        g(f"buffer_load_dwordx4 v{vDma1}, {s(X,4)}, s{sOff} offen offset:1024 lds")
    for r in range(4):
        if r > 0:
            g(f"s_cmp_le_u32 s{sRem}, {r}")
            g("s_cbranch_scc1 L_group")
        issue(r)
        g(f"s_and_b32 s{sIdx+r}, s{sMn+r}, 7")
    g.label("L_group")
    g(f"ds_read_b128 {v(EA1,4)}, v{vEa1}")
    g(f"ds_read_b128 {v(EA2,4)}, v{vEa2}")
    g(f"ds_read_b128 {v(M4,4)}, v{vMetaA} offset:16")
    g(f"v_add_u32 v{vEa1}, v{vEa1}, v{vInc1}")
    g(f"v_add_u32 v{vEa2}, v{vEa2}, v{vInc2}")
    g(f"v_add_u32 v{vMetaA}, 16, v{vMetaA}")
    g("s_waitcnt lgkmcnt(0)")
    for i in range(4):
        g(f"v_mfma_f32_16x16x32_bf16 {v(RW+4*i,4)}, {v(EA1,4)}, {a_(64+8*i,4)}, 0")
    for i in range(4):
        g(f"v_mfma_f32_16x16x32_bf16 {v(RW+4*i,4)}, {v(EA2,4)}, {a_(64+8*i+4,4)}, {v(RW+4*i,4)}")
    for r in range(4):
        g(f"v_readfirstlane_b32 s{sMn+r}, v{M4+r}")
    for r in range(4):
        g.c(f"-- edge {r}")
        g(f"ds_read_b64 {v(A,2)}, v{vRecA} offset:{r*64}")
        l1 = g.newlab()
        g(f"s_cmp_ge_u32 s{sRem}, {R}")
        g(f"s_cbranch_scc1 {l1}")
        g("s_waitcnt vmcnt(0)")
        g.label(l1)
        g(f"s_waitcnt vmcnt({2*(R-1)})")
        for i in range(4):
            g(f"ds_read_b64_tr_b16 {v(B+2*i,2)}, v{vTr} offset:{r*2048+i*256}")
        g("s_waitcnt lgkmcnt(0)")
        l2 = g.newlab()
        g(f"s_cmp_le_u32 s{sRem}, {R}")
        g(f"s_cbranch_scc1 {l2}")
        issue(r)
        g.label(l2)
        for i in range(4):
            g(f"v_mfma_f32_4x4x4_16b_bf16 {v(D+4*i,4)}, {v(A,2)}, {v(B+2*i,2)}, 0")
        g.nop(2)
        labs = [g.newlab("L_acc") for _ in range(5)]
        join = g.newlab("L_join")
        g(f"s_cmp_ge_u32 s{sIdx+r}, 2")
        g(f"s_cbranch_scc1 {labs[2]}")
        g(f"s_cmp_eq_u32 s{sIdx+r}, 1")
        g(f"s_cbranch_scc1 {labs[1]}")

        def fma(k):
            x = r & 1
            for i in range(4):
                rw = RW + 4 * i + (r & ~1)
                for wp in range(2):
                    g(f"v_pk_fma_f32 {v(acc(k,i,2*wp),2)}, {v(D+4*i+2*wp,2)}, {v(rw,2)}, {v(acc(k,i,2*wp),2)} op_sel:[0,{x},0] op_sel_hi:[1,{x},1]")
        fma(0)
        g(f"s_branch {join}")
        g.label(labs[1])
        fma(1)
        g(f"s_branch {join}")
        g.label(labs[2])
        g(f"s_cmp_eq_u32 s{sIdx+r}, 3")
        g(f"s_cbranch_scc1 {labs[3]}")
        g(f"s_cmp_eq_u32 s{sIdx+r}, 4")
        g(f"s_cbranch_scc1 {labs[4]}")
        fma(2)
        g(f"s_branch {join}")
        g.label(labs[3])
        fma(3)
        g(f"s_branch {join}")
        g.label(labs[4])
        fma(4)
        g.label(join)
        g(f"s_and_b32 s{sIdx+r}, s{sMn+r}, 7")
        g(f"s_sub_u32 s{sRem}, s{sRem}, 1")
        g(f"s_cmp_eq_u32 s{sRem}, 0")
        g("s_cbranch_scc1 L_sweep_done")
    g(f"v_add_u32 v{vRecA}, 256, v{vRecA}")
    g("s_branch L_group")
    g.label("L_sweep_done")
    g(f"s_add_u32 s{sRound}, s{sRound}, 1")
    g(f"s_cmp_lg_u32 s{sMore}, 0")
    g("s_cbranch_scc1 L_round")
    g.stamp(4)

    g.c("================ agg image -> LDS")
    g("s_barrier")
    g.stamp(5)
    g(f"v_mul_u32_u24 v16, 320, v{vLane}")
    g(f"v_lshrrev_b32 v17, 2, v{vLane}")
    g(f"v_lshl_add_u32 v16, v17, 3, v16")
    for k in range(5):
        g(f"s_lshl_b32 s{sT}, s{sSlot+k}, 3")
        g(f"v_add_u32 v{17+k}, s{sT}, v16")
    t = 0
    for k in range(5):
        for i in range(4):
            p = 24 + 2 * (t % 8)
            t += 1
            g(f"v_cvt_pk_bf16_f32 v{p}, v{acc(k,i,0)}, v{acc(k,i,1)}")
            g(f"v_cvt_pk_bf16_f32 v{p+1}, v{acc(k,i,2)}, v{acc(k,i,3)}")
            g(f"ds_write_b64 v{17+k}, {v(p,2)} offset:{i*20608}")
    g(f"v_lshrrev_b32 v40, 5, v{vLane}")
    g(f"v_mul_u32_u24 v41, 2576, v40")
    g(f"v_bfe_u32 v42, v{vLane}, 2, 2")
    g(f"v_mul_u32_u24 v42, 320, v42")
    g(f"v_bfe_u32 v43, v{vLane}, 4, 1")
    g(f"v_lshl_add_u32 v41, v43, 5, v41")
    g(f"v_and_b32 v43, 3, v{vLane}")
    g(f"v_lshl_add_u32 v41, v43, 3, v41")
    vG0, vG1, vO = 2, 3, 4
    g(f"v_add_u32 v{vG0}, v41, v42")
    g(f"v_add_u32 v{vG1}, {8*5152}, v{vG0}")
    g(f"v_bfe_u32 v42, v{vLane}, 2, 3")
    g(f"v_lshlrev_b32 v42, 19, v42")
    g(f"v_lshl_add_u32 v42, v43, 9, v42")
    g(f"v_lshl_add_u32 v42, v40, 4, v42")
    g(f"s_lshl_b32 s{sT}, s{sB}, 11")
    g(f"s_lshl_b32 s{sN}, s{sWV}, 6")
    g(f"s_add_u32 s{sT}, s{sT}, s{sN}")
    g(f"v_add_u32 v{vO}, s{sT}, v42")
    g("s_waitcnt lgkmcnt(0)")
    g("s_barrier")
    g.stamp(6)
    g.c("================ GEMM: out^T tile = W^T (A) x agg^T (B)")
    FB = [16, 32]
    DD = [48, 64]
    PK = [80, 88]
    chunks = [(t, c) for t in range(5) for c in range(4)]

    def rd(n):
        t, c = chunks[n]
        for kk in range(4):
            ks = 4 * c + kk
            base = vG0 if ks < 8 else vG1
            for tt in range(2):
                g(f"ds_read_b64_tr_b16 {v(FB[n%2]+4*kk+2*tt,2)}, v{base} offset:{(ks%8)*5152 + tt*1288 + t*64}")

    def epi(t):
        d = DD[t % 2]
        p = PK[t % 2]
        for q in range(8):
            g(f"v_cvt_pk_bf16_f32 v{p+q}, v{d+2*q}, v{d+2*q+1}")
        g.nop(2)
        g(f"v_permlane32_swap_b32 v{p}, v{p+2}")
        g(f"v_permlane32_swap_b32 v{p+1}, v{p+3}")
        g(f"v_permlane32_swap_b32 v{p+4}, v{p+6}")
        g(f"v_permlane32_swap_b32 v{p+5}, v{p+7}")
        g(f"buffer_store_dwordx4 {v(p,4)}, v{vO}, {s(OUT,4)}, 0 offen")
        g(f"buffer_store_dwordx4 {v(p+4,4)}, v{vO}, {s(OUT,4)}, 0 offen offset:32")
        g(f"v_add_u32 v{vO}, {8<<19}, v{vO}")
    rd(0)
    for n, (t, c) in enumerate(chunks):
        if n + 1 < len(chunks):
            rd(n + 1)
            g("s_waitcnt lgkmcnt(8)")
        else:
            g("s_waitcnt lgkmcnt(0)")
        for kk in range(4):
            ks = 4 * c + kk
            cin = "0" if ks == 0 else v(DD[t % 2], 16)
            g(f"v_mfma_f32_32x32x16_bf16 {v(DD[t%2],16)}, {a_(4*ks,4)}, {v(FB[n%2]+4*kk,4)}, {cin}")
        if c == 0 and t > 0:
            g.nop(8)
            epi(t - 1)
    g.nop(12)
    epi(4)
    if stamps:
        g("s_waitcnt vmcnt(0)")
        g.stamp(7)
        g(f"v_and_b32 v16, 7, v{vLane}")
        g(f"v_lshlrev_b32 v16, 2, v16")
        g(f"ds_bpermute_b32 v17, v16, v{vStamp}")
        g("s_waitcnt lgkmcnt(0)")
        g(f"v_not_b32 v18, v17")
        g(f"v_cmp_gt_u32 vcc, 8, v{vLane}")
        g.nop(2)
        g(f"v_cndmask_b32 v17, v18, v17, vcc")
        g(f"v_lshlrev_b32 v16, 2, v{vLane}")
        g("s_mov_b64 exec, 0xffff")
        g(f"buffer_atomic_umax v17, v16, {s(DBG,4)}, 0 offen sc1")
    g.label("L_end")
    g("s_endpgm")
    return g.L


HEADER = open("/code/" + NAME + ".s.ref").read().split("; @launch")[0]


def emit(path, stamps=False):
    body = build(stamps)
    out = HEADER
    out += f"; @launch grid=(256,1,1) block=(512,1,1) lds={LDS_BYTES}\n"
    out += "; generated by dev/gen.py\n"
    out += '.amdgcn_target "amdgcn-amd-amdhsa--gfx950"\n.text\n'
    out += f".globl {NAME}_kernel\n.p2align 8\n.type {NAME}_kernel,@function\n{NAME}_kernel:\n"
    out += "\n".join(body) + "\n"
    out += f""".section .rodata,"a"
.p2align 6
.amdhsa_kernel {NAME}_kernel
  .amdhsa_next_free_vgpr 256
  .amdhsa_next_free_sgpr 102
  .amdhsa_accum_offset 160
  .amdhsa_group_segment_fixed_size 0
  .amdhsa_kernarg_size 88
  .amdhsa_user_sgpr_count 2
  .amdhsa_user_sgpr_kernarg_segment_ptr 1
  .amdhsa_system_sgpr_workgroup_id_x 1
  .amdhsa_float_denorm_mode_32 3
.end_amdhsa_kernel
"""
    open(path, "w").write(out)


if __name__ == "__main__":
    ap = argparse.ArgumentParser()
    ap.add_argument("-o", default="/code/" + NAME + ".s")
    ap.add_argument("--stamps", action="store_true")
    a = ap.parse_args()
    emit(a.o, a.stamps)
```

```python
import sys, argparse

NAME = "standalone__tensor_product_equiv_mace__graph"
N, E = 10000, 160000

RING = 0
POOLCAP = 1024
PEA = 65536
PSH = PEA + POOLCAP * 32
META = PSH + POOLCAP * 8
HIST = META + (POOLCAP + 64) * 4
DEG = HIST + 60 * 64
POOL = HIST + 59 * 64
OFF = HIST + 4096
ZERO = OFF + 4096
FLAG = ZERO + 16
STG = 82432
LDS_BYTES = 124160
assert FLAG + 16 <= LDS_BYTES and META % 16 == 0 and HIST % 16 == 0 and STG + 8 * 5120 <= LDS_BYTES
WS_CELLS = 0
WS_WF = 256 * 64 * 128
WS_WRF = WS_WF + 131072
WS_CGF = WS_WRF + 8192
WS_STAMP = 4 << 20
WS_BYTES = 8 << 20

sB, sWV = 2, 3
X, SRC, DST, SH, EA, OUT, WS = 8, 12, 16, 20, 24, 28, 32
sM = [36, 38, 40, 42]
sPB, sQ, sDm, sNomatch = 44, 45, 46, 47
sKskip, sT, sN, sC = 52, 53, 54, 55
sSlot = 56
sBase, sRem, sRing = 61, 62, 63
sMa, sMb = 64, 68
sOff, sRound, sMore, sCnt, sL, sMask = 76, 77, 78, 79, 80, 82
sKey = 84
sAddr, sLimit = 64, 65

vLane, vDma0, vDma1, vTr, vEa1, vEa2, vMul1, vMul2, vSh, vMulS, vOwner, vStamp, vMetaA = range(1, 14)
ACC = 80
def acc(k, i, w): return ACC + 16 * k + 4 * i + w
aWR, aCG, aW = 0, 32, 32


class Gen:
    def __init__(self, stamps=False):
        self.L = []
        self.stamps = stamps
        self.nlab = 0

    def __call__(self, s):
        self.L.append("    " + s)

    def label(self, s):
        self.L.append(s + ":")

    def c(self, s):
        self.L.append("    ; " + s)

    def newlab(self, p="L"):
        self.nlab += 1
        return f"{p}_{self.nlab}"

    def nop(self, n):
        while n > 0:
            k = min(n, 16)
            self(f"s_nop {k-1}")
            n -= k

    def cstamp(self, i):
        if not self.stamps:
            return
        self(f"s_memtime s[4:5]")
        self("s_waitcnt lgkmcnt(0)")
        self(f"v_writelane_b32 v{vStamp}, s4, {i}")

    def stamp(self, i):
        if not self.stamps:
            return
        self(f"s_memrealtime s[4:5]")
        self("s_waitcnt lgkmcnt(0)")
        self(f"v_writelane_b32 v{vStamp}, s4, {i}")


def srd(g, d, ptr, nbytes):
    g(f"s_mov_b32 s{d}, s{ptr}")
    g(f"s_mov_b32 s{d+1}, s{ptr+1}")
    g(f"s_mov_b32 s{d+2}, {nbytes}")
    g(f"s_mov_b32 s{d+3}, 0x00020000")


def v(a, n=1):
    return f"v{a}" if n == 1 else f"v[{a}:{a+n-1}]"


def a_(a, n=1):
    return f"a{a}" if n == 1 else f"a[{a}:{a+n-1}]"


def s(a, n=1):
    return f"s{a}" if n == 1 else f"s[{a}:{a+n-1}]"


def build(o):
    g = Gen(o.stamps)
    R = o.R
    cM, cE, cX, cK, cR = 16, 20, 24, 28, 32
    vL2, vP16, vP4, vCand = 36, 37, 38, 39
    g(f"s_cmp_ge_u32 s{sB}, 256")
    g("s_cbranch_scc1 L_end")
    g("s_load_dwordx2 s[84:85], s[0:1], 80")
    g("s_load_dwordx16 s[64:79], s[0:1], 0")
    g("s_load_dwordx2 s[80:81], s[0:1], 64")
    g(f"v_and_b32 v{vLane}, 63, v0")
    g(f"v_lshrrev_b32 v60, 6, v0")
    g(f"v_mov_b32 v{vStamp}, 0")
    g(f"v_readfirstlane_b32 s{sWV}, v60")
    g(f"s_lshl_b32 s{sT}, s{sB}, 13")
    g(f"v_lshlrev_b32 v60, 4, v0")
    g(f"v_add_u32 v60, s{sT}, v60")
    g(f"v_lshlrev_b32 v64, 4, v{vLane}")
    g(f"v_add_u32 v61, {WS_WRF}, v64")
    g(f"v_add_u32 v62, {WS_WRF+4096}, v64")
    g(f"v_lshlrev_b32 v63, 3, v{vLane}")
    g(f"v_add_u32 v63, {WS_CGF}, v63")
    g("s_waitcnt lgkmcnt(0)")
    srd(g, WS, 84, WS_BYTES)
    g(f"buffer_load_dwordx4 {v(cM,4)}, v60, {s(WS,4)}, 0 offen")
    srd(g, X, 64, N * 2048)
    srd(g, SRC, 66, E * 4)
    srd(g, DST, 68, E * 4)
    srd(g, SH, 70, E * 8)
    srd(g, EA, 72, E * 32)
    srd(g, OUT, 80, N * 2048)
    for f in range(8):
        g(f"buffer_load_dwordx4 {a_(aWR+4*f,4)}, v{61 if f < 4 else 62}, {s(WS,4)}, 0 offen offset:{(f%4)*1024}")
    g(f"buffer_load_dwordx2 {a_(aCG,2)}, v63, {s(WS,4)}, 0 offen")
    nvm = 9
    g.stamp(0)
    g.c("---- zero HIST (4096 B: 512 threads x 8 B), ZERO block, FLAG")
    g("v_mov_b32 v68, 0")
    g("v_mov_b32 v69, 0")
    g(f"v_lshlrev_b32 v60, 3, v0")
    g(f"v_add_u32 v60, {HIST}, v60")
    g("ds_write_b64 v60, v[68:69]")
    g(f"v_and_b32 v60, 3, v{vLane}")
    g(f"v_lshlrev_b32 v60, 3, v60")
    g(f"v_add_u32 v60, {ZERO}, v60")
    g("ds_write_b64 v60, v[68:69]")
    g(f"s_lshl_b32 s{sRing}, s{sWV}, 13")
    g(f"s_mov_b32 s{sKskip}, 0")
    g(f"s_mov_b32 s{sRound}, 0")
    g(f"s_mov_b32 s{sMask}, 0x3fff00")
    g("s_waitcnt lgkmcnt(0)")
    g("s_barrier")
    g.c("---- persistent per-lane constants")
    g(f"v_lshrrev_b32 v66, 4, v{vLane}")
    g(f"v_and_b32 v61, 7, v{vLane}")
    g(f"v_bfe_u32 v65, v{vLane}, 3, 1")
    g(f"v_lshlrev_b32 v65, 9, v65")
    g(f"v_lshl_add_u32 v65, v66, 7, v65")
    g(f"v_lshl_add_u32 v{vDma0}, v61, 4, v65")
    g(f"v_xor_b32 v61, 4, v61")
    g(f"v_lshl_add_u32 v{vDma1}, v61, 4, v65")
    g(f"v_bfe_u32 v60, v{vLane}, 2, 2")
    g(f"v_bfe_u32 v62, v{vLane}, 1, 1")
    g(f"v_lshl_add_u32 v62, v66, 1, v62")
    g(f"v_lshrrev_b32 v63, 1, v60")
    g(f"v_lshlrev_b32 v64, 2, v63")
    g(f"v_xor_b32 v62, v62, v64")
    g(f"v_and_b32 v64, 1, v60")
    g(f"v_lshl_add_u32 v62, v64, 3, v62")
    g(f"v_lshlrev_b32 v62, 4, v62")
    g(f"v_lshl_add_u32 v62, v63, 10, v62")
    g(f"v_and_b32 v64, 1, v{vLane}")
    g(f"v_lshl_add_u32 v62, v64, 3, v62")
    g(f"v_add_u32 v{vTr}, s{sRing}, v62")
    g(f"v_lshrrev_b32 v61, 5, v{vLane}")
    g(f"v_mov_b32 v63, 32")
    g(f"v_cmp_eq_u32 vcc, v60, v61")
    g(f"v_add_u32 v61, 2, v61")
    g(f"v_and_b32 v64, 3, v{vLane}")
    g(f"v_cndmask_b32 v{vMul1}, 0, v63, vcc")
    g(f"v_cmp_eq_u32 vcc, v60, v61")
    g(f"v_cmp_eq_u32 s[4:5], v64, v66")
    g(f"v_mov_b32 v65, 8")
    g(f"v_cndmask_b32 v{vMul2}, 0, v63, vcc")
    g(f"v_cndmask_b32 v{vMulS}, 0, v65, s[4:5]")
    g(f"v_lshrrev_b32 v67, 3, v0")
    g(f"v_mul_u32_u24 v67, 2500, v67")
    g(f"v_mov_b32 v69, {POOL}")
    for r in range(ACC, ACC + 80, 2):
        g(f"v_mov_b64 {v(r,2)}, 0")
    g.c("================ front end: decode the cells")
    g(f"s_waitcnt vmcnt({nvm})")
    g.stamp(1)
    for k in range(4):
        g(f"v_cmp_gt_u32 {s(sM[k],2)}, -2, v{cM+k}")
    g(f"v_cmp_eq_u32 vcc, -2, v{cM+3}")
    g(f"s_bcnt1_i32_b64 s{sCnt}, {s(sM[0],2)}")
    for k in range(1, 4):
        g(f"s_bcnt1_i32_b64 s{sT}, {s(sM[k],2)}")
        g(f"s_add_u32 s{sCnt}, s{sCnt}, s{sT}")
    g(f"v_mov_b32 v70, s{sCnt}")
    g("s_mov_b64 exec, 1")
    g("ds_add_rtn_u32 v70, v69, v70")
    g("s_mov_b64 exec, -1")
    g("v_mov_b32 v56, 0")
    for k in range(4):
        g(f"v_mbcnt_lo_u32_b32 v56, s{sM[k]}, v56")
        g(f"v_mbcnt_hi_u32_b32 v56, s{sM[k]+1}, v56")
    g(f"s_add_u32 s{sT}, s{sRing}, 4096")
    g(f"v_lshl_add_u32 v58, v56, 2, s{sT}")
    for k in range(4):
        g(f"v_lshrrev_b32 v{cE+k}, 20, v{cM+k}")
        g(f"v_add_u32 v{cE+k}, v{cE+k}, v67")
        g(f"s_mov_b64 exec, {s(sM[k],2)}")
        g(f"ds_write_b32 v58, v{cE+k} offset:{4*k}")
        g("s_mov_b64 exec, -1")
    for k in range(4):
        g(f"v_lshlrev_b32 v{cX+k}, 2, v{cM+k}")
        g(f"v_and_b32 v{cX+k}, s{sMask}, v{cX+k}")
        g(f"v_and_b32 v{cM+k}, 63, v{cM+k}")
    g(f"s_mov_b32 s{sL}, 79")
    g("s_waitcnt lgkmcnt(0)")
    g(f"v_readfirstlane_b32 s{sPB}, v70")
    g("s_cbranch_vccnz L_defer")
    g(f"s_add_u32 s{sT}, s{sPB}, s{sCnt}")
    g(f"s_cmp_gt_u32 s{sT}, {POOLCAP}")
    g("s_cbranch_scc1 L_defer")
    g(f"v_add_u32 v56, s{sPB}, v56")
    for k in range(4):
        g(f"v_lshl_or_b32 v{cX+k}, v56, 22, v{cX+k}")
        if k < 3:
            g(f"v_add_u32 v56, 1, v56")
    g("s_branch L_have")
    g.label("L_defer")
    g.c("this wave's cells overflowed (or the pool is full): rescan its edge range in later rounds")
    g(f"s_mov_b32 s{sL}, 0")
    g(f"s_mov_b32 s{sCnt}, 0")
    g(f"s_mov_b32 s{sPB}, 0")
    for k in range(4):
        g(f"s_mov_b64 {s(sM[k],2)}, 0")
    g("v_mov_b32 v58, 1")
    g(f"v_mov_b32 v59, {FLAG}")
    g("ds_write_b32 v59, v58")
    g("s_branch L_have")

    g.label("L_scan")
    g.c("================ fallback scan of this wave's 20000 dst entries (rare path)")
    g("s_barrier")
    BUF = 60
    g(f"s_mov_b32 s{sAddr}, s{sRing}")
    g(f"s_add_u32 s{sLimit}, s{sRing}, {128*8}")
    g(f"s_xor_b32 s{sNomatch}, s{sB}, 1")
    g.label("L_sloop")
    g(f"s_cmp_ge_u32 s{sL}, 79")
    g("s_cbranch_scc1 L_scan_done")
    g(f"s_mul_i32 s{sT}, s{sWV}, 20000")
    g(f"s_lshl_b32 s{sN}, s{sL}, 8")
    g(f"s_add_u32 s{sC}, s{sT}, s{sN}")
    g(f"v_lshlrev_b32 v56, 2, v{vLane}")
    g(f"v_add_u32 v56, s{sC}, v56")
    g(f"v_lshlrev_b32 v57, 2, v56")
    g(f"buffer_load_dwordx4 {v(BUF,4)}, v57, {s(DST,4)}, 0 offen")
    g("s_waitcnt vmcnt(0)")
    g(f"s_cmp_lg_u32 s{sL}, 78")
    g("s_cbranch_scc1 L_snotlast")
    g(f"s_mov_b32 exec_lo, 0xffffff00")
    for k in range(4):
        g(f"v_mov_b32 v{BUF+k}, s{sNomatch}")
    g("s_mov_b64 exec, -1")
    g.label("L_snotlast")
    for k in range(4):
        lab = g.newlab()
        g(f"s_cmp_gt_u32 s{sKskip}, {k}")
        g(f"s_cbranch_scc1 {lab}")
        g(f"v_cmp_eq_u32_sdwa vcc, v{BUF+k}, s{sB} src0_sel:BYTE_0 src1_sel:DWORD")
        g(f"s_cbranch_vccz {lab}")
        g(f"s_bcnt1_i32_b64 s{sT}, vcc")
        g(f"s_lshl3_add_u32 s{sN}, s{sT}, s{sAddr}")
        g(f"s_mov_b32 s{sKskip}, {k}")
        g(f"s_cmp_gt_u32 s{sN}, s{sLimit}")
        g(f"s_cbranch_scc1 L_ovf")
        g(f"v_mbcnt_lo_u32_b32 v58, vcc_lo, 0")
        g(f"v_mbcnt_hi_u32_b32 v58, vcc_hi, v58")
        g(f"v_lshl_add_u32 v58, v58, 3, s{sAddr}")
        g(f"v_add_u32 v59, {k}, v56")
        g("s_mov_b64 exec, vcc")
        g(f"ds_write2_b32 v58, v{BUF+k}, v59 offset0:0 offset1:1")
        g("s_mov_b64 exec, -1")
        g(f"s_mov_b32 s{sAddr}, s{sN}")
        g.label(lab)
    g(f"s_mov_b32 s{sKskip}, 0")
    g(f"s_add_u32 s{sL}, s{sL}, 1")
    g("s_branch L_sloop")
    g.label("L_ovf")
    g("v_mov_b32 v58, 1")
    g(f"v_mov_b32 v59, {FLAG}")
    g("ds_write_b32 v59, v58")
    g.label("L_scan_done")
    g(f"s_sub_u32 s{sCnt}, s{sAddr}, s{sRing}")
    g(f"s_lshr_b32 s{sCnt}, s{sCnt}, 3")
    g(f"s_lshl_b32 s{sPB}, s{sWV}, 7")
    g(f"v_lshlrev_b32 v58, 3, v{vLane}")
    g(f"v_add_u32 v58, s{sRing}, v58")
    g("s_waitcnt lgkmcnt(0)")
    for k in range(2):
        g(f"ds_read_b32 v{cM+k}, v58 offset:{512*k}")
        g(f"ds_read_b32 v{cE+k}, v58 offset:{512*k+4}")
        g(f"s_sub_u32 s{sT}, s{sCnt}, {64*k}")
        g(f"v_cmp_gt_i32 {s(sM[k],2)}, s{sT}, v{vLane}")
    for k in range(2, 4):
        g(f"s_mov_b64 {s(sM[k],2)}, 0")
        g(f"v_mov_b32 v{cM+k}, 0")
        g(f"v_mov_b32 v{cX+k}, 0")
    g(f"v_lshl_add_u32 v58, v{vLane}, 2, s{sRing}")
    g(f"v_add_u32 v59, s{sPB}, v{vLane}")
    g(f"v_lshlrev_b32 v59, 22, v59")
    g("s_waitcnt lgkmcnt(0)")
    for k in range(2):
        g(f"v_lshlrev_b32 v{cK+k}, 2, v{cE+k}")
        g(f"buffer_load_dword v{cX+k}, v{cK+k}, {s(SRC,4)}, 0 offen")
        g(f"v_bfe_u32 v{cM+k}, v{cM+k}, 8, 6")
        g(f"v_min_u32 v{cM+k}, 47, v{cM+k}")
        g(f"ds_write_b32 v58, v{cE+k} offset:{4096+256*k}")
    g("s_waitcnt vmcnt(0)")
    for k in range(2):
        g(f"v_and_b32 v{cX+k}, 0x3fff, v{cX+k}")
        g(f"v_lshl_or_b32 v{cX+k}, v{cX+k}, 8, v59")
        g(f"v_add_u32 v59, {64<<22}, v59")
    g.label("L_have")
    g.c("================ histogram over (slot, src bin); payload DMA set-up")
    g("v_mov_b32 v58, 1")
    g(f"s_mov_b32 s{sT}, {HIST}")
    g(f"s_mov_b32 s{sN}, {DEG}")
    for k in range(4):
        g(f"v_bfe_u32 v{cK+k}, v{cX+k}, 8, 14")
        g(f"v_mul_u32_u24 v{cK+k}, 6711, v{cK+k}")
        g(f"v_lshrrev_b32 v{cK+k}, 22, v{cK+k}")
        g(f"v_min_u32 v{cK+k}, 15, v{cK+k}")
        g(f"v_lshl_add_u32 v{cK+k}, v{cK+k}, 2, s{sT}")
        g(f"v_lshl_add_u32 v{cK+k}, v{cM+k}, 6, v{cK+k}")
        g(f"v_lshl_add_u32 v{cM+k}, v{cM+k}, 2, s{sN}")
        g(f"s_mov_b64 exec, {s(sM[k],2)}")
        g(f"ds_add_rtn_u32 v{cR+k}, v{cK+k}, v58")
        g(f"ds_add_u32 v{cM+k}, v58")
        g("s_mov_b64 exec, -1")
    g(f"v_lshrrev_b32 v{vL2}, 1, v{vLane}")
    g(f"s_add_u32 s{sT}, s{sRing}, 4096")
    g(f"v_lshl_add_u32 v{vCand}, v{vL2}, 2, s{sT}")
    EI = 40
    for q in range(4):
        g(f"ds_read_b32 v{EI+q}, v{vCand} offset:{128*q}")
    g(f"v_and_b32 v{vP4}, 1, v{vLane}")
    g(f"v_lshlrev_b32 v{vP16}, 4, v{vP4}")
    g(f"v_lshlrev_b32 v{vP4}, 2, v{vP4}")
    g(f"s_mov_b32 s{sDm}, s{sCnt}")
    g(f"s_mov_b32 s{sQ}, s{sPB}")
    g(f"v_lshl_add_u32 v56, v{vLane}, 2, s{sN}")
    g(f"v_mov_b32 v57, {FLAG}")
    g("s_waitcnt lgkmcnt(0)")

    def pay(q):
        lab = g.newlab()
        g(f"s_cmp_le_i32 s{sDm}, 0")
        g(f"s_cbranch_scc1 {lab}")
        g(f"v_lshl_add_u32 v44, v{EI+q}, 5, v{vP16}")
        g(f"v_lshl_add_u32 v45, v{EI+q}, 3, v{vP4}")
        g(f"v_cmp_gt_i32 vcc, s{sDm}, v{vL2}")
        g(f"s_lshl_b32 s{sOff}, s{sQ}, 5")
        g(f"s_add_u32 m0, s{sOff}, {PEA}")
        g("s_mov_b64 exec, vcc")
        g(f"buffer_load_dwordx4 v44, {s(EA,4)}, 0 offen lds")
        g(f"s_lshl3_add_u32 m0, s{sQ}, {PSH}")
        g(f"s_add_u32 s{sQ}, s{sQ}, 32")
        g(f"buffer_load_dword v45, {s(SH,4)}, 0 offen lds")
        g("s_mov_b64 exec, -1")
        g(f"s_sub_i32 s{sDm}, s{sDm}, 32")
        g.label(lab)
    sched = [int(x) for x in o.pay.split(",")]
    def stage(st):
        for q in range(4):
            if sched[q] == st:
                pay(q)
    stage(0)
    g("s_barrier")
    g.stamp(2)
    g.c("================ degrees, assignment, offsets")
    vDeg, vKey, vRank = 56, 57, 59
    g(f"ds_read_b32 v{vDeg}, v56")
    g(f"ds_read_b32 v57, v57")
    stage(1)
    g("s_waitcnt lgkmcnt(0)")
    g(f"v_readfirstlane_b32 s{sMore}, v57")
    g(f"s_cmp_lg_u32 s{sRound}, 0")
    g("s_cbranch_scc1 L_assigned")
    g(f"v_sub_u32 v{vKey}, 63, v{vLane}")
    g(f"v_lshl_add_u32 v{vKey}, v{vDeg}, 6, v{vKey}")
    g(f"v_mov_b32 v{vRank}, 0")
    masks = ["vcc", "s[4:5]", "s[6:7]"]
    for b0 in range(0, 40, 16):
        nb = min(16, 40 - b0)
        for j in range(nb):
            g(f"v_readlane_b32 s{sKey+j}, v{vKey}, {b0+j}")
        j = 0
        while j < nb:
            m = min(3, nb - j)
            for t in range(m):
                g(f"v_cmp_gt_u32 {masks[t]}, s{sKey+j+t}, v{vKey}")
            if m < 3:
                g.nop(3 - m)
            for t in range(m):
                g(f"v_addc_co_u32 v{vRank}, {masks[t]}, 0, v{vRank}, {masks[t]}")
            j += m
    g(f"v_bfe_u32 v60, v{vRank}, 3, 1")
    g(f"v_mul_u32_u24 v60, 7, v60")
    g(f"v_and_b32 v61, 7, v{vRank}")
    g(f"v_xor_b32 v{vOwner}, v60, v61")
    g(f"s_sub_u32 s{sT}, 7, s{sWV}")
    for k in range(5):
        g(f"s_add_u32 s{sN}, s{sT if k & 1 else sWV}, {8*k}")
        g(f"v_cmp_eq_u32 vcc, s{sN}, v{vRank}")
        g(f"s_ff1_i32_b64 s{sSlot+k}, vcc")
    g.label("L_assigned")
    g(f"v_cmp_gt_u32 vcc, s{sWV}, v{vOwner}")
    g(f"v_and_b32 v61, 15, v{vLane}")
    g(f"v_lshlrev_b32 v61, 2, v61")
    g(f"v_cndmask_b32 v60, 0, v{vDeg}, vcc")
    g(f"v_add_u32 v61, {HIST}, v61")
    AD, CN = 64, 70
    for k in range(5):
        g(f"s_lshl_b32 s{sKey+k}, s{sSlot+k}, 6")
        g(f"v_add_u32 v{AD+k}, s{sKey+k}, v61")
        g(f"ds_read_b32 v{CN+k}, v{AD+k}")
    for n_, sh_ in enumerate((1, 2, 4, 8)):
        g(f"v_add_u32_dpp v60, v60, v60 row_shr:{sh_} row_mask:0xf bank_mask:0xf bound_ctrl:1")
        g(f"v_readlane_b32 s{sKey+8+n_}, v{vDeg}, s{sSlot+n_}")
        g.nop(1)
    g(f"v_readlane_b32 s{sKey+12}, v{vDeg}, s{sSlot+4}")
    g(f"v_readlane_b32 s{sBase}, v60, 15")
    g(f"v_readlane_b32 s{sT}, v60, 31")
    g(f"v_readlane_b32 s{sN}, v60, 47")
    g(f"s_add_u32 s{sRem}, s{sKey+8}, s{sKey+9}")
    for k in range(2, 5):
        g(f"s_add_u32 s{sRem}, s{sRem}, s{sKey+8+k}")
    g(f"s_add_u32 s{sBase}, s{sBase}, s{sT}")
    g(f"s_add_u32 s{sBase}, s{sBase}, s{sN}")
    g(f"s_add_u32 s{sBase}, s{sBase}, 3")
    g(f"s_andn2_b32 s{sBase}, s{sBase}, 3")
    g(f"s_lshl2_add_u32 s{sBase}, s{sWV}, s{sBase}")
    g("s_waitcnt lgkmcnt(0)")
    g(f"v_add3_u32 v60, v{CN}, v{CN+1}, v{CN+2}")
    g(f"v_add3_u32 v60, v60, v{CN+3}, v{CN+4}")
    g("v_mov_b32 v61, v60")
    for sh_ in (1, 2, 4, 8):
        g.nop(2)
        g(f"v_add_u32_dpp v61, v61, v61 row_shr:{sh_} row_mask:0xf bank_mask:0xf bound_ctrl:1")
    g("v_sub_u32 v61, v61, v60")
    g(f"v_add_u32 v61, s{sBase}, v61")
    for k in range(5):
        g(f"v_lshl_add_u32 v{75+k}, v61, 8, {16*k}")
        g(f"ds_write_b32 v{AD+k}, v{75+k} offset:{OFF-HIST}")
        if k < 4:
            g(f"v_add_u32 v61, v61, v{CN+k}")
    stage(2)
    g("s_waitcnt lgkmcnt(0)")
    g("s_barrier")
    g.stamp(8)
    g.c("================ placement of (pool index | src | acc offset); re-zero HIST/FLAG")
    for k in range(4):
        g(f"ds_read_b32 v{cM+k}, v{cK+k} offset:{OFF-HIST}")
    g("v_mov_b32 v60, 0")
    g("v_mov_b32 v61, 0")
    g(f"v_lshlrev_b32 v64, 3, v0")
    g(f"v_add_u32 v64, {HIST}, v64")
    g("ds_write_b64 v64, v[60:61]")
    g(f"v_mov_b32 v64, {FLAG}")
    g("ds_write_b32 v64, v60")
    g(f"s_mov_b32 s{sT}, {META}")
    g(f"s_movk_i32 s{sN}, 255")
    g("s_waitcnt lgkmcnt(2)")
    for k in range(4):
        g(f"v_lshrrev_b32 v{cK+k}, 8, v{cM+k}")
        g(f"v_add_u32 v{cK+k}, v{cK+k}, v{cR+k}")
        g(f"v_and_or_b32 v{cM+k}, v{cM+k}, s{sN}, v{cX+k}")
        g(f"v_lshl_add_u32 v{cK+k}, v{cK+k}, 2, s{sT}")
        g(f"s_mov_b64 exec, {s(sM[k],2)}")
        g(f"ds_write_b32 v{cK+k}, v{cM+k}")
        g("s_mov_b64 exec, -1")
    stage(3)
    g.c("lists longer than 128 candidates (rare): fetch the rest")
    g.label("L_paymore")
    g(f"s_cmp_le_i32 s{sDm}, 0")
    g("s_cbranch_scc1 L_paydone")
    g(f"ds_read_b32 v{EI}, v{vCand} offset:512")
    g(f"v_add_u32 v{vCand}, 128, v{vCand}")
    g("s_waitcnt lgkmcnt(0)")
    pay(0)
    g("s_branch L_paymore")
    g.label("L_paydone")
    RW, D, B, EA1, EA2, AC, M4, I1, I2, SHO = 16, 32, 48, 56, 60, 64, 68, 72, 73, 14
    vB1, vB2, vBS, vM1, vM2 = 74, 75, 76, 77, 78
    g(f"s_lshl_b32 s{sBase}, s{sBase}, 2")
    g(f"s_add_u32 s{sBase}, s{sBase}, {META}")
    g(f"v_mov_b32 v{vMetaA}, s{sBase}")
    g(f"v_and_b32 v62, 3, v{vLane}")
    g(f"v_lshl_add_u32 v{vM1}, v62, 2, s{sBase}")
    g(f"v_bfe_u32 v62, v{vLane}, 2, 2")
    g(f"v_lshl_add_u32 v{vM2}, v62, 2, s{sBase}")
    g(f"v_bfe_u32 v63, v{vLane}, 4, 1")
    g(f"v_lshlrev_b32 v63, 4, v63")
    g(f"v_add_u32 v63, {PEA}, v63")
    g(f"v_mov_b32 v65, {PSH}")
    g(f"v_mov_b32 v62, {ZERO}")
    g(f"v_cmp_ne_u32 vcc, 0, v{vMul1}")
    g(f"v_cmp_ne_u32 s[4:5], 0, v{vMul2}")
    g(f"v_cmp_ne_u32 s[6:7], 0, v{vMulS}")
    g(f"v_cndmask_b32 v{vB1}, v62, v63, vcc")
    g(f"v_cndmask_b32 v{vB2}, v62, v63, s[4:5]")
    g(f"v_cndmask_b32 v{vBS}, v62, v65, s[6:7]")
    g("s_waitcnt lgkmcnt(0)")
    g("s_barrier")
    g.stamp(3)

    def issue(sm, r):
        g(f"s_and_b32 s{sOff}, s{sm+r}, s{sMask}")
        g(f"s_add_u32 m0, s{sRing}, {r*2048}")
        g(f"s_lshl_b32 s{sOff}, s{sOff}, 3")
        g(f"buffer_load_dwordx4 v{vDma0}, {s(X,4)}, s{sOff} offen lds")
        g(f"buffer_load_dwordx4 v{vDma1}, {s(X,4)}, s{sOff} offen offset:1024 lds")

    def opaddr():
        g(f"v_lshrrev_b32 v{I1}, 22, v{I1}")
        g(f"v_lshrrev_b32 v{I2}, 22, v{I2}")
        g(f"v_mad_u32_u24 v{vEa1}, v{I1}, v{vMul1}, v{vB1}")
        g(f"v_mad_u32_u24 v{vEa2}, v{I1}, v{vMul2}, v{vB2}")
        g(f"v_mad_u32_u24 v{vSh}, v{I2}, v{vMulS}, v{vBS}")

    g.c("================ first rows, then wait for everybody's payload")
    g(f"ds_read_b128 {v(M4,4)}, v{vMetaA}")
    g(f"ds_read_b32 v{I1}, v{vM1}")
    g(f"ds_read_b32 v{I2}, v{vM2}")
    g(f"s_cmp_lt_u32 s{sRem}, {R}")
    g("s_cbranch_scc1 L_short")
    g("s_waitcnt lgkmcnt(2)")
    for r in range(4):
        g(f"v_readfirstlane_b32 s{sMa+r}, v{M4+r}")
    for r in range(R):
        issue(sMa, r)
    g(f"s_waitcnt vmcnt({2*R})")
    g("s_branch L_go")
    g.label("L_short")
    g("s_waitcnt vmcnt(0) lgkmcnt(0)")
    for r in range(4):
        g(f"v_readfirstlane_b32 s{sMa+r}, v{M4+r}")
    for r in range(R - 1):
        g(f"s_cmp_le_u32 s{sRem}, {r}")
        g("s_cbranch_scc1 L_go")
        issue(sMa, r)
    g.label("L_go")
    g("s_waitcnt lgkmcnt(0)")
    opaddr()
    g("s_barrier")
    g.stamp(9)
    g.cstamp(18)
    g(f"s_cmp_eq_u32 s{sRem}, 0")
    g("s_cbranch_scc1 L_round_done")
    g.c("================ sweep: groups of 4 edges")
    g.label("L_group")
    g(f"ds_read_b64 {v(SHO,2)}, v{vSh}")
    g(f"ds_read_b128 {v(EA1,4)}, v{vEa1}")
    g(f"ds_read_b128 {v(EA2,4)}, v{vEa2}")
    g(f"ds_read_b128 {v(M4,4)}, v{vMetaA} offset:16")
    g(f"ds_read_b32 v{I1}, v{vM1} offset:16")
    g(f"ds_read_b32 v{I2}, v{vM2} offset:16")
    g(f"v_add_u32 v{vMetaA}, 16, v{vMetaA}")
    g(f"v_add_u32 v{vM1}, 16, v{vM1}")
    g(f"v_add_u32 v{vM2}, 16, v{vM2}")
    g("s_waitcnt lgkmcnt(0)")
    g(f"v_mfma_f32_16x16x16_bf16 {v(AC,4)}, {a_(aCG,2)}, {v(SHO,2)}, 0")
    for i in range(4):
        g(f"v_mfma_f32_16x16x32_bf16 {v(RW+4*i,4)}, {v(EA1,4)}, {a_(aWR+8*i,4)}, 0")
    for i in range(4):
        g(f"v_mfma_f32_16x16x32_bf16 {v(RW+4*i,4)}, {v(EA2,4)}, {a_(aWR+8*i+4,4)}, {v(RW+4*i,4)}")
    for r in range(4):
        g(f"v_readfirstlane_b32 s{sMb+r}, v{M4+r}")
    g(f"v_cvt_pk_bf16_f32 v{SHO}, v{AC}, v{AC+1}")
    g(f"v_cvt_pk_bf16_f32 v{SHO+1}, v{AC+2}, v{AC+3}")
    opaddr()
    for r in range(4):
        g.c(f"-- edge {r}")
        l1 = g.newlab()
        g(f"s_cmp_ge_u32 s{sRem}, {R}")
        g(f"s_cbranch_scc1 {l1}")
        g("s_waitcnt vmcnt(0)")
        g.label(l1)
        g(f"s_waitcnt vmcnt({2*(R-1)})")
        for i in range(4):
            g(f"ds_read_b64_tr_b16 {v(B+2*i,2)}, v{vTr} offset:{r*2048+i*256}")
        l2 = g.newlab()
        if R == 4:
            g("s_waitcnt lgkmcnt(0)")
        g(f"s_cmp_le_u32 s{sRem}, {R}")
        g(f"s_cbranch_scc1 {l2}")
        issue(sMb if r + R >= 4 else sMa, (r + R) % 4)
        g.label(l2)
        if R < 4:
            g("s_waitcnt lgkmcnt(0)")
        for i in range(4):
            g(f"v_mfma_f32_4x4x4_16b_bf16 {v(D+4*i,4)}, {v(SHO,2)}, {v(B+2*i,2)}, 0 cbsz:4 abid:{r}")
        g.nop(1)
        g(f"s_set_gpr_idx_on s{sMa+r}, gpr_idx(SRC2,DST)")
        x = r & 1
        for i in range(4):
            rw = RW + 4 * i + (r & ~1)
            for wp in range(2):
                g(f"v_pk_fma_f32 {v(acc(0,i,2*wp),2)}, {v(D+4*i+2*wp,2)}, {v(rw,2)}, {v(acc(0,i,2*wp),2)} op_sel:[0,{x},0] op_sel_hi:[1,{x},1]")
        g("s_set_gpr_idx_off")
        g(f"s_mov_b32 s{sMa+r}, s{sMb+r}")
        g(f"s_sub_u32 s{sRem}, s{sRem}, 1")
        g(f"s_cmp_eq_u32 s{sRem}, 0")
        g(f"s_cbranch_scc{1 if r < 3 else 0} {'L_round_done' if r < 3 else 'L_group'}")
    g.label("L_round_done")
    g(f"s_add_u32 s{sRound}, s{sRound}, 1")
    g(f"s_cmp_lg_u32 s{sMore}, 0")
    g("s_cbranch_scc1 L_scan")
    g.stamp(4)
    g.cstamp(19)

    g.c("================ W fragments -> AGPRs; agg image -> LDS")
    g(f"s_lshl_b32 s{sT}, s{sWV}, 14")
    g(f"s_add_u32 s{sT}, s{sT}, {WS_WF}")
    g(f"v_lshlrev_b32 v16, 4, v{vLane}")
    g(f"v_add_u32 v16, s{sT}, v16")
    for ks in range(16):
        g(f"buffer_load_dwordx4 {a_(aW+4*ks,4)}, v16, {s(WS,4)}, 0 offen offset:{(ks%4)*1024}")
        if ks % 4 == 3:
            g(f"v_add_u32 v16, 4096, v16")
    g(f"v_mul_u32_u24 v16, 320, v{vLane}")
    g(f"v_lshrrev_b32 v17, 2, v{vLane}")
    g(f"v_lshl_add_u32 v16, v17, 3, v16")
    for k in range(5):
        g(f"s_lshl_b32 s{sT}, s{sSlot+k}, 3")
        g(f"v_add_u32 v{17+k}, s{sT}, v16")
    t = 0
    for k in range(5):
        for i in range(4):
            p = 24 + 2 * t
            t += 1
            g(f"v_cvt_pk_bf16_f32 v{p}, v{acc(k,i,0)}, v{acc(k,i,1)}")
            g(f"v_cvt_pk_bf16_f32 v{p+1}, v{acc(k,i,2)}, v{acc(k,i,3)}")
    vG0, vG1, vO, vSw, vSr = 2, 3, 4, 5, 6
    g(f"v_lshrrev_b32 v70, 5, v{vLane}")
    g(f"v_mul_u32_u24 v71, 2576, v70")
    g(f"v_bfe_u32 v72, v{vLane}, 2, 2")
    g(f"v_mul_u32_u24 v74, 320, v72")
    g(f"v_bfe_u32 v73, v{vLane}, 4, 1")
    g(f"v_lshl_add_u32 v71, v73, 5, v71")
    g(f"v_and_b32 v73, 3, v{vLane}")
    g(f"v_lshl_add_u32 v71, v73, 3, v71")
    g(f"v_add_u32 v{vG0}, v71, v74")
    g(f"v_add_u32 v{vG1}, {8*5152}, v{vG0}")
    g(f"s_mul_i32 s{sT}, s{sWV}, 5120")
    g(f"s_add_u32 s{sT}, s{sT}, {STG}")
    g(f"v_and_b32 v74, 31, v{vLane}")
    g(f"v_mul_u32_u24 v74, 80, v74")
    g(f"v_lshl_add_u32 v74, v70, 3, v74")
    g(f"v_add_u32 v{vSw}, s{sT}, v74")
    g(f"v_lshrrev_b32 v74, 2, v{vLane}")
    g(f"v_mul_u32_u24 v74, 80, v74")
    g(f"v_lshl_add_u32 v74, v73, 4, v74")
    g(f"v_add_u32 v{vSr}, s{sT}, v74")
    g(f"v_lshrrev_b32 v74, 4, v{vLane}")
    g(f"v_lshlrev_b32 v74, 19, v74")
    g(f"v_lshl_add_u32 v74, v72, 9, v74")
    g(f"v_lshl_add_u32 v74, v73, 4, v74")
    g(f"s_lshl_b32 s{sT}, s{sB}, 11")
    g(f"s_lshl_b32 s{sN}, s{sWV}, 6")
    g(f"s_add_u32 s{sT}, s{sT}, s{sN}")
    g(f"v_add_u32 v{vO}, s{sT}, v74")
    g("s_barrier")
    g.stamp(5)
    t = 0
    for k in range(5):
        for i in range(4):
            p = 24 + 2 * t
            t += 1
            g(f"ds_write_b64 v{17+k}, {v(p,2)} offset:{i*20608}")
    g("s_waitcnt lgkmcnt(0)")
    g("s_barrier")
    g.stamp(6)
    g.cstamp(16)
    g.c("================ GEMM: out^T tile = W^T (A) x agg^T (B)")
    FB = [16, 32]
    DD = [48, 64]
    PK = [80, 88]
    OB = [96, 104]
    chunks = [(t, c) for t in range(5) for c in range(4)]

    def rd(n):
        t, c = chunks[n]
        for kk in range(4):
            ks = 4 * c + kk
            base = vG0 if ks < 8 else vG1
            for tt in range(2):
                g(f"ds_read_b64_tr_b16 {v(FB[n%2]+4*kk+2*tt,2)}, v{base} offset:{(ks%8)*5152 + tt*1288 + t*64}")

    def epi1(t):
        d, p, ob = DD[t % 2], PK[t % 2], OB[t % 2]
        for q in range(8):
            g(f"v_cvt_pk_bf16_f32 v{p+q}, v{d+2*q}, v{d+2*q+1}")
        for a in range(4):
            g(f"ds_write_b64 v{vSw}, {v(p+2*a,2)} offset:{2560*(t%2)+16*a}")
        for hf in range(2):
            g(f"ds_read_b128 {v(ob+4*hf,4)}, v{vSr} offset:{2560*(t%2)+1280*hf}")

    def epi2(t):
        ob = OB[t % 2]
        for hf in range(2):
            if not (o.nostore and t < 4):
                g(f"buffer_store_dwordx4 {v(ob+4*hf,4)}, v{vO}, {s(OUT,4)}, 0 offen{o.stflag}")
            g(f"v_add_u32 v{vO}, {4<<19}, v{vO}")
    PD = o.gdist
    NBUF = 8
    def rdj(j):
        t, ks = divmod(j, 16)
        base = vG0 if ks < 8 else vG1
        for tt in range(2):
            g(f"ds_read_b64_tr_b16 {v(16+4*(j%NBUF)+2*tt,2)}, v{base} offset:{(ks%8)*5152 + tt*1288 + t*64}")
    for j in range(PD):
        rdj(j)
    g("s_waitcnt vmcnt(0)")
    cv = []
    for j in range(80):
        t, ks = divmod(j, 16)
        g(f"s_waitcnt lgkmcnt({2*min(PD-1, 79-j)})")
        cin = "0" if ks == 0 else v(DD[t % 2], 16)
        g(f"v_mfma_f32_32x32x16_bf16 {v(DD[t%2],16)}, {a_(aW+4*ks,4)}, {v(16+4*(j%NBUF),4)}, {cin}")
        if j + PD < 80:
            rdj(j + PD)
        if t > 0:
            d, p, ob = DD[(t-1) % 2], PK[(t-1) % 2], OB[(t-1) % 2]
            so = 2560 * ((t-1) % 2)
            if 3 <= ks <= 6:
                a = ks - 3
                g(f"v_cvt_pk_bf16_f32 v{p+2*a}, v{d+4*a}, v{d+4*a+1}")
                g(f"v_cvt_pk_bf16_f32 v{p+2*a+1}, v{d+4*a+2}, v{d+4*a+3}")
                g(f"ds_write_b64 v{vSw}, {v(p+2*a,2)} offset:{so+16*a}")
            if ks in (7, 8):
                hf = ks - 7
                g(f"ds_read_b128 {v(ob+4*hf,4)}, v{vSr} offset:{so+1280*hf}")
            if ks == 15:
                assert PD <= 7
                epi2(t - 1)
    g.nop(12)
    epi1(4)
    g("s_waitcnt lgkmcnt(0)")
    epi2(4)
    if o.stamps:
        g.stamp(10)
        g.cstamp(17)
        g("s_waitcnt vmcnt(0)")
        g.stamp(7)
        g(f"s_lshl_b32 s{sT}, s{sB}, 3")
        g(f"s_add_u32 s{sT}, s{sT}, s{sWV}")
        g(f"s_lshl_b32 s{sT}, s{sT}, 8")
        g(f"s_add_u32 s{sT}, s{sT}, {WS_STAMP}")
        g(f"v_lshlrev_b32 v16, 2, v{vLane}")
        g(f"v_add_u32 v16, s{sT}, v16")
        g(f"buffer_store_dword v{vStamp}, v16, {s(WS,4)}, 0 offen")
    g.label("L_end")
    g("s_endpgm")
    return g.L


K1_LDS = 32768 + 1024
K1_CNT = 32768
K1_BASE = 80


def build_k1(o):
    g = Gen(False)
    nwg = K1_BASE + o.k1pf
    g(f"s_cmp_ge_u32 s2, {nwg}")
    g("s_cbranch_scc1 K_end")
    g("s_load_dwordx16 s[16:31], s[0:1], 0")
    g("s_load_dwordx2 s[32:33], s[0:1], 80")
    g("s_cmp_ge_u32 s2, 64")
    g("s_cbranch_scc1 K_weights")
    g.c("---- sorter: chunk s2 = edges [2500*s2, +2500), thread t<625 takes 4 edges")
    g("s_mul_i32 s3, s2, 10000")
    g("v_lshlrev_b32 v1, 4, v0")
    g("v_add_u32 v2, s3, v1")
    g("s_mov_b32 s14, 625")
    g("v_cmp_gt_u32 s[34:35], s14, v0")
    g("s_waitcnt lgkmcnt(0)")
    srd(g, 4, 20, E * 4)
    g("buffer_load_dwordx4 v[4:7], v2, s[4:7], 0 offen")
    srd(g, 8, 18, E * 4)
    g("buffer_load_dwordx4 v[8:11], v2, s[8:11], 0 offen")
    srd(g, 12, 32, WS_BYTES)
    g.c("fill the cell image with 0xFFFFFFFF (2048 x 16 B), zero the counters")
    for k in range(4):
        g(f"v_mov_b32 v{12+k}, -1")
    g("ds_write_b128 v1, v[12:15]")
    g("ds_write_b128 v1, v[12:15] offset:10240")
    g("ds_write_b128 v1, v[12:15] offset:20480")
    g("v_cmp_gt_u32 vcc, 128, v0")
    g("v_mov_b32 v16, 0")
    g("v_mov_b32 v17, 0")
    g("v_lshlrev_b32 v3, 3, v0")
    g("s_mov_b64 exec, vcc")
    g("ds_write_b128 v1, v[12:15] offset:30720")
    g(f"ds_write_b64 v3, v[16:17] offset:{K1_CNT}")
    g("s_mov_b64 exec, -1")
    g("v_mov_b32 v18, 1")
    g("v_lshlrev_b32 v19, 22, v0")
    g("v_lshrrev_b32 v2, 3, v0")
    g("v_lshlrev_b32 v2, 13, v2")
    g("v_and_b32 v3, 7, v0")
    g("v_lshl_add_u32 v2, v3, 4, v2")
    g("s_lshl_b32 s3, s2, 7")
    g("v_add_u32 v2, s3, v2")
    g("s_waitcnt lgkmcnt(0)")
    g("s_barrier")
    g("s_waitcnt vmcnt(1)")
    for k in range(4):
        g(f"v_and_b32 v{20+k}, 255, v{4+k}")
        g(f"v_lshlrev_b32 v{24+k}, 2, v{20+k}")
    g("s_mov_b64 exec, s[34:35]")
    for k in range(4):
        g(f"ds_add_rtn_u32 v{28+k}, v{24+k}, v18 offset:{K1_CNT}")
    g("s_mov_b64 exec, -1")
    g("s_waitcnt vmcnt(0)")
    for k in range(4):
        g(f"v_bfe_u32 v{4+k}, v{4+k}, 8, 6")
        g(f"v_min_u32 v{4+k}, 47, v{4+k}")
        g(f"v_and_b32 v{8+k}, 0x3fff, v{8+k}")
        g(f"v_lshl_or_b32 v{4+k}, v{8+k}, 6, v{4+k}")
        g(f"v_add_u32 v{8+k}, {k<<20}, v19")
        g(f"v_or_b32 v{4+k}, v{4+k}, v{8+k}")
    g("v_mov_b32 v12, -2")
    g("s_waitcnt lgkmcnt(0)")
    for k in range(4):
        g(f"v_cmp_gt_u32 vcc, 31, v{28+k}")
        g(f"v_min_u32 v{28+k}, 31, v{28+k}")
        g(f"v_lshlrev_b32 v{28+k}, 2, v{28+k}")
        g(f"v_cndmask_b32 v{4+k}, v12, v{4+k}, vcc")
        g(f"v_lshl_add_u32 v{28+k}, v{20+k}, 7, v{28+k}")
    g("s_mov_b64 exec, s[34:35]")
    for k in range(4):
        g(f"ds_write_b32 v{28+k}, v{4+k}")
    g("s_mov_b64 exec, -1")
    g("v_cmp_gt_u32 vcc, 128, v0")
    g("s_waitcnt lgkmcnt(0)")
    g("s_barrier")
    for i in range(4):
        g(f"ds_read_b128 v[{32+4*i}:{35+4*i}], v1 offset:{10240*i}")
    for i in range(3):
        g(f"s_waitcnt lgkmcnt({3-i})")
        g(f"buffer_store_dwordx4 v[{32+4*i}:{35+4*i}], v2, s[12:15], 0 offen")
        g(f"v_add_u32 v2, {80*8192}, v2")
    g("s_and_saveexec_b64 s[36:37], vcc")
    g("s_cbranch_execz K_end")
    g("s_waitcnt lgkmcnt(0)")
    g("buffer_store_dwordx4 v[44:47], v2, s[12:15], 0 offen")
    g("s_branch K_end")
    g.label("K_weights")
    if o.k1pf:
        g(f"s_cmp_ge_u32 s2, {K1_BASE}")
        g("s_cbranch_scc1 K_pf")
    g.c("---- weight fragments: wave gw<128: W frag (j=gw>>4, ks=gw&15); gw<136: w_r frag f=gw-128; gw<138: cg")
    g("v_lshrrev_b32 v1, 6, v0")
    g("v_and_b32 v2, 63, v0")
    g("v_readfirstlane_b32 s3, v1")
    g("s_sub_u32 s34, s2, 64")
    g("s_mul_i32 s34, s34, 10")
    g("s_add_u32 s3, s3, s34")
    g("s_cmp_ge_u32 s3, 137")
    g("s_cbranch_scc1 K_end")
    g("s_waitcnt lgkmcnt(0)")
    srd(g, 12, 32, WS_BYTES)
    g("s_lshl_b32 s34, s3, 10")
    g(f"s_add_u32 s34, s34, {WS_WF}")
    g("v_lshlrev_b32 v3, 4, v2")
    g("v_add_u32 v3, s34, v3")
    g("s_cmp_ge_u32 s3, 136")
    g("s_cbranch_scc1 K_cg")
    g("s_cmp_ge_u32 s3, 128")
    g("s_cbranch_scc1 K_wr")
    srd(g, 4, 30, 131072)
    g("s_and_b32 s34, s3, 15")
    g("s_lshl_b32 s34, s34, 13")
    g("s_lshr_b32 s35, s3, 4")
    g("s_lshl_b32 s35, s35, 6")
    g("s_add_u32 s34, s34, s35")
    g("v_lshrrev_b32 v4, 5, v2")
    g("v_lshlrev_b32 v4, 12, v4")
    g("v_and_b32 v5, 31, v2")
    g("v_lshl_add_u32 v4, v5, 1, v4")
    g("v_add_u32 v4, s34, v4")
    g("s_branch K_wgo")
    g.label("K_wr")
    srd(g, 4, 28, 8192)
    g("s_sub_u32 s34, s3, 128")
    g("s_lshl_b32 s34, s34, 6")
    g("v_bfe_u32 v4, v2, 4, 1")
    g("v_lshlrev_b32 v4, 12, v4")
    g("v_lshrrev_b32 v5, 5, v2")
    g("v_lshl_add_u32 v4, v5, 5, v4")
    g("v_and_b32 v5, 15, v2")
    g("v_lshl_add_u32 v4, v5, 1, v4")
    g("v_add_u32 v4, s34, v4")
    g.label("K_wgo")
    for q in range(8):
        g(f"buffer_load_ushort v{16+q}, v4, s[4:7], 0 offen offset:{q*512}")
    g("s_branch K_wst")
    g.label("K_cg")
    g.c("lane l: cg[u=l&3][v=0..3][w=l>>4]")
    srd(g, 4, 26, 128)
    g("v_and_b32 v4, 3, v2")
    g("v_lshlrev_b32 v4, 5, v4")
    g("v_lshrrev_b32 v5, 4, v2")
    g("v_lshl_add_u32 v4, v5, 1, v4")
    for q in range(4):
        g(f"buffer_load_ushort v{16+q}, v4, s[4:7], 0 offen offset:{q*8}")
    g("v_lshlrev_b32 v3, 3, v2")
    g(f"v_add_u32 v3, {WS_CGF}, v3")
    g("s_waitcnt vmcnt(0)")
    for q in range(2):
        g(f"v_lshl_or_b32 v{8+q}, v{17+2*q}, 16, v{16+2*q}")
    g("buffer_store_dwordx2 v[8:9], v3, s[12:15], 0 offen")
    g("s_branch K_end")
    g.label("K_wst")
    g("s_waitcnt vmcnt(0)")
    for q in range(4):
        g(f"v_lshl_or_b32 v{8+q}, v{17+2*q}, 16, v{16+2*q}")
    g("buffer_store_dwordx4 v[8:11], v3, s[12:15], 0 offen")
    if o.k1pf:
        g("s_branch K_end")
        g.label("K_pf")
        g.c("---- pull the first x rows into every XCD's L2 (workgroups 8 apart share an XCD; speed only)")
        g(f"s_sub_u32 s3, s2, {K1_BASE}")
        g("s_lshr_b32 s3, s3, 3")
        g("s_mul_i32 s3, s3, 10240")
        g("v_lshlrev_b32 v1, 4, v0")
        g("v_add_u32 v1, s3, v1")
        g("s_waitcnt lgkmcnt(0)")
        srd(g, 4, 16, N * 2048)
        step = (o.k1pf // 8) * 10240
        for i in range(o.k1steps):
            g(f"buffer_load_dwordx4 v[{4+4*(i%8)}:{7+4*(i%8)}], v1, s[4:7], 0 offen")
            g(f"v_add_u32 v1, {step}, v1")
    g.label("K_end")
    g("s_endpgm")
    return g.L


HEADER = open("/code/" + NAME + ".s.ref").read().split("; Override launch")[0]


def kd(name, vg, sg, acc):
    return f""".section .rodata,"a"
.p2align 6
.amdhsa_kernel {name}
  .amdhsa_next_free_vgpr {vg}
  .amdhsa_next_free_sgpr {sg}
  .amdhsa_accum_offset {acc}
  .amdhsa_group_segment_fixed_size 0
  .amdhsa_kernarg_size 88
  .amdhsa_user_sgpr_count 2
  .amdhsa_user_sgpr_kernarg_segment_ptr 1
  .amdhsa_system_sgpr_workgroup_id_x 1
  .amdhsa_float_denorm_mode_32 3
.end_amdhsa_kernel
"""


def emit(o):
    out = HEADER
    out += f"; @launch kernel=bin_edges_kernel grid=({K1_BASE+o.k1pf},1,1) block=(640,1,1) lds={K1_LDS}\n"
    out += f"; @launch kernel={NAME}_kernel grid=(256,1,1) block=(512,1,1) lds={LDS_BYTES}\n"
    out += "; generated by dev/gen.py\n"
    out += '.amdgcn_target "amdgcn-amd-amdhsa--gfx950"\n.text\n'
    out += f".globl bin_edges_kernel\n.p2align 8\n.type bin_edges_kernel,@function\nbin_edges_kernel:\n"
    out += "\n".join(build_k1(o)) + "\n"
    out += f".globl {NAME}_kernel\n.p2align 8\n.type {NAME}_kernel,@function\n{NAME}_kernel:\n"
    out += "\n".join(build(o)) + "\n"
    out += kd("bin_edges_kernel", 48, 40, 48)
    out += kd(NAME + "_kernel", 256, 102, 160)
    open(o.o, "w").write(out)


if __name__ == "__main__":
    ap = argparse.ArgumentParser()
    ap.add_argument("-o", default="/code/" + NAME + ".s")
    ap.add_argument("--stamps", action="store_true")
    ap.add_argument("--k1pf", type=int, default=0, help="extra K1 workgroups (multiple of 8) that warm every L2")
    ap.add_argument("--k1steps", type=int, default=0)
    ap.add_argument("--stflag", default=" sc1")
    ap.add_argument("--R", type=int, default=3)
    ap.add_argument("--nostore", action="store_true")
    ap.add_argument("--gdist", type=int, default=6)
    ap.add_argument("--pay", default="0,1,2,3")
    emit(ap.parse_args())
```

```python
import sys, argparse

NAME = "standalone__tensor_product_equiv_mace__graph"
N, E = 10000, 160000

RING = 0
POOLCAP = 1024
PEA = 65536
PSH = PEA + POOLCAP * 32
META = PSH + POOLCAP * 8
HIST = META + (POOLCAP + 64) * 4
DEG = HIST + 60 * 64
POOL = HIST + 59 * 64
OFF = HIST + 4096
ZERO = OFF + 4096
FLAG = ZERO + 16
STG = 82432
LDS_BYTES = 124160
assert FLAG + 16 <= LDS_BYTES and META % 16 == 0 and HIST % 16 == 0 and STG + 8 * 5120 <= LDS_BYTES
WS_CELLS = 0
WS_WF = 256 * 64 * 128
WS_WRF = WS_WF + 131072
WS_CGF = WS_WRF + 8192
WS_STAMP = 4 << 20
WS_SHC = 8 << 20
WS_BYTES = 12 << 20

sB, sWV = 2, 3
X, SRC, DST, SH, EA, OUT, WS = 8, 12, 16, 20, 24, 28, 32
sM = [36, 38, 40, 42]
sPB, sQ, sDm, sNomatch = 44, 45, 46, 47
sKskip, sT, sN, sC = 52, 53, 54, 55
sSlot = 56
sBase, sRem, sRing = 61, 62, 63
sMa, sMb = 64, 68
sOff, sRound, sMore, sCnt, sL, sMask = 76, 77, 78, 79, 80, 82
sKey = 84
sAddr, sLimit = 64, 65

vLane, vDma0, vDma1, vTr, vEa1, vEa2, vMul1, vMul2, vSh, vMulS, vOwner, vStamp, vMetaA = range(1, 14)
ACC = 80
def acc(k, i, w): return ACC + 16 * k + 4 * i + w
aWR, aCG, aW = 0, 32, 32


class Gen:
    def __init__(self, stamps=False):
        self.L = []
        self.stamps = stamps
        self.nlab = 0

    def __call__(self, s):
        self.L.append("    " + s)

    def label(self, s):
        self.L.append(s + ":")

    def c(self, s):
        self.L.append("    ; " + s)

    def newlab(self, p="L"):
        self.nlab += 1
        return f"{p}_{self.nlab}"

    def nop(self, n):
        while n > 0:
            k = min(n, 16)
            self(f"s_nop {k-1}")
            n -= k

    def cstamp(self, i):
        if not self.stamps:
            return
        self(f"s_memtime s[4:5]")
        self("s_waitcnt lgkmcnt(0)")
        self(f"v_writelane_b32 v{vStamp}, s4, {i}")

    def stamp(self, i):
        if not self.stamps:
            return
        self(f"s_memrealtime s[4:5]")
        self("s_waitcnt lgkmcnt(0)")
        self(f"v_writelane_b32 v{vStamp}, s4, {i}")


def srd(g, d, ptr, nbytes):
    g(f"s_mov_b32 s{d}, s{ptr}")
    g(f"s_mov_b32 s{d+1}, s{ptr+1}")
    g(f"s_mov_b32 s{d+2}, {nbytes}")
    g(f"s_mov_b32 s{d+3}, 0x00020000")


def v(a, n=1):
    return f"v{a}" if n == 1 else f"v[{a}:{a+n-1}]"


def a_(a, n=1):
    return f"a{a}" if n == 1 else f"a[{a}:{a+n-1}]"


def s(a, n=1):
    return f"s{a}" if n == 1 else f"s[{a}:{a+n-1}]"


def build(o):
    g = Gen(o.stamps)
    R = o.R
    cM, cE, cX, cK, cR = 16, 20, 24, 28, 32
    vL2, vP16, vP4, vCand = 36, 37, 38, 39
    g(f"s_cmp_ge_u32 s{sB}, 256")
    g("s_cbranch_scc1 L_end")
    g("s_load_dwordx2 s[84:85], s[0:1], 80")
    g("s_load_dwordx16 s[64:79], s[0:1], 0")
    g("s_load_dwordx2 s[80:81], s[0:1], 64")
    g(f"v_and_b32 v{vLane}, 63, v0")
    g(f"v_lshrrev_b32 v60, 6, v0")
    g(f"v_mov_b32 v{vStamp}, 0")
    g(f"v_readfirstlane_b32 s{sWV}, v60")
    g(f"s_lshl_b32 s{sT}, s{sB}, 13")
    g(f"v_lshlrev_b32 v60, 4, v0")
    g(f"v_add_u32 v60, s{sT}, v60")
    g(f"v_lshlrev_b32 v64, 4, v{vLane}")
    g(f"v_add_u32 v61, {WS_WRF}, v64")
    g(f"v_add_u32 v62, {WS_WRF+4096}, v64")
    g(f"v_lshlrev_b32 v63, 3, v{vLane}")
    g(f"v_add_u32 v63, {WS_CGF}, v63")
    g("s_waitcnt lgkmcnt(0)")
    srd(g, WS, 84, WS_BYTES)
    g(f"buffer_load_dwordx4 {v(cM,4)}, v60, {s(WS,4)}, 0 offen")
    srd(g, X, 64, N * 2048)
    srd(g, SRC, 66, E * 4)
    srd(g, DST, 68, E * 4)
    srd(g, SH, 70, E * 8)
    srd(g, EA, 72, E * 32)
    srd(g, OUT, 80, N * 2048)
    for f in range(8):
        g(f"buffer_load_dwordx4 {a_(aWR+4*f,4)}, v{61 if f < 4 else 62}, {s(WS,4)}, 0 offen offset:{(f%4)*1024}")
    g(f"buffer_load_dwordx2 {a_(aCG,2)}, v63, {s(WS,4)}, 0 offen")
    nvm = 9
    g.stamp(0)
    g.c("---- zero HIST (4096 B: 512 threads x 8 B), ZERO block, FLAG")
    g("v_mov_b32 v68, 0")
    g("v_mov_b32 v69, 0")
    g(f"v_lshlrev_b32 v60, 3, v0")
    g(f"v_add_u32 v60, {HIST}, v60")
    g("ds_write_b64 v60, v[68:69]")
    g(f"v_and_b32 v60, 3, v{vLane}")
    g(f"v_lshlrev_b32 v60, 3, v60")
    g(f"v_add_u32 v60, {ZERO}, v60")
    g("ds_write_b64 v60, v[68:69]")
    g(f"s_lshl_b32 s{sRing}, s{sWV}, 13")
    g(f"s_mov_b32 s{sKskip}, 0")
    g(f"s_mov_b32 s{sRound}, 0")
    g(f"s_mov_b32 s{sMask}, 0x3fff00")
    g("s_waitcnt lgkmcnt(0)")
    g("s_barrier")
    g.c("---- persistent per-lane constants")
    g(f"v_lshrrev_b32 v66, 4, v{vLane}")
    g(f"v_and_b32 v61, 7, v{vLane}")
    g(f"v_bfe_u32 v65, v{vLane}, 3, 1")
    g(f"v_lshlrev_b32 v65, 9, v65")
    g(f"v_lshl_add_u32 v65, v66, 7, v65")
    g(f"v_lshl_add_u32 v{vDma0}, v61, 4, v65")
    g(f"v_xor_b32 v61, 4, v61")
    g(f"v_lshl_add_u32 v{vDma1}, v61, 4, v65")
    g(f"v_bfe_u32 v60, v{vLane}, 2, 2")
    g(f"v_bfe_u32 v62, v{vLane}, 1, 1")
    g(f"v_lshl_add_u32 v62, v66, 1, v62")
    g(f"v_lshrrev_b32 v63, 1, v60")
    g(f"v_lshlrev_b32 v64, 2, v63")
    g(f"v_xor_b32 v62, v62, v64")
    g(f"v_and_b32 v64, 1, v60")
    g(f"v_lshl_add_u32 v62, v64, 3, v62")
    g(f"v_lshlrev_b32 v62, 4, v62")
    g(f"v_lshl_add_u32 v62, v63, 10, v62")
    g(f"v_and_b32 v64, 1, v{vLane}")
    g(f"v_lshl_add_u32 v62, v64, 3, v62")
    g(f"v_add_u32 v{vTr}, s{sRing}, v62")
    g(f"v_lshrrev_b32 v61, 5, v{vLane}")
    g(f"v_mov_b32 v63, 32")
    g(f"v_cmp_eq_u32 vcc, v60, v61")
    g(f"v_add_u32 v61, 2, v61")
    g(f"v_and_b32 v64, 3, v{vLane}")
    g(f"v_cndmask_b32 v{vMul1}, 0, v63, vcc")
    g(f"v_cmp_eq_u32 vcc, v60, v61")
    g(f"v_cmp_eq_u32 s[4:5], v64, v66")
    g(f"v_mov_b32 v65, 8")
    g(f"v_cndmask_b32 v{vMul2}, 0, v63, vcc")
    g(f"v_cndmask_b32 v{vMulS}, 0, v65, s[4:5]")
    g(f"v_lshrrev_b32 v67, 3, v0")
    g(f"v_mul_u32_u24 v67, 2500, v67")
    g(f"v_lshl_add_u32 v67, v{vLane}, 20, v67")
    g(f"v_mov_b32 v69, {POOL}")
    for r in range(ACC, ACC + 80, 2):
        g(f"v_mov_b64 {v(r,2)}, 0")
    g.c("================ front end: decode the cells")
    g(f"s_waitcnt vmcnt({nvm})")
    g.stamp(1)
    for k in range(4):
        g(f"v_cmp_gt_u32 {s(sM[k],2)}, -2, v{cM+k}")
    g(f"v_cmp_eq_u32 vcc, -2, v{cM+3}")
    g(f"s_bcnt1_i32_b64 s{sCnt}, {s(sM[0],2)}")
    for k in range(1, 4):
        g(f"s_bcnt1_i32_b64 s{sT}, {s(sM[k],2)}")
        g(f"s_add_u32 s{sCnt}, s{sCnt}, s{sT}")
    g(f"v_mov_b32 v70, s{sCnt}")
    g("s_mov_b64 exec, 1")
    g("ds_add_rtn_u32 v70, v69, v70")
    g("s_mov_b64 exec, -1")
    g("v_mov_b32 v56, 0")
    for k in range(4):
        g(f"v_mbcnt_lo_u32_b32 v56, s{sM[k]}, v56")
        g(f"v_mbcnt_hi_u32_b32 v56, s{sM[k]+1}, v56")
    g(f"s_add_u32 s{sT}, s{sRing}, 4096")
    g(f"v_lshl_add_u32 v58, v56, 2, s{sT}")
    for k in range(4):
        g(f"v_lshrrev_b32 v{cE+k}, 20, v{cM+k}")
        g(f"v_add_u32 v{cE+k}, v{cE+k}, v67")
        if k < 3:
            g(f"v_add_u32 v67, {1<<18}, v67")
        g(f"s_mov_b64 exec, {s(sM[k],2)}")
        g(f"ds_write_b32 v58, v{cE+k} offset:{4*k}")
        g("s_mov_b64 exec, -1")
    for k in range(4):
        g(f"v_lshlrev_b32 v{cX+k}, 2, v{cM+k}")
        g(f"v_and_b32 v{cX+k}, s{sMask}, v{cX+k}")
        g(f"v_and_b32 v{cM+k}, 63, v{cM+k}")
    g(f"s_mov_b32 s{sL}, 79")
    g("s_waitcnt lgkmcnt(0)")
    g(f"v_readfirstlane_b32 s{sPB}, v70")
    g("s_cbranch_vccnz L_defer")
    g(f"s_add_u32 s{sT}, s{sPB}, s{sCnt}")
    g(f"s_cmp_gt_u32 s{sT}, {POOLCAP}")
    g("s_cbranch_scc1 L_defer")
    g(f"v_add_u32 v56, s{sPB}, v56")
    for k in range(4):
        g(f"v_lshl_or_b32 v{cX+k}, v56, 22, v{cX+k}")
        if k < 3:
            g(f"v_add_u32 v56, 1, v56")
    g("s_branch L_have")
    g.label("L_defer")
    g.c("this wave's cells overflowed (or the pool is full): rescan its edge range in later rounds")
    g(f"s_mov_b32 s{sL}, 0")
    g(f"s_mov_b32 s{sCnt}, 0")
    g(f"s_mov_b32 s{sPB}, 0")
    for k in range(4):
        g(f"s_mov_b64 {s(sM[k],2)}, 0")
    g("v_mov_b32 v58, 1")
    g(f"v_mov_b32 v59, {FLAG}")
    g("ds_write_b32 v59, v58")
    g("s_branch L_have")

    g.label("L_scan")
    g.c("================ fallback scan of this wave's 20000 dst entries (rare path)")
    g("s_barrier")
    BUF = 60
    g(f"s_mov_b32 s{sAddr}, s{sRing}")
    g(f"s_add_u32 s{sLimit}, s{sRing}, {128*8}")
    g(f"s_xor_b32 s{sNomatch}, s{sB}, 1")
    g.label("L_sloop")
    g(f"s_cmp_ge_u32 s{sL}, 79")
    g("s_cbranch_scc1 L_scan_done")
    g(f"s_mul_i32 s{sT}, s{sWV}, 20000")
    g(f"s_lshl_b32 s{sN}, s{sL}, 8")
    g(f"s_add_u32 s{sC}, s{sT}, s{sN}")
    g(f"v_lshlrev_b32 v56, 2, v{vLane}")
    g(f"v_add_u32 v56, s{sC}, v56")
    g(f"v_lshlrev_b32 v57, 2, v56")
    g(f"buffer_load_dwordx4 {v(BUF,4)}, v57, {s(DST,4)}, 0 offen")
    g("s_waitcnt vmcnt(0)")
    g(f"s_cmp_lg_u32 s{sL}, 78")
    g("s_cbranch_scc1 L_snotlast")
    g(f"s_mov_b32 exec_lo, 0xffffff00")
    for k in range(4):
        g(f"v_mov_b32 v{BUF+k}, s{sNomatch}")
    g("s_mov_b64 exec, -1")
    g.label("L_snotlast")
    for k in range(4):
        lab = g.newlab()
        g(f"s_cmp_gt_u32 s{sKskip}, {k}")
        g(f"s_cbranch_scc1 {lab}")
        g(f"v_cmp_eq_u32_sdwa vcc, v{BUF+k}, s{sB} src0_sel:BYTE_0 src1_sel:DWORD")
        g(f"s_cbranch_vccz {lab}")
        g(f"s_bcnt1_i32_b64 s{sT}, vcc")
        g(f"s_lshl3_add_u32 s{sN}, s{sT}, s{sAddr}")
        g(f"s_mov_b32 s{sKskip}, {k}")
        g(f"s_cmp_gt_u32 s{sN}, s{sLimit}")
        g(f"s_cbranch_scc1 L_ovf")
        g(f"v_mbcnt_lo_u32_b32 v58, vcc_lo, 0")
        g(f"v_mbcnt_hi_u32_b32 v58, vcc_hi, v58")
        g(f"v_lshl_add_u32 v58, v58, 3, s{sAddr}")
        g(f"v_add_u32 v59, {k}, v56")
        g("s_mov_b64 exec, vcc")
        g(f"ds_write2_b32 v58, v{BUF+k}, v59 offset0:0 offset1:1")
        g("s_mov_b64 exec, -1")
        g(f"s_mov_b32 s{sAddr}, s{sN}")
        g.label(lab)
    g(f"s_mov_b32 s{sKskip}, 0")
    g(f"s_add_u32 s{sL}, s{sL}, 1")
    g("s_branch L_sloop")
    g.label("L_ovf")
    g("v_mov_b32 v58, 1")
    g(f"v_mov_b32 v59, {FLAG}")
    g("ds_write_b32 v59, v58")
    g.label("L_scan_done")
    g(f"s_sub_u32 s{sCnt}, s{sAddr}, s{sRing}")
    g(f"s_lshr_b32 s{sCnt}, s{sCnt}, 3")
    g(f"s_lshl_b32 s{sPB}, s{sWV}, 7")
    g(f"v_lshlrev_b32 v58, 3, v{vLane}")
    g(f"v_add_u32 v58, s{sRing}, v58")
    g("s_waitcnt lgkmcnt(0)")
    for k in range(2):
        g(f"ds_read_b32 v{cM+k}, v58 offset:{512*k}")
        g(f"ds_read_b32 v{cE+k}, v58 offset:{512*k+4}")
        g(f"s_sub_u32 s{sT}, s{sCnt}, {64*k}")
        g(f"v_cmp_gt_i32 {s(sM[k],2)}, s{sT}, v{vLane}")
    for k in range(2, 4):
        g(f"s_mov_b64 {s(sM[k],2)}, 0")
        g(f"v_mov_b32 v{cM+k}, 0")
        g(f"v_mov_b32 v{cX+k}, 0")
    g(f"v_lshl_add_u32 v58, v{vLane}, 2, s{sRing}")
    g(f"v_add_u32 v59, s{sPB}, v{vLane}")
    g(f"v_lshlrev_b32 v59, 22, v59")
    g("s_waitcnt lgkmcnt(0)")
    for k in range(2):
        g(f"v_lshlrev_b32 v{cK+k}, 2, v{cE+k}")
        g(f"buffer_load_dword v{cX+k}, v{cK+k}, {s(SRC,4)}, 0 offen")
        g(f"v_bfe_u32 v{cM+k}, v{cM+k}, 8, 6")
        g(f"v_min_u32 v{cM+k}, 47, v{cM+k}")
        g(f"ds_write_b32 v58, v{cE+k} offset:{4096+256*k}")
    g("s_waitcnt vmcnt(0)")
    for k in range(2):
        g(f"v_and_b32 v{cX+k}, 0x3fff, v{cX+k}")
        g(f"v_lshl_or_b32 v{cX+k}, v{cX+k}, 8, v59")
        g(f"v_add_u32 v59, {64<<22}, v59")
    g.label("L_have")
    g.c("================ histogram over (slot, src bin); payload DMA set-up")
    g("v_mov_b32 v58, 1")
    g(f"s_mov_b32 s{sT}, {HIST}")
    g(f"s_mov_b32 s{sN}, {DEG}")
    for k in range(4):
        g(f"v_bfe_u32 v{cK+k}, v{cX+k}, 8, 14")
        g(f"v_mul_u32_u24 v{cK+k}, 6711, v{cK+k}")
        g(f"v_lshrrev_b32 v{cK+k}, 22, v{cK+k}")
        g(f"v_min_u32 v{cK+k}, 15, v{cK+k}")
        g(f"v_lshl_add_u32 v{cK+k}, v{cK+k}, 2, s{sT}")
        g(f"v_lshl_add_u32 v{cK+k}, v{cM+k}, 6, v{cK+k}")
        g(f"v_lshl_add_u32 v{cM+k}, v{cM+k}, 2, s{sN}")
        g(f"s_mov_b64 exec, {s(sM[k],2)}")
        g(f"ds_add_rtn_u32 v{cR+k}, v{cK+k}, v58")
        g(f"ds_add_u32 v{cM+k}, v58")
        g("s_mov_b64 exec, -1")
    g(f"v_lshrrev_b32 v{vL2}, 1, v{vLane}")
    g(f"s_add_u32 s{sT}, s{sRing}, 4096")
    g(f"v_lshl_add_u32 v{vCand}, v{vL2}, 2, s{sT}")
    EI = 40
    for q in range(4):
        g(f"ds_read_b32 v{EI+q}, v{vCand} offset:{128*q}")
    g(f"v_and_b32 v{vP4}, 1, v{vLane}")
    g(f"v_lshlrev_b32 v{vP16}, 4, v{vP4}")
    g(f"v_lshlrev_b32 v{vP4}, 2, v{vP4}")
    g(f"s_lshl3_add_u32 s{sT}, s{sB}, s{sWV}")
    g(f"s_lshl_b32 s{sT}, s{sT}, 11")
    g(f"s_add_u32 s{sT}, s{sT}, {WS_SHC}")
    g(f"s_cmp_eq_u32 s{sRound}, 0")
    g(f"s_cselect_b32 s{sT}, s{sT}, 0")
    g(f"s_cselect_b32 s{sNomatch}, 18, 0")
    g(f"v_add_u32 v{vP4}, s{sT}, v{vP4}")
    g(f"s_mov_b32 s{sDm}, s{sCnt}")
    g(f"s_mov_b32 s{sQ}, s{sPB}")
    g(f"v_lshl_add_u32 v56, v{vLane}, 2, s{sN}")
    g(f"v_mov_b32 v57, {FLAG}")
    g("s_waitcnt lgkmcnt(0)")

    def pay(q):
        lab = g.newlab()
        g(f"s_cmp_le_i32 s{sDm}, 0")
        g(f"s_cbranch_scc1 {lab}")
        g(f"v_and_b32 v44, 0x3ffff, v{EI+q}")
        g(f"v_lshl_add_u32 v44, v44, 5, v{vP16}")
        g(f"v_lshrrev_b32 v45, s{sNomatch}, v{EI+q}")
        g(f"v_lshl_add_u32 v45, v45, 3, v{vP4}")
        g(f"v_cmp_gt_i32 vcc, s{sDm}, v{vL2}")
        g(f"s_lshl_b32 s{sOff}, s{sQ}, 5")
        g(f"s_add_u32 m0, s{sOff}, {PEA}")
        g("s_mov_b64 exec, vcc")
        g(f"buffer_load_dwordx4 v44, {s(EA,4)}, 0 offen{o.eald} lds")
        g(f"s_lshl3_add_u32 m0, s{sQ}, {PSH}")
        g(f"s_add_u32 s{sQ}, s{sQ}, 32")
        l0, l1 = g.newlab(), g.newlab()
        g(f"s_cmp_lg_u32 s{sRound}, 0")
        g(f"s_cbranch_scc1 {l0}")
        g(f"buffer_load_dword v45, {s(WS,4)}, 0 offen lds")
        g(f"s_branch {l1}")
        g.label(l0)
        g(f"buffer_load_dword v45, {s(SH,4)}, 0 offen lds")
        g.label(l1)
        g("s_mov_b64 exec, -1")
        g(f"s_sub_i32 s{sDm}, s{sDm}, 32")
        g.label(lab)
    sched = [int(x) for x in o.pay.split(",")]
    def stage(st):
        for q in range(4):
            if sched[q] == st:
                pay(q)
    stage(0)
    g("s_barrier")
    g.stamp(2)
    g.c("================ degrees, assignment, offsets")
    vDeg, vKey, vRank = 56, 57, 59
    g(f"ds_read_b32 v{vDeg}, v56")
    g(f"ds_read_b32 v57, v57")
    stage(1)
    g("s_waitcnt lgkmcnt(0)")
    g(f"v_readfirstlane_b32 s{sMore}, v57")
    g(f"s_cmp_lg_u32 s{sRound}, 0")
    g("s_cbranch_scc1 L_assigned")
    g(f"v_sub_u32 v{vKey}, 63, v{vLane}")
    g(f"v_lshl_add_u32 v{vKey}, v{vDeg}, 6, v{vKey}")
    g(f"v_mov_b32 v{vRank}, 0")
    masks = ["vcc", "s[4:5]", "s[6:7]"]
    for b0 in range(0, 40, 16):
        nb = min(16, 40 - b0)
        for j in range(nb):
            g(f"v_readlane_b32 s{sKey+j}, v{vKey}, {b0+j}")
        j = 0
        while j < nb:
            m = min(3, nb - j)
            for t in range(m):
                g(f"v_cmp_gt_u32 {masks[t]}, s{sKey+j+t}, v{vKey}")
            if m < 3:
                g.nop(3 - m)
            for t in range(m):
                g(f"v_addc_co_u32 v{vRank}, {masks[t]}, 0, v{vRank}, {masks[t]}")
            j += m
    g(f"v_bfe_u32 v60, v{vRank}, 3, 1")
    g(f"v_mul_u32_u24 v60, 7, v60")
    g(f"v_and_b32 v61, 7, v{vRank}")
    g(f"v_xor_b32 v{vOwner}, v60, v61")
    g(f"s_sub_u32 s{sT}, 7, s{sWV}")
    for k in range(5):
        g(f"s_add_u32 s{sN}, s{sT if k & 1 else sWV}, {8*k}")
        g(f"v_cmp_eq_u32 vcc, s{sN}, v{vRank}")
        g(f"s_ff1_i32_b64 s{sSlot+k}, vcc")
    g.label("L_assigned")
    g(f"v_cmp_gt_u32 vcc, s{sWV}, v{vOwner}")
    g(f"v_and_b32 v61, 15, v{vLane}")
    g(f"v_lshlrev_b32 v61, 2, v61")
    g(f"v_cndmask_b32 v60, 0, v{vDeg}, vcc")
    g(f"v_add_u32 v61, {HIST}, v61")
    AD, CN = 64, 70
    for k in range(5):
        g(f"s_lshl_b32 s{sKey+k}, s{sSlot+k}, 6")
        g(f"v_add_u32 v{AD+k}, s{sKey+k}, v61")
        g(f"ds_read_b32 v{CN+k}, v{AD+k}")
    for n_, sh_ in enumerate((1, 2, 4, 8)):
        g(f"v_add_u32_dpp v60, v60, v60 row_shr:{sh_} row_mask:0xf bank_mask:0xf bound_ctrl:1")
        g(f"v_readlane_b32 s{sKey+8+n_}, v{vDeg}, s{sSlot+n_}")
        g.nop(1)
    g(f"v_readlane_b32 s{sKey+12}, v{vDeg}, s{sSlot+4}")
    g(f"v_readlane_b32 s{sBase}, v60, 15")
    g(f"v_readlane_b32 s{sT}, v60, 31")
    g(f"v_readlane_b32 s{sN}, v60, 47")
    g(f"s_add_u32 s{sRem}, s{sKey+8}, s{sKey+9}")
    for k in range(2, 5):
        g(f"s_add_u32 s{sRem}, s{sRem}, s{sKey+8+k}")
    g(f"s_add_u32 s{sBase}, s{sBase}, s{sT}")
    g(f"s_add_u32 s{sBase}, s{sBase}, s{sN}")
    g(f"s_add_u32 s{sBase}, s{sBase}, 3")
    g(f"s_andn2_b32 s{sBase}, s{sBase}, 3")
    g(f"s_lshl2_add_u32 s{sBase}, s{sWV}, s{sBase}")
    g("s_waitcnt lgkmcnt(0)")
    g(f"v_add3_u32 v60, v{CN}, v{CN+1}, v{CN+2}")
    g(f"v_add3_u32 v60, v60, v{CN+3}, v{CN+4}")
    g("v_mov_b32 v61, v60")
    for sh_ in (1, 2, 4, 8):
        g.nop(2)
        g(f"v_add_u32_dpp v61, v61, v61 row_shr:{sh_} row_mask:0xf bank_mask:0xf bound_ctrl:1")
    g("v_sub_u32 v61, v61, v60")
    g(f"v_add_u32 v61, s{sBase}, v61")
    for k in range(5):
        g(f"v_lshl_add_u32 v{75+k}, v61, 8, {16*k}")
        g(f"ds_write_b32 v{AD+k}, v{75+k} offset:{OFF-HIST}")
        if k < 4:
            g(f"v_add_u32 v61, v61, v{CN+k}")
    stage(2)
    g("s_waitcnt lgkmcnt(0)")
    g("s_barrier")
    g.stamp(8)
    g.c("================ placement of (pool index | src | acc offset); re-zero HIST/FLAG")
    for k in range(4):
        g(f"ds_read_b32 v{cM+k}, v{cK+k} offset:{OFF-HIST}")
    g("v_mov_b32 v60, 0")
    g("v_mov_b32 v61, 0")
    g(f"v_lshlrev_b32 v64, 3, v0")
    g(f"v_add_u32 v64, {HIST}, v64")
    g("ds_write_b64 v64, v[60:61]")
    g(f"v_mov_b32 v64, {FLAG}")
    g("ds_write_b32 v64, v60")
    g(f"s_mov_b32 s{sT}, {META}")
    g(f"s_movk_i32 s{sN}, 255")
    g("s_waitcnt lgkmcnt(2)")
    for k in range(4):
        g(f"v_lshrrev_b32 v{cK+k}, 8, v{cM+k}")
        g(f"v_add_u32 v{cK+k}, v{cK+k}, v{cR+k}")
        g(f"v_and_or_b32 v{cM+k}, v{cM+k}, s{sN}, v{cX+k}")
        g(f"v_lshl_add_u32 v{cK+k}, v{cK+k}, 2, s{sT}")
        g(f"s_mov_b64 exec, {s(sM[k],2)}")
        g(f"ds_write_b32 v{cK+k}, v{cM+k}")
        g("s_mov_b64 exec, -1")
    stage(3)
    g.c("lists longer than 128 candidates (rare): fetch the rest")
    g.label("L_paymore")
    g(f"s_cmp_le_i32 s{sDm}, 0")
    g("s_cbranch_scc1 L_paydone")
    g(f"ds_read_b32 v{EI}, v{vCand} offset:512")
    g(f"v_add_u32 v{vCand}, 128, v{vCand}")
    g("s_waitcnt lgkmcnt(0)")
    pay(0)
    g("s_branch L_paymore")
    g.label("L_paydone")
    RW, D, B, EA1, EA2, AC, M4, I1, I2, SHO = 16, 32, 48, 56, 60, 64, 68, 72, 73, 14
    vB1, vB2, vBS, vM1, vM2 = 74, 75, 76, 77, 78
    g(f"s_lshl_b32 s{sBase}, s{sBase}, 2")
    g(f"s_add_u32 s{sBase}, s{sBase}, {META}")
    g(f"v_mov_b32 v{vMetaA}, s{sBase}")
    g(f"v_and_b32 v62, 3, v{vLane}")
    g(f"v_lshl_add_u32 v{vM1}, v62, 2, s{sBase}")
    g(f"v_bfe_u32 v62, v{vLane}, 2, 2")
    g(f"v_lshl_add_u32 v{vM2}, v62, 2, s{sBase}")
    g(f"v_bfe_u32 v63, v{vLane}, 4, 1")
    g(f"v_lshlrev_b32 v63, 4, v63")
    g(f"v_add_u32 v63, {PEA}, v63")
    g(f"v_mov_b32 v65, {PSH}")
    g(f"v_mov_b32 v62, {ZERO}")
    g(f"v_cmp_ne_u32 vcc, 0, v{vMul1}")
    g(f"v_cmp_ne_u32 s[4:5], 0, v{vMul2}")
    g(f"v_cmp_ne_u32 s[6:7], 0, v{vMulS}")
    g(f"v_cndmask_b32 v{vB1}, v62, v63, vcc")
    g(f"v_cndmask_b32 v{vB2}, v62, v63, s[4:5]")
    g(f"v_cndmask_b32 v{vBS}, v62, v65, s[6:7]")
    g("s_waitcnt lgkmcnt(0)")
    g("s_barrier")
    g.stamp(3)

    def issue(sm, r):
        g(f"s_and_b32 s{sOff}, s{sm+r}, s{sMask}")
        g(f"s_add_u32 m0, s{sRing}, {r*2048}")
        g(f"s_lshl_b32 s{sOff}, s{sOff}, 3")
        g(f"buffer_load_dwordx4 v{vDma0}, {s(X,4)}, s{sOff} offen lds")
        g(f"buffer_load_dwordx4 v{vDma1}, {s(X,4)}, s{sOff} offen offset:1024 lds")

    def opaddr():
        g(f"v_lshrrev_b32 v{I1}, 22, v{I1}")
        g(f"v_lshrrev_b32 v{I2}, 22, v{I2}")
        g(f"v_mad_u32_u24 v{vEa1}, v{I1}, v{vMul1}, v{vB1}")
        g(f"v_mad_u32_u24 v{vEa2}, v{I1}, v{vMul2}, v{vB2}")
        g(f"v_mad_u32_u24 v{vSh}, v{I2}, v{vMulS}, v{vBS}")

    g.c("================ first rows, then wait for everybody's payload")
    g(f"ds_read_b128 {v(M4,4)}, v{vMetaA}")
    g(f"ds_read_b32 v{I1}, v{vM1}")
    g(f"ds_read_b32 v{I2}, v{vM2}")
    g(f"s_cmp_lt_u32 s{sRem}, {R}")
    g("s_cbranch_scc1 L_short")
    g("s_waitcnt lgkmcnt(2)")
    for r in range(4):
        g(f"v_readfirstlane_b32 s{sMa+r}, v{M4+r}")
    for r in range(R):
        issue(sMa, r)
    g(f"s_waitcnt vmcnt({2*R})")
    g("s_branch L_go")
    g.label("L_short")
    g("s_waitcnt vmcnt(0) lgkmcnt(0)")
    for r in range(4):
        g(f"v_readfirstlane_b32 s{sMa+r}, v{M4+r}")
    for r in range(R - 1):
        g(f"s_cmp_le_u32 s{sRem}, {r}")
        g("s_cbranch_scc1 L_go")
        issue(sMa, r)
    g.label("L_go")
    g("s_waitcnt lgkmcnt(0)")
    opaddr()
    g("s_barrier")
    g.stamp(9)
    g.cstamp(18)
    g(f"s_cmp_eq_u32 s{sRem}, 0")
    g("s_cbranch_scc1 L_round_done")
    g.c("================ sweep: groups of 4 edges")
    g.label("L_group")
    g(f"ds_read_b64 {v(SHO,2)}, v{vSh}")
    g(f"ds_read_b128 {v(EA1,4)}, v{vEa1}")
    g(f"ds_read_b128 {v(EA2,4)}, v{vEa2}")
    g(f"ds_read_b128 {v(M4,4)}, v{vMetaA} offset:16")
    g(f"ds_read_b32 v{I1}, v{vM1} offset:16")
    g(f"ds_read_b32 v{I2}, v{vM2} offset:16")
    g(f"v_add_u32 v{vMetaA}, 16, v{vMetaA}")
    g(f"v_add_u32 v{vM1}, 16, v{vM1}")
    g(f"v_add_u32 v{vM2}, 16, v{vM2}")
    g("s_waitcnt lgkmcnt(0)")
    g(f"v_mfma_f32_16x16x16_bf16 {v(AC,4)}, {a_(aCG,2)}, {v(SHO,2)}, 0")
    for i in range(4):
        g(f"v_mfma_f32_16x16x32_bf16 {v(RW+4*i,4)}, {v(EA1,4)}, {a_(aWR+8*i,4)}, 0")
    for i in range(4):
        g(f"v_mfma_f32_16x16x32_bf16 {v(RW+4*i,4)}, {v(EA2,4)}, {a_(aWR+8*i+4,4)}, {v(RW+4*i,4)}")
    for r in range(4):
        g(f"v_readfirstlane_b32 s{sMb+r}, v{M4+r}")
    g(f"v_cvt_pk_bf16_f32 v{SHO}, v{AC}, v{AC+1}")
    g(f"v_cvt_pk_bf16_f32 v{SHO+1}, v{AC+2}, v{AC+3}")
    opaddr()
    for r in range(4):
        g.c(f"-- edge {r}")
        l1 = g.newlab()
        g(f"s_cmp_ge_u32 s{sRem}, {R}")
        g(f"s_cbranch_scc1 {l1}")
        g("s_waitcnt vmcnt(0)")
        g.label(l1)
        g(f"s_waitcnt vmcnt({2*(R-1)})")
        for i in range(4):
            g(f"ds_read_b64_tr_b16 {v(B+2*i,2)}, v{vTr} offset:{r*2048+i*256}")
        l2 = g.newlab()
        if R == 4:
            g("s_waitcnt lgkmcnt(0)")
        g(f"s_cmp_le_u32 s{sRem}, {R}")
        g(f"s_cbranch_scc1 {l2}")
        issue(sMb if r + R >= 4 else sMa, (r + R) % 4)
        g.label(l2)
        if R < 4:
            g("s_waitcnt lgkmcnt(0)")
        for i in range(4):
            g(f"v_mfma_f32_4x4x4_16b_bf16 {v(D+4*i,4)}, {v(SHO,2)}, {v(B+2*i,2)}, 0 cbsz:4 abid:{r}")
        g.nop(1)
        g(f"s_set_gpr_idx_on s{sMa+r}, gpr_idx(SRC2,DST)")
        x = r & 1
        for i in range(4):
            rw = RW + 4 * i + (r & ~1)
            for wp in range(2):
                g(f"v_pk_fma_f32 {v(acc(0,i,2*wp),2)}, {v(D+4*i+2*wp,2)}, {v(rw,2)}, {v(acc(0,i,2*wp),2)} op_sel:[0,{x},0] op_sel_hi:[1,{x},1]")
        g("s_set_gpr_idx_off")
        g(f"s_mov_b32 s{sMa+r}, s{sMb+r}")
        g(f"s_sub_u32 s{sRem}, s{sRem}, 1")
        g(f"s_cmp_eq_u32 s{sRem}, 0")
        g(f"s_cbranch_scc{1 if r < 3 else 0} {'L_round_done' if r < 3 else 'L_group'}")
    g.label("L_round_done")
    g(f"s_add_u32 s{sRound}, s{sRound}, 1")
    g(f"s_cmp_lg_u32 s{sMore}, 0")
    g("s_cbranch_scc1 L_scan")
    g.stamp(4)
    g.cstamp(19)

    g.c("================ W fragments -> AGPRs; agg image -> LDS")
    g(f"s_lshl_b32 s{sT}, s{sWV}, 14")
    g(f"s_add_u32 s{sT}, s{sT}, {WS_WF}")
    g(f"v_lshlrev_b32 v16, 4, v{vLane}")
    g(f"v_add_u32 v16, s{sT}, v16")
    for ks in range(16):
        g(f"buffer_load_dwordx4 {a_(aW+4*ks,4)}, v16, {s(WS,4)}, 0 offen offset:{(ks%4)*1024}")
        if ks % 4 == 3:
            g(f"v_add_u32 v16, 4096, v16")
    g(f"v_mul_u32_u24 v16, 320, v{vLane}")
    g(f"v_lshrrev_b32 v17, 2, v{vLane}")
    g(f"v_lshl_add_u32 v16, v17, 3, v16")
    for k in range(5):
        g(f"s_lshl_b32 s{sT}, s{sSlot+k}, 3")
        g(f"v_add_u32 v{17+k}, s{sT}, v16")
    t = 0
    for k in range(5):
        for i in range(4):
            p = 24 + 2 * t
            t += 1
            g(f"v_cvt_pk_bf16_f32 v{p}, v{acc(k,i,0)}, v{acc(k,i,1)}")
            g(f"v_cvt_pk_bf16_f32 v{p+1}, v{acc(k,i,2)}, v{acc(k,i,3)}")
    vG0, vG1, vO, vSw, vSr = 2, 3, 4, 5, 6
    g(f"v_lshrrev_b32 v70, 5, v{vLane}")
    g(f"v_mul_u32_u24 v71, 2576, v70")
    g(f"v_bfe_u32 v72, v{vLane}, 2, 2")
    g(f"v_mul_u32_u24 v74, 320, v72")
    g(f"v_bfe_u32 v73, v{vLane}, 4, 1")
    g(f"v_lshl_add_u32 v71, v73, 5, v71")
    g(f"v_and_b32 v73, 3, v{vLane}")
    g(f"v_lshl_add_u32 v71, v73, 3, v71")
    g(f"v_add_u32 v{vG0}, v71, v74")
    g(f"v_add_u32 v{vG1}, {8*5152}, v{vG0}")
    g(f"s_mul_i32 s{sT}, s{sWV}, 5120")
    g(f"s_add_u32 s{sT}, s{sT}, {STG}")
    g(f"v_and_b32 v74, 31, v{vLane}")
    g(f"v_mul_u32_u24 v74, 80, v74")
    g(f"v_lshl_add_u32 v74, v70, 3, v74")
    g(f"v_add_u32 v{vSw}, s{sT}, v74")
    g(f"v_lshrrev_b32 v74, 2, v{vLane}")
    g(f"v_mul_u32_u24 v74, 80, v74")
    g(f"v_lshl_add_u32 v74, v73, 4, v74")
    g(f"v_add_u32 v{vSr}, s{sT}, v74")
    g(f"v_lshrrev_b32 v74, 4, v{vLane}")
    g(f"v_lshlrev_b32 v74, 19, v74")
    g(f"v_lshl_add_u32 v74, v72, 9, v74")
    g(f"v_lshl_add_u32 v74, v73, 4, v74")
    g(f"s_lshl_b32 s{sT}, s{sB}, 11")
    g(f"s_lshl_b32 s{sN}, s{sWV}, 6")
    g(f"s_add_u32 s{sT}, s{sT}, s{sN}")
    g(f"v_add_u32 v{vO}, s{sT}, v74")
    g("s_barrier")
    g.stamp(5)
    t = 0
    for k in range(5):
        for i in range(4):
            p = 24 + 2 * t
            t += 1
            g(f"ds_write_b64 v{17+k}, {v(p,2)} offset:{i*20608}")
    g("s_waitcnt lgkmcnt(0)")
    g("s_barrier")
    g.stamp(6)
    g.cstamp(16)
    g.c("================ GEMM: out^T tile = W^T (A) x agg^T (B)")
    FB = [16, 32]
    DD = [48, 64]
    PK = [80, 88]
    OB = [96, 104]
    chunks = [(t, c) for t in range(5) for c in range(4)]

    def rd(n):
        t, c = chunks[n]
        for kk in range(4):
            ks = 4 * c + kk
            base = vG0 if ks < 8 else vG1
            for tt in range(2):
                g(f"ds_read_b64_tr_b16 {v(FB[n%2]+4*kk+2*tt,2)}, v{base} offset:{(ks%8)*5152 + tt*1288 + t*64}")

    def epi1(t):
        d, p, ob = DD[t % 2], PK[t % 2], OB[t % 2]
        for q in range(8):
            g(f"v_cvt_pk_bf16_f32 v{p+q}, v{d+2*q}, v{d+2*q+1}")
        for a in range(4):
            g(f"ds_write_b64 v{vSw}, {v(p+2*a,2)} offset:{2560*(t%2)+16*a}")
        for hf in range(2):
            g(f"ds_read_b128 {v(ob+4*hf,4)}, v{vSr} offset:{2560*(t%2)+1280*hf}")

    def epi2(t):
        ob = OB[t % 2]
        for hf in range(2):
            if not (o.nostore and t < 4):
                g(f"buffer_store_dwordx4 {v(ob+4*hf,4)}, v{vO}, {s(OUT,4)}, 0 offen{o.stflag}")
            g(f"v_add_u32 v{vO}, {4<<19}, v{vO}")
    PD = o.gdist
    NBUF = 8
    def rdj(j):
        t, ks = divmod(j, 16)
        base = vG0 if ks < 8 else vG1
        for tt in range(2):
            g(f"ds_read_b64_tr_b16 {v(16+4*(j%NBUF)+2*tt,2)}, v{base} offset:{(ks%8)*5152 + tt*1288 + t*64}")
    for j in range(PD):
        rdj(j)
    g("s_waitcnt vmcnt(0)")
    cv = []
    for j in range(80):
        t, ks = divmod(j, 16)
        g(f"s_waitcnt lgkmcnt({2*min(PD-1, 79-j)})")
        cin = "0" if ks == 0 else v(DD[t % 2], 16)
        g(f"v_mfma_f32_32x32x16_bf16 {v(DD[t%2],16)}, {a_(aW+4*ks,4)}, {v(16+4*(j%NBUF),4)}, {cin}")
        if j + PD < 80:
            rdj(j + PD)
        if t > 0:
            d, p, ob = DD[(t-1) % 2], PK[(t-1) % 2], OB[(t-1) % 2]
            so = 2560 * ((t-1) % 2)
            if 3 <= ks <= 6:
                a = ks - 3
                g(f"v_cvt_pk_bf16_f32 v{p+2*a}, v{d+4*a}, v{d+4*a+1}")
                g(f"v_cvt_pk_bf16_f32 v{p+2*a+1}, v{d+4*a+2}, v{d+4*a+3}")
                g(f"ds_write_b64 v{vSw}, {v(p+2*a,2)} offset:{so+16*a}")
            if ks in (7, 8):
                hf = ks - 7
                g(f"ds_read_b128 {v(ob+4*hf,4)}, v{vSr} offset:{so+1280*hf}")
            if ks == 15:
                assert PD <= 7
                epi2(t - 1)
    g.nop(12)
    epi1(4)
    g("s_waitcnt lgkmcnt(0)")
    epi2(4)
    if o.stamps:
        g.stamp(10)
        g.cstamp(17)
        g("s_waitcnt vmcnt(0)")
        g.stamp(7)
        g(f"s_lshl_b32 s{sT}, s{sB}, 3")
        g(f"s_add_u32 s{sT}, s{sT}, s{sWV}")
        g(f"s_lshl_b32 s{sT}, s{sT}, 8")
        g(f"s_add_u32 s{sT}, s{sT}, {WS_STAMP}")
        g(f"v_lshlrev_b32 v16, 2, v{vLane}")
        g(f"v_add_u32 v16, s{sT}, v16")
        g(f"buffer_store_dword v{vStamp}, v16, {s(WS,4)}, 0 offen")
    g.label("L_end")
    g("s_endpgm")
    return g.L


def k1geo(o):
    nb = 256 // o.k1s
    return nb, nb * 128, 2 * nb * 128, 64 * o.k1s


def build_k1(o):
    g = Gen(False)
    NB, SHI, CNT, NSORT = k1geo(o)
    K1_BASE = NSORT + 16
    nwg = K1_BASE + o.k1pf
    sf = o.k1st

    def st(i):
        if o.stamps:
            g("s_memrealtime s[36:37]")
            g("s_waitcnt lgkmcnt(0)")
            g(f"v_writelane_b32 v47, s36, {i}")
    g(f"s_cmp_ge_u32 s2, {nwg}")
    g("s_cbranch_scc1 K_end")
    g("s_load_dwordx16 s[16:31], s[0:1], 0")
    g("s_load_dwordx2 s[32:33], s[0:1], 80")
    g(f"s_cmp_ge_u32 s2, {NSORT}")
    g("s_cbranch_scc1 K_weights")
    g.c("---- sorter: chunk c = s2&63 = edges [2500c, +2500), buckets [NB*(s2>>6), +NB); thread t<625 takes 4 edges")
    g("s_and_b32 s38, s2, 63")
    g("s_lshr_b32 s39, s2, 6")
    g(f"s_mul_i32 s39, s39, {NB}")
    g("s_mul_i32 s3, s38, 10000")
    g("v_lshlrev_b32 v1, 4, v0")
    g("v_add_u32 v2, s3, v1")
    g("v_lshlrev_b32 v3, 1, v2")
    g("s_mov_b32 s14, 625")
    g("v_cmp_gt_u32 s[34:35], s14, v0")
    g("v_mov_b32 v47, 0")
    g("s_waitcnt lgkmcnt(0)")
    st(0)
    srd(g, 4, 20, E * 4)
    g(f"buffer_load_dwordx4 v[4:7], v2, s[4:7], 0 offen{o.k1ld}")
    srd(g, 8, 18, E * 4)
    g(f"buffer_load_dwordx4 v[8:11], v2, s[8:11], 0 offen{o.k1ld}")
    srd(g, 40, 22, E * 8)
    g(f"buffer_load_dwordx4 v[32:35], v3, s[40:43], 0 offen{o.k1shld}")
    g(f"buffer_load_dwordx4 v[36:39], v3, s[40:43], 0 offen offset:16{o.k1shld}")
    srd(g, 12, 32, WS_BYTES)
    g.c("fill the cell image with 0xFFFFFFFF, zero the counters")
    for k in range(4):
        g(f"v_mov_b32 v{12+k}, -1")
    npc = NB * 8
    full, rest = divmod(npc, 640)
    for i in range(full):
        g(f"ds_write_b128 v1, v[12:15] offset:{10240*i}")
    g(f"s_movk_i32 s36, {rest}")
    g("v_cmp_gt_u32 s[44:45], s36, v0")
    g(f"s_movk_i32 s54, {NB}")
    g("v_cmp_gt_u32 vcc, s54, v0")
    g("v_mov_b32 v16, 0")
    g("v_lshlrev_b32 v3, 2, v0")
    g("s_mov_b64 exec, s[44:45]")
    g(f"ds_write_b128 v1, v[12:15] offset:{10240*full}")
    g("s_mov_b64 exec, vcc")
    g(f"v_add_u32 v3, {CNT}, v3")
    g(f"ds_write_b32 v3, v16")
    g("s_mov_b64 exec, -1")
    g("v_mov_b32 v18, 1")
    g("v_lshlrev_b32 v19, 22, v0")
    g("v_lshrrev_b32 v2, 3, v0")
    g("v_add_u32 v2, s39, v2")
    g("v_lshlrev_b32 v2, 6, v2")
    g("v_add_u32 v2, s38, v2")
    g("v_and_b32 v3, 7, v0")
    g("v_lshlrev_b32 v3, 4, v3")
    g("v_lshl_add_u32 v17, v2, 8, v3")
    g(f"v_add_u32 v17, {WS_SHC}, v17")
    g("v_lshl_add_u32 v2, v2, 7, v3")
    g(f"s_mov_b32 s3, {CNT}")
    g("s_waitcnt lgkmcnt(0)")
    g("s_barrier")
    st(1)
    g("s_waitcnt vmcnt(3)")
    st(2)

    def eat():
        g.c("touch this workgroup's share of edge_attr (Infinity Cache warm-up for the main kernel)")
        per = E * 32 // NSORT
        srd(g, 4, 24, E * 32)
        g(f"s_mul_i32 s55, s2, {per}")
        g("v_add_u32 v14, s55, v1")
        for i in range(0, per, 10240):
            g(f"buffer_load_dwordx4 v[40:43], v14, s[4:7], 0 offen")
            if i + 10240 < per:
                g("v_add_u32 v14, 10240, v14")
    MK = [46, 48, 50, 52]
    for k in range(4):
        g(f"v_and_b32 v{20+k}, 255, v{4+k}")
        g(f"v_subrev_u32 v{20+k}, s39, v{20+k}")
        g(f"v_cmp_gt_u32 vcc, s54, v{20+k}")
        g(f"v_lshl_add_u32 v{24+k}, v{20+k}, 2, s3")
        g(f"s_and_b64 s[{MK[k]}:{MK[k]+1}], vcc, s[34:35]")
        g(f"s_mov_b64 exec, s[{MK[k]}:{MK[k]+1}]")
        g(f"ds_add_rtn_u32 v{28+k}, v{24+k}, v18")
        g("s_mov_b64 exec, -1")
    g("s_waitcnt vmcnt(2)")
    for k in range(4):
        g(f"v_bfe_u32 v{4+k}, v{4+k}, 8, 6")
        g(f"v_min_u32 v{4+k}, 47, v{4+k}")
        g(f"v_and_b32 v{8+k}, 0x3fff, v{8+k}")
        g(f"v_lshl_or_b32 v{4+k}, v{8+k}, 6, v{4+k}")
        g(f"v_add_u32 v{8+k}, {k<<20}, v19")
        g(f"v_or_b32 v{4+k}, v{4+k}, v{8+k}")
    g("v_mov_b32 v12, -2")
    g("s_waitcnt lgkmcnt(0)")
    for k in range(4):
        g(f"v_cmp_gt_u32 vcc, 31, v{28+k}")
        g(f"v_min_u32 v{28+k}, 31, v{28+k}")
        g(f"v_lshlrev_b32 v{24+k}, 7, v{20+k}")
        g(f"v_cndmask_b32 v{4+k}, v12, v{4+k}, vcc")
        g(f"v_lshl_add_u32 v{8+k}, v{28+k}, 2, v{24+k}")
        g(f"s_mov_b64 exec, s[{MK[k]}:{MK[k]+1}]")
        g(f"ds_write_b32 v{8+k}, v{4+k}")
        g("s_mov_b64 exec, -1")
        g(f"v_lshl_add_u32 v{24+k}, v{28+k}, 3, v{24+k}")
    g("s_waitcnt vmcnt(0)")
    if o.k1ea == 2:
        eat()
    for k in range(4):
        lab = g.newlab("K")
        g(f"v_cmp_gt_u32 vcc, 16, v{28+k}")
        g(f"s_and_b64 exec, vcc, s[{MK[k]}:{MK[k]+1}]")
        g(f"ds_write_b64 v{24+k}, v[{32+2*k}:{33+2*k}] offset:{SHI}")
        g(f"s_andn2_b64 exec, s[{MK[k]}:{MK[k]+1}], vcc")
        g(f"s_cbranch_execz {lab}")
        g.c("ranks >= 16 go straight to the second line of the sh cell")
        g(f"v_add_u32 v13, s39, v{20+k}")
        g(f"v_lshlrev_b32 v13, 6, v13")
        g(f"v_add_u32 v13, s38, v13")
        g(f"v_lshlrev_b32 v13, 8, v13")
        g(f"v_lshl_add_u32 v13, v{28+k}, 3, v13")
        g(f"v_add_u32 v13, {WS_SHC}, v13")
        g(f"buffer_store_dwordx2 v[{32+2*k}:{33+2*k}], v13, s[12:15], 0 offen")
        g.label(lab)
        g("s_mov_b64 exec, -1")
    st(3)
    g("s_waitcnt lgkmcnt(0)")
    g("s_barrier")
    nr = full + 1
    for i in range(nr):
        g(f"ds_read_b128 v[{48+8*i}:{51+8*i}], v1 offset:{10240*i}")
        g(f"ds_read_b128 v[{52+8*i}:{55+8*i}], v1 offset:{SHI+10240*i}")
    for i in range(nr):
        if i == full:
            g("s_mov_b64 exec, s[44:45]")
            g("s_cbranch_execz K_sdone")
        g(f"s_waitcnt lgkmcnt({2*(nr-i)-1})")
        g(f"buffer_store_dwordx4 v[{48+8*i}:{51+8*i}], v2, s[12:15], 0 offen{sf}")
        g(f"s_waitcnt lgkmcnt({2*(nr-i)-2})")
        g(f"buffer_store_dwordx4 v[{52+8*i}:{55+8*i}], v17, s[12:15], 0 offen{sf}")
        if i < full:
            g(f"v_add_u32 v2, {80*8192}, v2")
            g(f"v_add_u32 v17, {80*16384}, v17")
    g.label("K_sdone")
    if o.stamps:
        g("s_mov_b64 exec, -1")
        st(5)
        g("s_waitcnt vmcnt(0)")
        st(6)
        g("s_cmp_ge_u32 s2, 64")
        g("s_cbranch_scc1 K_end")
        g("s_mul_i32 s36, s2, 2560")
        g(f"s_add_u32 s36, s36, {WS_STAMP + 2048*256}")
        g("v_lshlrev_b32 v1, 2, v0")
        g("v_add_u32 v1, s36, v1")
        g("buffer_store_dword v47, v1, s[12:15], 0 offen")
    g("s_branch K_end")
    g.label("K_weights")
    if o.k1pf:
        g(f"s_cmp_ge_u32 s2, {K1_BASE}")
        g("s_cbranch_scc1 K_pf")
    g.c("---- weight fragments: wave gw<128: W frag (j=gw>>4, ks=gw&15); gw<136: w_r frag f=gw-128; gw<138: cg")
    g("v_lshrrev_b32 v1, 6, v0")
    g("v_and_b32 v2, 63, v0")
    g("v_readfirstlane_b32 s3, v1")
    g(f"s_sub_u32 s34, s2, {NSORT}")
    g("s_mul_i32 s34, s34, 10")
    g("s_add_u32 s3, s3, s34")
    g("s_cmp_ge_u32 s3, 137")
    g("s_cbranch_scc1 K_end")
    g("s_waitcnt lgkmcnt(0)")
    srd(g, 12, 32, WS_BYTES)
    g("s_lshl_b32 s34, s3, 10")
    g(f"s_add_u32 s34, s34, {WS_WF}")
    g("v_lshlrev_b32 v3, 4, v2")
    g("v_add_u32 v3, s34, v3")
    g("s_cmp_ge_u32 s3, 136")
    g("s_cbranch_scc1 K_cg")
    g("s_cmp_ge_u32 s3, 128")
    g("s_cbranch_scc1 K_wr")
    srd(g, 4, 30, 131072)
    g("s_and_b32 s34, s3, 15")
    g("s_lshl_b32 s34, s34, 13")
    g("s_lshr_b32 s35, s3, 4")
    g("s_lshl_b32 s35, s35, 6")
    g("s_add_u32 s34, s34, s35")
    g("v_lshrrev_b32 v4, 5, v2")
    g("v_lshlrev_b32 v4, 12, v4")
    g("v_and_b32 v5, 31, v2")
    g("v_lshl_add_u32 v4, v5, 1, v4")
    g("v_add_u32 v4, s34, v4")
    g("s_branch K_wgo")
    g.label("K_wr")
    srd(g, 4, 28, 8192)
    g("s_sub_u32 s34, s3, 128")
    g("s_lshl_b32 s34, s34, 6")
    g("v_bfe_u32 v4, v2, 4, 1")
    g("v_lshlrev_b32 v4, 12, v4")
    g("v_lshrrev_b32 v5, 5, v2")
    g("v_lshl_add_u32 v4, v5, 5, v4")
    g("v_and_b32 v5, 15, v2")
    g("v_lshl_add_u32 v4, v5, 1, v4")
    g("v_add_u32 v4, s34, v4")
    g.label("K_wgo")
    for q in range(8):
        g(f"buffer_load_ushort v{16+q}, v4, s[4:7], 0 offen offset:{q*512}")
    g("s_branch K_wst")
    g.label("K_cg")
    g.c("lane l: cg[u=l&3][v=0..3][w=l>>4]")
    srd(g, 4, 26, 128)
    g("v_and_b32 v4, 3, v2")
    g("v_lshlrev_b32 v4, 5, v4")
    g("v_lshrrev_b32 v5, 4, v2")
    g("v_lshl_add_u32 v4, v5, 1, v4")
    for q in range(4):
        g(f"buffer_load_ushort v{16+q}, v4, s[4:7], 0 offen offset:{q*8}")
    g("v_lshlrev_b32 v3, 3, v2")
    g(f"v_add_u32 v3, {WS_CGF}, v3")
    g("s_waitcnt vmcnt(0)")
    for q in range(2):
        g(f"v_lshl_or_b32 v{8+q}, v{17+2*q}, 16, v{16+2*q}")
    g("buffer_store_dwordx2 v[8:9], v3, s[12:15], 0 offen")
    g("s_branch K_end")
    g.label("K_wst")
    g("s_waitcnt vmcnt(0)")
    for q in range(4):
        g(f"v_lshl_or_b32 v{8+q}, v{17+2*q}, 16, v{16+2*q}")
    g("buffer_store_dwordx4 v[8:11], v3, s[12:15], 0 offen")
    if o.k1pf:
        g("s_branch K_end")
        g.label("K_pf")
        g.c("---- pull the first x rows into every XCD's L2 (workgroups 8 apart share an XCD; speed only)")
        g(f"s_sub_u32 s3, s2, {K1_BASE}")
        g("s_lshr_b32 s3, s3, 3")
        g("s_mul_i32 s3, s3, 10240")
        g("v_lshlrev_b32 v1, 4, v0")
        g("v_add_u32 v1, s3, v1")
        g("s_waitcnt lgkmcnt(0)")
        srd(g, 4, 16, N * 2048)
        step = (o.k1pf // 8) * 10240
        for i in range(o.k1steps):
            g(f"buffer_load_dwordx4 v[{4+4*(i%8)}:{7+4*(i%8)}], v1, s[4:7], 0 offen")
            g(f"v_add_u32 v1, {step}, v1")
    g.label("K_end")
    g("s_endpgm")
    return g.L


HEADER = open("/code/" + NAME + ".s.ref").read().split("; Override launch")[0]


def kd(name, vg, sg, acc):
    return f""".section .rodata,"a"
.p2align 6
.amdhsa_kernel {name}
  .amdhsa_next_free_vgpr {vg}
  .amdhsa_next_free_sgpr {sg}
  .amdhsa_accum_offset {acc}
  .amdhsa_group_segment_fixed_size 0
  .amdhsa_kernarg_size 88
  .amdhsa_user_sgpr_count 2
  .amdhsa_user_sgpr_kernarg_segment_ptr 1
  .amdhsa_system_sgpr_workgroup_id_x 1
  .amdhsa_float_denorm_mode_32 3
.end_amdhsa_kernel
"""


def emit(o):
    out = HEADER
    out += f"; @launch kernel=bin_edges_kernel grid=({k1geo(o)[3]+16+o.k1pf},1,1) block=(640,1,1) lds={k1geo(o)[2]+1024}\n"
    out += f"; @launch kernel={NAME}_kernel grid=(256,1,1) block=(512,1,1) lds={LDS_BYTES}\n"
    out += "; generated by dev/gen.py\n"
    out += '.amdgcn_target "amdgcn-amd-amdhsa--gfx950"\n.text\n'
    out += f".globl bin_edges_kernel\n.p2align 8\n.type bin_edges_kernel,@function\nbin_edges_kernel:\n"
    out += "\n".join(build_k1(o)) + "\n"
    out += f".globl {NAME}_kernel\n.p2align 8\n.type {NAME}_kernel,@function\n{NAME}_kernel:\n"
    out += "\n".join(build(o)) + "\n"
    out += kd("bin_edges_kernel", 80, 56, 80)
    out += kd(NAME + "_kernel", 256, 102, 160)
    open(o.o, "w").write(out)


if __name__ == "__main__":
    ap = argparse.ArgumentParser()
    ap.add_argument("-o", default="/code/" + NAME + ".s")
    ap.add_argument("--stamps", action="store_true")
    ap.add_argument("--k1pf", type=int, default=0, help="extra K1 workgroups (multiple of 8) that warm every L2")
    ap.add_argument("--k1steps", type=int, default=0)
    ap.add_argument("--k1s", type=int, default=4)
    ap.add_argument("--k1ea", type=int, default=0)
    ap.add_argument("--k1st", default=" sc1")
    ap.add_argument("--k1ld", default=" nt")
    ap.add_argument("--k1shld", default="")
    ap.add_argument("--eald", default="")
    ap.add_argument("--stflag", default=" sc1")
    ap.add_argument("--R", type=int, default=3)
    ap.add_argument("--nostore", action="store_true")
    ap.add_argument("--gdist", type=int, default=6)
    ap.add_argument("--pay", default="0,1,2,3")
    emit(ap.parse_args())
```

```python
import sys, argparse

NAME = "standalone__tensor_product_equiv_mace__graph"
N, E = 10000, 160000

RING = 0
POOLCAP = 1024
PEA = 65536
PSH = PEA + POOLCAP * 32
META = PSH + POOLCAP * 8
HIST = META + (POOLCAP + 64) * 4
DEG = HIST + 60 * 64
POOL = HIST + 59 * 64
OFF = HIST + 4096
ZERO = OFF + 4096
FLAG = ZERO + 16
PIMG = 0
WRIMG = 32768
PCNT = FLAG + 16
CAND = PCNT + 256
STG = 82432
LDS_BYTES = 128000
assert CAND + 8192 <= LDS_BYTES and CAND % 16 == 0
assert FLAG + 16 <= LDS_BYTES and META % 16 == 0 and HIST % 16 == 0 and STG + 8 * 5120 <= LDS_BYTES
WS_EP = 0
WS_FW = 4096
WS_WF = 1 << 20
WS_STAMP = 4 << 20
WS_CELLS = 8 << 20
ROWB = 64 * 384 + 128
WS_EXT = 16 << 20
WS_BYTES = 20 << 20
assert WS_CELLS + 256 * ROWB <= WS_EXT

sB, sWV = 2, 3
X, SRC, DST, SH, EA, OUT, WS = 8, 12, 16, 20, 24, 28, 32
sM = [36, 38, 40, 42]
sPB, sQ, sDm, sNomatch = 44, 45, 46, 47
sTag, sCand, sPM, sWfl = 48, 49, 50, 83
WO, WR, CG = 88, 92, 96
sKskip, sT, sN, sC = 52, 53, 54, 55
sSlot = 56
sBase, sRem, sRing = 61, 62, 63
sMa, sMb = 64, 68
sOff, sRound, sMore, sCnt, sL, sMask = 76, 77, 78, 79, 80, 82
sKey = 84
sAddr, sLimit = 64, 65

vLane, vDma0, vDma1, vTr, vEa1, vEa2, vMul1, vMul2, vSh, vMulS, vOwner, vStamp, vMetaA = range(1, 14)
ACC = 80
def acc(k, i, w): return ACC + 16 * k + 4 * i + w
aWR, aW = 0, 32
vCG = 14


class Gen:
    def __init__(self, stamps=False):
        self.L = []
        self.stamps = stamps
        self.nlab = 0

    def __call__(self, s):
        self.L.append("    " + s)

    def label(self, s):
        self.L.append(s + ":")

    def c(self, s):
        self.L.append("    ; " + s)

    def newlab(self, p="L"):
        self.nlab += 1
        return f"{p}_{self.nlab}"

    def nop(self, n):
        while n > 0:
            k = min(n, 16)
            self(f"s_nop {k-1}")
            n -= k

    def cstamp(self, i):
        if not self.stamps:
            return
        self(f"s_memtime s[4:5]")
        self("s_waitcnt lgkmcnt(0)")
        self(f"v_writelane_b32 v{vStamp}, s4, {i}")

    def stamp(self, i):
        if not self.stamps:
            return
        self(f"s_memrealtime s[4:5]")
        self("s_waitcnt lgkmcnt(0)")
        self(f"v_writelane_b32 v{vStamp}, s4, {i}")


def srd(g, d, ptr, nbytes):
    g(f"s_mov_b32 s{d}, s{ptr}")
    g(f"s_mov_b32 s{d+1}, s{ptr+1}")
    g(f"s_mov_b32 s{d+2}, {nbytes}")
    g(f"s_mov_b32 s{d+3}, 0x00020000")


def v(a, n=1):
    return f"v{a}" if n == 1 else f"v[{a}:{a+n-1}]"


def a_(a, n=1):
    return f"a{a}" if n == 1 else f"a[{a}:{a+n-1}]"


def s(a, n=1):
    return f"s{a}" if n == 1 else f"s[{a}:{a+n-1}]"


def build(o):
    g = Gen(o.stamps)
    R = o.R
    cM, cE, cX, cK, cR = 16, 20, 24, 28, 32
    vL2, vP16, vP4, vCand = 36, 37, 38, 39
    pfs = [int(x) for x in o.pf.split(",")]
    vPf = 79

    def pf(n):
        for _ in range(n):
            g(f"buffer_load_dwordx4 {v(ACC+76,4)}, v{vPf}, {s(X,4)}, 0 offen")
            g(f"v_add_u32 v{vPf}, {256*1024}, v{vPf}")
    g(f"s_cmp_ge_u32 s{sB}, 256")
    g("s_cbranch_scc1 L_end")
    g("s_load_dwordx2 s[84:85], s[0:1], 80")
    g("s_load_dwordx16 s[64:79], s[0:1], 0")
    g("s_load_dwordx2 s[80:81], s[0:1], 64")
    g(f"v_and_b32 v{vLane}, 63, v0")
    g(f"v_lshrrev_b32 v60, 6, v0")
    g(f"v_mov_b32 v{vStamp}, 0")
    g(f"v_readfirstlane_b32 s{sWV}, v60")
    g(f"s_and_b32 s{sC}, s{sB}, 63")
    g(f"s_and_b32 s{sN}, s{sB}, 192")
    g(f"s_mul_i32 s{sT}, s{sC}, 10000")
    g(f"v_lshlrev_b32 v63, 4, v0")
    g(f"v_add_u32 v60, s{sT}, v63")
    g(f"s_add_u32 s{sT}, s{sT}, 8192")
    g(f"v_lshl_add_u32 v61, v0, 2, s{sT}")
    g(f"v_lshlrev_b32 v64, 1, v60")
    g(f"v_lshlrev_b32 v65, 1, v61")
    g(f"s_lshl_b32 s{sT}, s{sN}, 1")
    g(f"v_mov_b32 v62, s{sT}")
    g("s_waitcnt lgkmcnt(0)")
    pD, pS, pH = 16, 24, 32
    srd(g, DST, 68, E * 4)
    g(f"buffer_load_dwordx4 {v(pD,4)}, v60, {s(DST,4)}, 0 offen{o.k1ld}")
    g(f"buffer_load_dword v{pD+4}, v61, {s(DST,4)}, 0 offen{o.k1ld}")
    srd(g, SRC, 66, E * 4)
    g(f"buffer_load_dwordx4 {v(pS,4)}, v60, {s(SRC,4)}, 0 offen{o.k1ld}")
    g(f"buffer_load_dword v{pS+4}, v61, {s(SRC,4)}, 0 offen{o.k1ld}")
    srd(g, WS, 84, WS_BYTES)
    g(f"buffer_load_dword v42, v62, {s(WS,4)}, 0 offen sc1")
    srd(g, SH, 70, E * 8)
    g(f"buffer_load_dwordx4 {v(pH,4)}, v64, {s(SH,4)}, 0 offen")
    g(f"buffer_load_dwordx4 {v(pH+4,4)}, v64, {s(SH,4)}, 0 offen offset:16")
    g(f"buffer_load_dwordx2 {v(pH+8,2)}, v65, {s(SH,4)}, 0 offen")
    g.stamp(0)
    g.c("---- LDS init: entry image = empty, counters, HIST, ZERO block, FLAG")
    for k in range(4):
        g(f"v_mov_b32 v{72+k}, -1")
    for i in range(4):
        g(f"ds_write_b128 v63, v[72:75] offset:{PIMG+8192*i}")
    g("v_mov_b32 v68, 0")
    g("v_mov_b32 v69, 0")
    g(f"v_lshlrev_b32 v60, 3, v0")
    g(f"v_add_u32 v60, {HIST}, v60")
    g("ds_write_b64 v60, v[68:69]")
    g(f"v_min_u32 v60, 35, v{vLane}")
    g(f"v_lshlrev_b32 v60, 3, v60")
    g(f"v_add_u32 v60, {ZERO}, v60")
    g("ds_write_b64 v60, v[68:69]")
    srd(g, X, 64, N * 2048)
    srd(g, EA, 72, E * 32)
    srd(g, OUT, 80, N * 2048)
    srd(g, CG, 74, 128)
    srd(g, WR, 76, 8192)
    srd(g, WO, 78, 131072)
    g(f"s_lshl_b32 s{sRing}, s{sWV}, 13")
    g(f"s_mov_b32 s{sKskip}, 0")
    g(f"s_mov_b32 s{sRound}, 0")
    g(f"s_mov_b32 s{sMask}, 0x3fff00")
    g(f"s_mov_b32 s{sWfl}, {WS_BYTES}")
    g(f"s_lshl_b32 s{sCand}, s{sWV}, 10")
    g(f"s_add_u32 s{sCand}, s{sCand}, {CAND}")
    g(f"s_movk_i32 s{sT}, 452")
    g(f"v_cmp_gt_u32 {s(sPM,2)}, s{sT}, v0")
    g(f"v_lshlrev_b32 v43, 22, v0")
    g(f"v_lshlrev_b32 v59, 20, v0")
    g("v_mov_b32 v58, 1")
    g("s_waitcnt lgkmcnt(0)")
    g("s_barrier")
    g.c("---- weights: cg operand, w_r image, this wave's share of the w_out transposition")
    g(f"v_and_b32 v60, 3, v{vLane}")
    g(f"v_lshlrev_b32 v61, 5, v60")
    g(f"v_lshrrev_b32 v66, 4, v{vLane}")
    g(f"v_lshl_add_u32 v61, v66, 1, v61")
    for q in range(4):
        g(f"buffer_load_ushort v{44+q}, v61, {s(CG,4)}, 0 offen offset:{q*8}")
    g(f"s_lshl_b32 s{sT}, s{sWV}, 10")
    g(f"s_add_u32 m0, s{sT}, {WRIMG}")
    g(f"v_lshlrev_b32 v64, 4, v{vLane}")
    g(f"buffer_load_dwordx4 v64, {s(WR,4)}, s{sT} offen lds")
    nlate = 5
    g(f"s_lshr_b32 s{sT}, s{sB}, 3")
    g(f"s_lshl3_add_u32 s{sT}, s{sT}, s{sWV}")
    g(f"s_lshl_b32 s{sT}, s{sT}, 10")
    g(f"v_add_u32 v{vPf}, s{sT}, v64")
    pf(pfs[0])
    nlate += pfs[0]
    g.c("---- persistent per-lane constants")
    g(f"v_and_b32 v61, 7, v{vLane}")
    g(f"v_bfe_u32 v65, v{vLane}, 3, 1")
    g(f"v_lshlrev_b32 v65, 9, v65")
    g(f"v_lshl_add_u32 v65, v66, 7, v65")
    g(f"v_lshl_add_u32 v{vDma0}, v61, 4, v65")
    g(f"v_xor_b32 v61, 4, v61")
    g(f"v_lshl_add_u32 v{vDma1}, v61, 4, v65")
    g(f"v_bfe_u32 v60, v{vLane}, 2, 2")
    g(f"v_bfe_u32 v62, v{vLane}, 1, 1")
    g(f"v_lshl_add_u32 v62, v66, 1, v62")
    g(f"v_lshrrev_b32 v63, 1, v60")
    g(f"v_lshlrev_b32 v64, 2, v63")
    g(f"v_xor_b32 v62, v62, v64")
    g(f"v_and_b32 v64, 1, v60")
    g(f"v_lshl_add_u32 v62, v64, 3, v62")
    g(f"v_lshlrev_b32 v62, 4, v62")
    g(f"v_lshl_add_u32 v62, v63, 10, v62")
    g(f"v_and_b32 v64, 1, v{vLane}")
    g(f"v_lshl_add_u32 v62, v64, 3, v62")
    g(f"v_add_u32 v{vTr}, s{sRing}, v62")
    g(f"v_lshrrev_b32 v61, 5, v{vLane}")
    g(f"v_mov_b32 v63, 32")
    g(f"v_cmp_eq_u32 vcc, v60, v61")
    g(f"v_add_u32 v61, 2, v61")
    g(f"v_and_b32 v64, 3, v{vLane}")
    g(f"v_cndmask_b32 v{vMul1}, 0, v63, vcc")
    g(f"v_cmp_eq_u32 vcc, v60, v61")
    g(f"v_cmp_eq_u32 s[4:5], v64, v66")
    g(f"v_mov_b32 v65, 8")
    g(f"v_cndmask_b32 v{vMul2}, 0, v63, vcc")
    g(f"v_cndmask_b32 v{vMulS}, 0, v65, s[4:5]")
    CE = 70
    for k in range(3):
        g(f"v_add_u32 v61, {64*k}, v{vLane}")
        g(f"v_mul_u32_u24 v{73+k}, 2731, v61")
        g(f"v_lshrrev_b32 v{73+k}, 16, v{73+k}")
        g(f"v_lshlrev_b32 v61, 4, v61")
        g(f"v_lshl_add_u32 v{CE+k}, v{73+k}, 7, v61")
    g(f"s_lshl_b32 s{sPB}, s{sWV}, 12")
    g(f"s_lshl3_add_u32 s{sT}, s{sWV}, s{sN}")
    g(f"s_mul_i32 s{sQ}, s{sT}, {ROWB}")
    g(f"s_mul_i32 s{sDm}, s{sC}, 384")
    g(f"s_add_u32 s{sQ}, s{sQ}, s{sDm}")
    g(f"s_add_u32 s{sQ}, s{sQ}, {WS_CELLS}")
    g(f"s_movk_i32 s{sDm}, {ROWB-512}")
    for k in range(3):
        g(f"v_add_u32 v{61+k}, s{sPB}, v{CE+k}")
        g(f"v_mad_u32_u24 v{64+k}, v{73+k}, s{sDm}, v{CE+k}")
        g(f"v_add_u32 v{64+k}, s{sQ}, v{64+k}")
    g(f"s_lshl_b32 s{sQ}, s{sT}, 6")
    g(f"s_add_u32 s{sQ}, s{sQ}, s{sC}")
    g(f"s_lshl_b32 s{sQ}, s{sQ}, 7")
    g(f"s_add_u32 s{sQ}, s{sQ}, {WS_EXT}")
    g(f"v_lshrrev_b32 v68, 3, v{vLane}")
    g(f"s_lshl_b32 s{sOff}, s{sWV}, 5")
    g(f"s_add_u32 s{sOff}, s{sOff}, {PCNT}")
    g(f"v_lshl_add_u32 v67, v68, 2, s{sOff}")
    g.c("================ producer: bin this chunk's edges of the group's buckets")
    PB, PR = 48, 53
    PMK = [64, 66, 68, 70, 72]
    g(f"s_mov_b32 s{sT}, {PCNT}")
    g(f"s_waitcnt vmcnt({nlate+6})")
    g.stamp(11)
    for k in range(5):
        g(f"v_and_b32 v{PB+k}, 255, v{pD+k}")
        g(f"v_subrev_u32 v{PB+k}, s{sN}, v{PB+k}")
        g(f"v_cmp_gt_u32 {s(PMK[k],2)}, 64, v{PB+k}")
        g(f"v_lshl_add_u32 v60, v{PB+k}, 2, s{sT}")
        if k == 4:
            g(f"s_and_b64 {s(PMK[k],2)}, {s(PMK[k],2)}, {s(sPM,2)}")
        g(f"s_mov_b64 exec, {s(PMK[k],2)}")
        g(f"ds_add_rtn_u32 v{PR+k}, v60, v58")
        g("s_mov_b64 exec, -1")
    g(f"s_waitcnt vmcnt({nlate+4})")
    for k in range(5):
        g(f"v_bfe_u32 v{pD+k}, v{pD+k}, 8, 6")
        g(f"v_min_u32 v{pD+k}, 47, v{pD+k}")
        g(f"v_and_b32 v{pS+k}, 0x3fff, v{pS+k}")
        g(f"v_lshl_or_b32 v{pD+k}, v{pS+k}, 6, v{pD+k}")
        if k < 4:
            g(f"v_add_u32 v{pS+k}, {k<<20}, v43")
        else:
            g(f"v_add_u32 v{pS+k}, {2048<<20}, v59")
        g(f"v_or_b32 v{pD+k}, v{pD+k}, v{pS+k}")
        g(f"v_lshlrev_b32 v{PB+k}, 9, v{PB+k}")
    g("v_mov_b32 v59, -2")
    g(f"s_waitcnt vmcnt({nlate}) lgkmcnt(0)")
    g(f"v_readfirstlane_b32 s{sTag}, v42")
    for k in range(5):
        g(f"v_cmp_gt_u32 vcc, 31, v{PR+k}")
        g(f"v_min_u32 v{PR+k}, 31, v{PR+k}")
        g(f"v_lshl_add_u32 v{PB+k}, v{PR+k}, 4, v{PB+k}")
        g(f"v_cndmask_b32 v{pD+k}, v59, v{pD+k}, vcc")
        g(f"s_mov_b64 exec, {s(PMK[k],2)}")
        g(f"ds_write_b32 v{PB+k}, v{pD+k} offset:{PIMG}")
        g(f"ds_write_b64 v{PB+k}, {v(pH+2*k,2)} offset:{PIMG+8}")
        g("s_mov_b64 exec, -1")
    g(f"s_add_u32 s{sTag}, s{sTag}, 1")
    g("s_waitcnt lgkmcnt(0)")
    g("s_barrier")
    for k in range(3):
        g(f"ds_read_b128 {v(16+4*k,4)}, v{61+k} offset:{PIMG}")
    g("ds_read_b32 v67, v67")
    for k in range(3):
        g(f"s_waitcnt lgkmcnt({3-k})")
        g(f"v_mov_b32 v{17+4*k}, s{sTag}")
        g(f"buffer_store_dwordx4 {v(16+4*k,4)}, v{64+k}, {s(WS,4)}, 0 offen sc1")
    g("s_waitcnt lgkmcnt(0)")
    g("v_cmp_lt_u32 vcc, 23, v67")
    g("s_cbranch_vccz L_noup")
    g.c("cells with 24 or more entries also publish entries 24..31")
    g(f"v_and_b32 v60, 7, v{vLane}")
    g(f"v_lshlrev_b32 v60, 4, v60")
    g(f"v_lshl_add_u32 v69, v68, 9, v60")
    g(f"v_add_u32 v69, s{sPB}, v69")
    g(f"ds_read_b128 v[28:31], v69 offset:{PIMG+384}")
    g(f"v_lshl_add_u32 v69, v68, 13, v60")
    g(f"v_add_u32 v69, s{sQ}, v69")
    g("s_waitcnt lgkmcnt(0)")
    g(f"v_mov_b32 v29, s{sTag}")
    g("s_mov_b64 exec, vcc")
    g(f"buffer_store_dwordx4 v[28:31], v69, {s(WS,4)}, 0 offen sc1")
    g("s_mov_b64 exec, -1")
    g.label("L_noup")
    g.stamp(12)
    pf(pfs[1])
    g.c("---- waves 0,1: fragment gw = 2*chunk+wave of w_out (N-tile gw>>4, k-step gw&15), loads")
    g(f"s_cmp_ge_u32 s{sWV}, 2")
    g("s_cbranch_scc1 L_nowf")
    g(f"s_lshl1_add_u32 s{sPB}, s{sC}, s{sWV}")
    g(f"s_and_b32 s{sT}, s{sPB}, 15")
    g(f"s_lshl_b32 s{sT}, s{sT}, 13")
    g(f"s_lshr_b32 s{sOff}, s{sPB}, 4")
    g(f"s_lshl_b32 s{sOff}, s{sOff}, 6")
    g(f"s_add_u32 s{sT}, s{sT}, s{sOff}")
    g(f"v_lshrrev_b32 v60, 5, v{vLane}")
    g(f"v_lshlrev_b32 v60, 12, v60")
    g(f"v_and_b32 v61, 31, v{vLane}")
    g(f"v_lshl_add_u32 v60, v61, 1, v60")
    g(f"v_add_u32 v60, s{sT}, v60")
    for q in range(8):
        g(f"buffer_load_ushort v{32+q}, v60, {s(WO,4)}, 0 offen offset:{q*512}")
    g.label("L_nowf")
    vWb = 77
    g(f"v_lshrrev_b32 v60, 5, v{vLane}")
    g(f"v_bfe_u32 v61, v{vLane}, 2, 2")
    g(f"v_bfe_u32 v62, v{vLane}, 4, 1")
    g(f"v_and_b32 v63, 3, v{vLane}")
    g(f"v_lshlrev_b32 v{vWb}, 12, v62")
    g(f"v_lshl_add_u32 v{vWb}, v61, 9, v{vWb}")
    g(f"v_lshl_add_u32 v{vWb}, v60, 5, v{vWb}")
    g(f"v_lshl_add_u32 v{vWb}, v63, 3, v{vWb}")
    g(f"s_mul_i32 s{sT}, s{sB}, {ROWB}")
    g(f"s_mul_i32 s{sQ}, s{sWV}, 3072")
    g(f"s_add_u32 s{sT}, s{sT}, s{sQ}")
    g(f"s_add_u32 s{sT}, s{sT}, {WS_CELLS}")
    g(f"v_lshl_add_u32 v{CE}, v{vLane}, 4, s{sT}")
    g(f"s_lshl3_add_u32 s{sQ}, s{sB}, s{sWV}")
    g(f"s_lshl_b32 s{sQ}, s{sQ}, 10")
    g(f"s_add_u32 s{sQ}, s{sQ}, {WS_EXT}")
    g(f"s_mul_i32 s{sC}, s{sWV}, 20000")
    g(f"s_movk_i32 s{sDm}, 2500")
    for k in range(3):
        g(f"v_mul_u32_u24 v{73+k}, s{sDm}, v{73+k}")
        g(f"v_add_u32 v{73+k}, s{sC}, v{73+k}")
    for r in range(ACC, ACC + 76, 2):
        g(f"v_mov_b64 {v(r,2)}, 0")
    g.c("================ consumer: fetch this wave's entries until every tag matches")
    EN = [48, 52, 56, 40]
    g.stamp(13)
    for k in range(3):
        g(f"s_mov_b64 {s(sM[k],2)}, -1")
    g(f"s_mov_b32 s{sC}, 0")
    if o.prewait:
        g("s_waitcnt vmcnt(0)")
    g.stamp(14)
    g.label("L_poll")
    for k in range(3):
        lab = g.newlab()
        g(f"s_mov_b64 exec, {s(sM[k],2)}")
        g(f"s_cbranch_execz {lab}")
        g(f"buffer_load_dwordx4 {v(EN[k],4)}, v{CE}, {s(WS,4)}, 0 offen offset:{1024*k} sc1")
        g.label(lab)
    g("s_mov_b64 exec, -1")
    g("s_waitcnt vmcnt(0)")
    for k in range(3):
        g(f"v_cmp_ne_u32 {s(sM[k],2)}, s{sTag}, v{EN[k]+1}")
    g(f"s_or_b64 s[4:5], {s(sM[0],2)}, {s(sM[1],2)}")
    g(f"s_or_b64 s[4:5], s[4:5], {s(sM[2],2)}")
    g("s_cbranch_scc0 L_got")
    g(f"s_sleep {o.sleep}")
    g(f"s_add_u32 s{sC}, s{sC}, 1")
    g(f"s_cmp_lt_u32 s{sC}, 0x400000")
    g("s_cbranch_scc1 L_poll")
    g.label("L_got")
    g.stamp(1)
    g(f"v_lshl_or_b32 v{vCG}, v45, 16, v44")
    g(f"v_lshl_or_b32 v{vCG+1}, v47, 16, v46")
    lab = g.newlab()
    g(f"s_cmp_ge_u32 s{sWV}, 2")
    g(f"s_cbranch_scc1 {lab}")
    for q in range(4):
        g(f"v_lshl_or_b32 v{44+q}, v{33+2*q}, 16, v{32+2*q}")
    g(f"s_lshl_b32 s{sT}, s{sN}, 1")
    g(f"s_add_u32 s{sT}, s{sT}, s{sPB}")
    g(f"s_lshl2_add_u32 s{sWfl}, s{sT}, {WS_FW}")
    g(f"s_lshl_b32 s{sT}, s{sT}, 10")
    g(f"s_add_u32 s{sT}, s{sT}, {WS_WF}")
    g(f"v_lshl_add_u32 v60, v{vLane}, 4, s{sT}")
    g(f"buffer_store_dwordx4 v[44:47], v60, {s(WS,4)}, 0 offen sc1")
    g.label(lab)
    g(f"v_mov_b64 {v(ACC+76,2)}, 0")
    g(f"v_mov_b64 {v(ACC+78,2)}, 0")
    for k in range(3):
        g(f"v_cmp_gt_u32 {s(sM[k],2)}, -2, v{EN[k]}")
    g(f"v_mov_b32 v{EN[3]}, -1")
    g(f"s_mov_b64 {s(sM[3],2)}, 0")
    last = [(24*i+23) for i in range(8)]
    g("s_mov_b64 s[6:7], 0")
    for i, p in enumerate(last):
        g(f"s_bitcmp1_b64 {s(sM[p//64],2)}, {p%64}")
        g(f"s_cselect_b32 s{sT}, {0xff << (8*(i%4))}, 0")
        g(f"s_or_b32 s{6+i//4}, s{6+i//4}, s{sT}")
    g("s_cmp_eq_u64 s[6:7], 0")
    g("s_cbranch_scc1 L_noext")
    g.c("rare: entries 24..31 of the full cells")
    g(f"v_lshl_add_u32 v61, v{vLane}, 4, s{sQ}")
    g(f"v_mov_b32 v{EN[3]+1}, s{sTag}")
    g.label("L_poll2")
    g("s_mov_b64 exec, s[6:7]")
    g(f"buffer_load_dwordx4 {v(EN[3],4)}, v61, {s(WS,4)}, 0 offen sc1")
    g("s_mov_b64 exec, -1")
    g("s_waitcnt vmcnt(0)")
    g(f"v_cmp_ne_u32 vcc, s{sTag}, v{EN[3]+1}")
    g("s_cbranch_vccz L_got2")
    g("s_sleep 1")
    g(f"s_add_u32 s{sC}, s{sC}, 1")
    g(f"s_cmp_lt_u32 s{sC}, 0x400000")
    g("s_cbranch_scc1 L_poll2")
    g.label("L_got2")
    g(f"v_cmp_gt_u32 {s(sM[3],2)}, -2, v{EN[3]}")
    g.label("L_noext")
    g(f"v_lshrrev_b32 v60, 3, v{vLane}")
    g(f"v_mul_u32_u24 v72, s{sDm}, v60")
    g(f"s_mul_i32 s{sC}, s{sWV}, 20000")
    g(f"v_add_u32 v72, s{sC}, v72")
    EB = [73, 74, 75, 72]
    g(f"v_cmp_eq_u32 vcc, -2, v{EN[3]}")
    NK = [64, 65, 66, 67]
    for k in range(4):
        g(f"s_bcnt1_i32_b64 s{NK[k]}, {s(sM[k],2)}")
    g(f"s_add_u32 s65, s65, s64")
    g(f"s_add_u32 s66, s66, s65")
    g(f"s_add_u32 s{sCnt}, s67, s66")
    g(f"v_mov_b32 v61, s{sCnt}")
    g(f"v_mov_b32 v60, {POOL}")
    g("s_mov_b64 exec, 1")
    g("ds_add_rtn_u32 v61, v60, v61")
    g("s_mov_b64 exec, -1")
    PO = 62
    for k in range(4):
        g(f"v_mbcnt_lo_u32_b32 v{PO+k}, s{sM[k]}, 0")
        g(f"v_mbcnt_hi_u32_b32 v{PO+k}, s{sM[k]+1}, v{PO+k}")
        if k:
            g(f"v_add_u32 v{PO+k}, s{NK[k-1]}, v{PO+k}")
        g(f"v_lshrrev_b32 v{cE+k}, 20, v{EN[k]}")
        g(f"v_add_u32 v{cE+k}, v{cE+k}, v{EB[k]}")
        g(f"v_lshl_add_u32 v66, v{PO+k}, 2, s{sCand}")
        g(f"s_mov_b64 exec, {s(sM[k],2)}")
        g(f"ds_write_b32 v66, v{cE+k}")
        g("s_mov_b64 exec, -1")
        g(f"v_lshlrev_b32 v{cX+k}, 2, v{EN[k]}")
        g(f"v_and_b32 v{cX+k}, s{sMask}, v{cX+k}")
        g(f"v_and_b32 v{cM+k}, 63, v{EN[k]}")
    g(f"s_mov_b32 s{sL}, 79")
    g("s_waitcnt lgkmcnt(0)")
    g(f"v_readfirstlane_b32 s{sPB}, v61")
    g("s_cbranch_vccnz L_defer")
    g(f"s_add_u32 s{sT}, s{sPB}, s{sCnt}")
    g(f"s_cmp_gt_u32 s{sT}, {POOLCAP}")
    g("s_cbranch_scc1 L_defer")
    g(f"s_mov_b32 s{sT}, {PSH}")
    for k in range(4):
        g(f"v_add_u32 v{PO+k}, s{sPB}, v{PO+k}")
        g(f"v_lshl_or_b32 v{cX+k}, v{PO+k}, 22, v{cX+k}")
        g(f"v_lshl_add_u32 v{PO+k}, v{PO+k}, 3, s{sT}")
        g(f"s_mov_b64 exec, {s(sM[k],2)}")
        g(f"ds_write_b64 v{PO+k}, {v(EN[k]+2,2)}")
        g("s_mov_b64 exec, -1")
    g("s_branch L_have")
    g.label("L_defer")
    g.c("this wave's cells overflowed (or the pool is full): rescan its edge range in later rounds")
    g(f"s_mov_b32 s{sL}, 0")
    g(f"s_mov_b32 s{sCnt}, 0")
    g(f"s_mov_b32 s{sPB}, 0")
    for k in range(4):
        g(f"s_mov_b64 {s(sM[k],2)}, 0")
    g("v_mov_b32 v58, 1")
    g(f"v_mov_b32 v59, {FLAG}")
    g("ds_write_b32 v59, v58")
    g("s_branch L_have")

    g.label("L_scan")
    g.c("================ fallback scan of this wave's 20000 dst entries (rare path)")
    g("s_barrier")
    BUF = 60
    g(f"s_mov_b32 s{sAddr}, s{sRing}")
    g(f"s_add_u32 s{sLimit}, s{sRing}, {128*8}")
    g(f"s_xor_b32 s{sNomatch}, s{sB}, 1")
    g.label("L_sloop")
    g(f"s_cmp_ge_u32 s{sL}, 79")
    g("s_cbranch_scc1 L_scan_done")
    g(f"s_mul_i32 s{sT}, s{sWV}, 20000")
    g(f"s_lshl_b32 s{sN}, s{sL}, 8")
    g(f"s_add_u32 s{sC}, s{sT}, s{sN}")
    g(f"v_lshlrev_b32 v56, 2, v{vLane}")
    g(f"v_add_u32 v56, s{sC}, v56")
    g(f"v_lshlrev_b32 v57, 2, v56")
    g(f"buffer_load_dwordx4 {v(BUF,4)}, v57, {s(DST,4)}, 0 offen")
    g("s_waitcnt vmcnt(0)")
    g(f"s_cmp_lg_u32 s{sL}, 78")
    g("s_cbranch_scc1 L_snotlast")
    g(f"s_mov_b32 exec_lo, 0xffffff00")
    for k in range(4):
        g(f"v_mov_b32 v{BUF+k}, s{sNomatch}")
    g("s_mov_b64 exec, -1")
    g.label("L_snotlast")
    for k in range(4):
        lab = g.newlab()
        g(f"s_cmp_gt_u32 s{sKskip}, {k}")
        g(f"s_cbranch_scc1 {lab}")
        g(f"v_cmp_eq_u32_sdwa vcc, v{BUF+k}, s{sB} src0_sel:BYTE_0 src1_sel:DWORD")
        g(f"s_cbranch_vccz {lab}")
        g(f"s_bcnt1_i32_b64 s{sT}, vcc")
        g(f"s_lshl3_add_u32 s{sN}, s{sT}, s{sAddr}")
        g(f"s_mov_b32 s{sKskip}, {k}")
        g(f"s_cmp_gt_u32 s{sN}, s{sLimit}")
        g(f"s_cbranch_scc1 L_ovf")
        g(f"v_mbcnt_lo_u32_b32 v58, vcc_lo, 0")
        g(f"v_mbcnt_hi_u32_b32 v58, vcc_hi, v58")
        g(f"v_lshl_add_u32 v58, v58, 3, s{sAddr}")
        g(f"v_add_u32 v59, {k}, v56")
        g("s_mov_b64 exec, vcc")
        g(f"ds_write2_b32 v58, v{BUF+k}, v59 offset0:0 offset1:1")
        g("s_mov_b64 exec, -1")
        g(f"s_mov_b32 s{sAddr}, s{sN}")
        g.label(lab)
    g(f"s_mov_b32 s{sKskip}, 0")
    g(f"s_add_u32 s{sL}, s{sL}, 1")
    g("s_branch L_sloop")
    g.label("L_ovf")
    g("v_mov_b32 v58, 1")
    g(f"v_mov_b32 v59, {FLAG}")
    g("ds_write_b32 v59, v58")
    g.label("L_scan_done")
    g(f"s_sub_u32 s{sCnt}, s{sAddr}, s{sRing}")
    g(f"s_lshr_b32 s{sCnt}, s{sCnt}, 3")
    g(f"s_lshl_b32 s{sPB}, s{sWV}, 7")
    g(f"v_lshlrev_b32 v58, 3, v{vLane}")
    g(f"v_add_u32 v58, s{sRing}, v58")
    g("s_waitcnt lgkmcnt(0)")
    for k in range(2):
        g(f"ds_read_b32 v{cM+k}, v58 offset:{512*k}")
        g(f"ds_read_b32 v{cE+k}, v58 offset:{512*k+4}")
        g(f"s_sub_u32 s{sT}, s{sCnt}, {64*k}")
        g(f"v_cmp_gt_i32 {s(sM[k],2)}, s{sT}, v{vLane}")
    for k in range(2, 4):
        g(f"s_mov_b64 {s(sM[k],2)}, 0")
        g(f"v_mov_b32 v{cM+k}, 0")
        g(f"v_mov_b32 v{cX+k}, 0")
    g(f"v_lshl_add_u32 v58, v{vLane}, 2, s{sCand}")
    g(f"v_add_u32 v59, s{sPB}, v{vLane}")
    g(f"v_lshlrev_b32 v59, 22, v59")
    g("s_waitcnt lgkmcnt(0)")
    for k in range(2):
        g(f"v_lshlrev_b32 v{cK+k}, 2, v{cE+k}")
        g(f"buffer_load_dword v{cX+k}, v{cK+k}, {s(SRC,4)}, 0 offen")
        g(f"v_bfe_u32 v{cM+k}, v{cM+k}, 8, 6")
        g(f"v_min_u32 v{cM+k}, 47, v{cM+k}")
        g(f"ds_write_b32 v58, v{cE+k} offset:{256*k}")
    g("s_waitcnt vmcnt(0)")
    for k in range(2):
        g(f"v_and_b32 v{cX+k}, 0x3fff, v{cX+k}")
        g(f"v_lshl_or_b32 v{cX+k}, v{cX+k}, 8, v59")
        g(f"v_add_u32 v59, {64<<22}, v59")
    g.label("L_have")
    g.c("================ histogram over (slot, src bin); payload DMA set-up")
    g("v_mov_b32 v58, 1")
    g(f"s_mov_b32 s{sT}, {HIST}")
    g(f"s_mov_b32 s{sN}, {DEG}")
    for k in range(4):
        g(f"v_bfe_u32 v{cK+k}, v{cX+k}, 8, 14")
        g(f"v_mul_u32_u24 v{cK+k}, 6711, v{cK+k}")
        g(f"v_lshrrev_b32 v{cK+k}, 22, v{cK+k}")
        g(f"v_min_u32 v{cK+k}, 15, v{cK+k}")
        g(f"v_lshl_add_u32 v{cK+k}, v{cK+k}, 2, s{sT}")
        g(f"v_lshl_add_u32 v{cK+k}, v{cM+k}, 6, v{cK+k}")
        g(f"v_lshl_add_u32 v{cM+k}, v{cM+k}, 2, s{sN}")
        g(f"s_mov_b64 exec, {s(sM[k],2)}")
        g(f"ds_add_rtn_u32 v{cR+k}, v{cK+k}, v58")
        g(f"ds_add_u32 v{cM+k}, v58")
        g("s_mov_b64 exec, -1")
    g(f"v_lshrrev_b32 v{vL2}, 1, v{vLane}")
    g(f"v_lshl_add_u32 v{vCand}, v{vL2}, 2, s{sCand}")
    EI = 40
    for q in range(4):
        g(f"ds_read_b32 v{EI+q}, v{vCand} offset:{128*q}")
    g(f"v_and_b32 v{vP4}, 1, v{vLane}")
    g(f"v_lshlrev_b32 v{vP16}, 4, v{vP4}")
    g(f"v_lshlrev_b32 v{vP4}, 2, v{vP4}")
    g(f"s_mov_b32 s{sDm}, s{sCnt}")
    g(f"s_mov_b32 s{sQ}, s{sPB}")
    g(f"v_lshl_add_u32 v56, v{vLane}, 2, s{sN}")
    g(f"v_mov_b32 v57, {FLAG}")
    g("s_waitcnt lgkmcnt(0)")

    def pay(q):
        lab = g.newlab()
        g(f"s_cmp_le_i32 s{sDm}, 0")
        g(f"s_cbranch_scc1 {lab}")
        g(f"v_lshl_add_u32 v44, v{EI+q}, 5, v{vP16}")
        g(f"v_lshl_add_u32 v45, v{EI+q}, 3, v{vP4}")
        g(f"v_cmp_gt_i32 vcc, s{sDm}, v{vL2}")
        g(f"s_lshl_b32 s{sOff}, s{sQ}, 5")
        g(f"s_add_u32 m0, s{sOff}, {PEA}")
        g("s_mov_b64 exec, vcc")
        g(f"buffer_load_dwordx4 v44, {s(EA,4)}, 0 offen{o.eald} lds")
        l1 = g.newlab()
        g(f"s_lshl3_add_u32 m0, s{sQ}, {PSH}")
        g(f"s_cmp_eq_u32 s{sRound}, 0")
        g(f"s_cbranch_scc1 {l1}")
        g(f"buffer_load_dword v45, {s(SH,4)}, 0 offen lds")
        g.label(l1)
        g("s_mov_b64 exec, -1")
        g(f"s_add_u32 s{sQ}, s{sQ}, 32")
        g(f"s_sub_i32 s{sDm}, s{sDm}, 32")
        g.label(lab)
    sched = [int(x) for x in o.pay.split(",")]
    def stage(st):
        for q in range(4):
            if sched[q] == st:
                pay(q)
    stage(0)
    g("s_barrier")
    g.stamp(2)
    g.c("================ degrees, assignment, offsets")
    vDeg, vKey, vRank = 56, 57, 59
    g(f"ds_read_b32 v{vDeg}, v56")
    g(f"ds_read_b32 v57, v57")
    stage(1)
    g("s_waitcnt lgkmcnt(0)")
    g(f"v_readfirstlane_b32 s{sMore}, v57")
    g(f"s_cmp_lg_u32 s{sRound}, 0")
    g("s_cbranch_scc1 L_assigned")
    for i in range(4):
        for be in range(2):
            for t in range(2):
                g(f"ds_read_b64_tr_b16 {a_(aWR+8*i+4*be+2*t,2)}, v{vWb} offset:{WRIMG + t*2048 + (64*i+32*be)*2}")
    lab = g.newlab()
    g(f"s_and_b32 s{sT}, s{sB}, 63")
    g(f"s_or_b32 s{sT}, s{sT}, s{sWV}")
    g(f"s_cbranch_scc1 {lab}")
    g.c("the group's first workgroup has seen entries of all 64 members: all have read the epoch; advance it")
    g(f"s_lshl_b32 s{sT}, s{sB}, 1")
    g(f"v_mov_b32 v60, s{sT}")
    g(f"v_mov_b32 v61, s{sTag}")
    g("s_mov_b64 exec, 1")
    g(f"buffer_store_dword v61, v60, {s(WS,4)}, 0 offen sc1")
    g("s_mov_b64 exec, -1")
    g.label(lab)
    g(f"v_sub_u32 v{vKey}, 63, v{vLane}")
    g(f"v_lshl_add_u32 v{vKey}, v{vDeg}, 6, v{vKey}")
    g(f"v_mov_b32 v{vRank}, 0")
    masks = ["vcc", "s[4:5]", "s[6:7]"]
    for b0 in range(0, 40, 16):
        nb = min(16, 40 - b0)
        for j in range(nb):
            g(f"v_readlane_b32 s{sKey+j}, v{vKey}, {b0+j}")
        j = 0
        while j < nb:
            m = min(3, nb - j)
            for t in range(m):
                g(f"v_cmp_gt_u32 {masks[t]}, s{sKey+j+t}, v{vKey}")
            if m < 3:
                g.nop(3 - m)
            for t in range(m):
                g(f"v_addc_co_u32 v{vRank}, {masks[t]}, 0, v{vRank}, {masks[t]}")
            j += m
    g(f"v_bfe_u32 v60, v{vRank}, 3, 1")
    g(f"v_mul_u32_u24 v60, 7, v60")
    g(f"v_and_b32 v61, 7, v{vRank}")
    g(f"v_xor_b32 v{vOwner}, v60, v61")
    g(f"s_sub_u32 s{sT}, 7, s{sWV}")
    for k in range(5):
        g(f"s_add_u32 s{sN}, s{sT if k & 1 else sWV}, {8*k}")
        g(f"v_cmp_eq_u32 vcc, s{sN}, v{vRank}")
        g(f"s_ff1_i32_b64 s{sSlot+k}, vcc")
    g.label("L_assigned")
    g(f"v_cmp_gt_u32 vcc, s{sWV}, v{vOwner}")
    g(f"v_and_b32 v61, 15, v{vLane}")
    g(f"v_lshlrev_b32 v61, 2, v61")
    g(f"v_cndmask_b32 v60, 0, v{vDeg}, vcc")
    g(f"v_add_u32 v61, {HIST}, v61")
    AD, CN = 64, 70
    for k in range(5):
        g(f"s_lshl_b32 s{sKey+k}, s{sSlot+k}, 6")
        g(f"v_add_u32 v{AD+k}, s{sKey+k}, v61")
        g(f"ds_read_b32 v{CN+k}, v{AD+k}")
    for n_, sh_ in enumerate((1, 2, 4, 8)):
        g(f"v_add_u32_dpp v60, v60, v60 row_shr:{sh_} row_mask:0xf bank_mask:0xf bound_ctrl:1")
        g(f"v_readlane_b32 s{sKey+8+n_}, v{vDeg}, s{sSlot+n_}")
        g.nop(1)
    g(f"v_readlane_b32 s{sKey+12}, v{vDeg}, s{sSlot+4}")
    g(f"v_readlane_b32 s{sBase}, v60, 15")
    g(f"v_readlane_b32 s{sT}, v60, 31")
    g(f"v_readlane_b32 s{sN}, v60, 47")
    g(f"s_add_u32 s{sRem}, s{sKey+8}, s{sKey+9}")
    for k in range(2, 5):
        g(f"s_add_u32 s{sRem}, s{sRem}, s{sKey+8+k}")
    g(f"s_add_u32 s{sBase}, s{sBase}, s{sT}")
    g(f"s_add_u32 s{sBase}, s{sBase}, s{sN}")
    g(f"s_add_u32 s{sBase}, s{sBase}, 3")
    g(f"s_andn2_b32 s{sBase}, s{sBase}, 3")
    g(f"s_lshl2_add_u32 s{sBase}, s{sWV}, s{sBase}")
    g("s_waitcnt lgkmcnt(0)")
    g(f"v_add3_u32 v60, v{CN}, v{CN+1}, v{CN+2}")
    g(f"v_add3_u32 v60, v60, v{CN+3}, v{CN+4}")
    g("v_mov_b32 v61, v60")
    for sh_ in (1, 2, 4, 8):
        g.nop(2)
        g(f"v_add_u32_dpp v61, v61, v61 row_shr:{sh_} row_mask:0xf bank_mask:0xf bound_ctrl:1")
    g("v_sub_u32 v61, v61, v60")
    g(f"v_add_u32 v61, s{sBase}, v61")
    for k in range(5):
        g(f"v_lshl_add_u32 v{75+k}, v61, 8, {16*k}")
        g(f"ds_write_b32 v{AD+k}, v{75+k} offset:{OFF-HIST}")
        if k < 4:
            g(f"v_add_u32 v61, v61, v{CN+k}")
    stage(2)
    g("s_waitcnt lgkmcnt(0)")
    g("s_barrier")
    g.stamp(8)
    g.c("================ placement of (pool index | src | acc offset); re-zero HIST/FLAG")
    for k in range(4):
        g(f"ds_read_b32 v{cM+k}, v{cK+k} offset:{OFF-HIST}")
    g("v_mov_b32 v60, 0")
    g("v_mov_b32 v61, 0")
    g(f"v_lshlrev_b32 v64, 3, v0")
    g(f"v_add_u32 v64, {HIST}, v64")
    g("ds_write_b64 v64, v[60:61]")
    g(f"v_mov_b32 v64, {FLAG}")
    g("ds_write_b32 v64, v60")
    g(f"s_mov_b32 s{sT}, {META}")
    g(f"s_movk_i32 s{sN}, 255")
    g("s_waitcnt lgkmcnt(2)")
    for k in range(4):
        g(f"v_lshrrev_b32 v{cK+k}, 8, v{cM+k}")
        g(f"v_add_u32 v{cK+k}, v{cK+k}, v{cR+k}")
        g(f"v_and_or_b32 v{cM+k}, v{cM+k}, s{sN}, v{cX+k}")
        g(f"v_lshl_add_u32 v{cK+k}, v{cK+k}, 2, s{sT}")
        g(f"s_mov_b64 exec, {s(sM[k],2)}")
        g(f"ds_write_b32 v{cK+k}, v{cM+k}")
        g("s_mov_b64 exec, -1")
    stage(3)
    g.c("lists longer than 128 candidates (rare): fetch the rest")
    g.label("L_paymore")
    g(f"s_cmp_le_i32 s{sDm}, 0")
    g("s_cbranch_scc1 L_paydone")
    g(f"ds_read_b32 v{EI}, v{vCand} offset:512")
    g(f"v_add_u32 v{vCand}, 128, v{vCand}")
    g("s_waitcnt lgkmcnt(0)")
    pay(0)
    g("s_branch L_paymore")
    g.label("L_paydone")
    RW, D, B, EA1, EA2, AC, M4, I1, I2, SHO = 16, 32, 48, 56, 60, 32, 68, 72, 73, 64
    vB1, vB2, vBS, vM1, vM2 = 74, 75, 76, 77, 78
    g(f"s_lshl_b32 s{sBase}, s{sBase}, 2")
    g(f"s_add_u32 s{sBase}, s{sBase}, {META}")
    g(f"v_mov_b32 v{vMetaA}, s{sBase}")
    g(f"v_and_b32 v62, 3, v{vLane}")
    g(f"v_lshl_add_u32 v{vM1}, v62, 2, s{sBase}")
    g(f"v_bfe_u32 v62, v{vLane}, 2, 2")
    g(f"v_lshl_add_u32 v{vM2}, v62, 2, s{sBase}")
    g(f"v_bfe_u32 v63, v{vLane}, 4, 1")
    g(f"v_lshlrev_b32 v63, 4, v63")
    g(f"v_add_u32 v63, {PEA}, v63")
    g(f"v_mov_b32 v65, {PSH}")
    g(f"v_mov_b32 v62, {ZERO}")
    g(f"v_cmp_ne_u32 vcc, 0, v{vMul1}")
    g(f"v_cmp_ne_u32 s[4:5], 0, v{vMul2}")
    g(f"v_cmp_ne_u32 s[6:7], 0, v{vMulS}")
    g(f"v_cndmask_b32 v{vB1}, v62, v63, vcc")
    g(f"v_cndmask_b32 v{vB2}, v62, v63, s[4:5]")
    g(f"v_cndmask_b32 v{vBS}, v62, v65, s[6:7]")
    g("s_waitcnt lgkmcnt(0)")
    g("s_barrier")
    g.stamp(3)

    def issue(sm, r):
        g(f"s_and_b32 s{sOff}, s{sm+r}, s{sMask}")
        g(f"s_add_u32 m0, s{sRing}, {r*2048}")
        g(f"s_lshl_b32 s{sOff}, s{sOff}, 3")
        g(f"buffer_load_dwordx4 v{vDma0}, {s(X,4)}, s{sOff} offen lds")
        g(f"buffer_load_dwordx4 v{vDma1}, {s(X,4)}, s{sOff} offen offset:1024 lds")

    def opaddr():
        g(f"v_lshrrev_b32 v{I1}, 22, v{I1}")
        g(f"v_lshrrev_b32 v{I2}, 22, v{I2}")
        g(f"v_mad_u32_u24 v{vEa1}, v{I1}, v{vMul1}, v{vB1}")
        g(f"v_mad_u32_u24 v{vEa2}, v{I1}, v{vMul2}, v{vB2}")
        g(f"v_mad_u32_u24 v{vSh}, v{I2}, v{vMulS}, v{vBS}")

    g.c("================ first rows, then wait for everybody's payload")
    g(f"ds_read_b128 {v(M4,4)}, v{vMetaA}")
    g(f"ds_read_b32 v{I1}, v{vM1}")
    g(f"ds_read_b32 v{I2}, v{vM2}")
    g(f"s_cmp_lt_u32 s{sRem}, {R}")
    g("s_cbranch_scc1 L_short")
    g("s_waitcnt lgkmcnt(2)")
    for r in range(4):
        g(f"v_readfirstlane_b32 s{sMa+r}, v{M4+r}")
    for r in range(R):
        issue(sMa, r)
    g(f"s_waitcnt vmcnt({2*R})")
    g("s_branch L_go")
    g.label("L_short")
    g("s_waitcnt vmcnt(0) lgkmcnt(0)")
    for r in range(4):
        g(f"v_readfirstlane_b32 s{sMa+r}, v{M4+r}")
    for r in range(R - 1):
        g(f"s_cmp_le_u32 s{sRem}, {r}")
        g("s_cbranch_scc1 L_go")
        issue(sMa, r)
    g.label("L_go")
    lab = g.newlab()
    g(f"s_cmp_ge_u32 s{sWV}, 2")
    g(f"s_cbranch_scc1 {lab}")
    g(f"s_cmp_lg_u32 s{sRound}, 0")
    g(f"s_cbranch_scc1 {lab}")
    g.c("this wave's w_out fragment has been acknowledged: publish its flag (one extra wait step below)")
    g(f"v_mov_b32 v62, s{sWfl}")
    g(f"v_mov_b32 v63, s{sTag}")
    g("s_mov_b64 exec, 1")
    g(f"buffer_store_dword v63, v62, {s(WS,4)}, 0 offen sc1")
    g("s_mov_b64 exec, -1")
    g.label(lab)
    g("s_waitcnt lgkmcnt(0)")
    opaddr()
    g("s_barrier")
    g.stamp(9)
    g.cstamp(18)
    g(f"s_cmp_eq_u32 s{sRem}, 0")
    g("s_cbranch_scc1 L_round_done")
    g.c("================ sweep: groups of 4 edges")
    g.label("L_group")
    g(f"ds_read_b64 {v(SHO,2)}, v{vSh}")
    g(f"ds_read_b128 {v(EA1,4)}, v{vEa1}")
    g(f"ds_read_b128 {v(EA2,4)}, v{vEa2}")
    g(f"ds_read_b128 {v(M4,4)}, v{vMetaA} offset:16")
    g(f"ds_read_b32 v{I1}, v{vM1} offset:16")
    g(f"ds_read_b32 v{I2}, v{vM2} offset:16")
    g(f"v_add_u32 v{vMetaA}, 16, v{vMetaA}")
    g(f"v_add_u32 v{vM1}, 16, v{vM1}")
    g(f"v_add_u32 v{vM2}, 16, v{vM2}")
    g("s_waitcnt lgkmcnt(0)")
    g(f"v_mfma_f32_16x16x16_bf16 {v(AC,4)}, {v(vCG,2)}, {v(SHO,2)}, 0")
    for i in range(4):
        g(f"v_mfma_f32_16x16x32_bf16 {v(RW+4*i,4)}, {v(EA1,4)}, {a_(aWR+8*i,4)}, 0")
    for i in range(4):
        g(f"v_mfma_f32_16x16x32_bf16 {v(RW+4*i,4)}, {v(EA2,4)}, {a_(aWR+8*i+4,4)}, {v(RW+4*i,4)}")
    for r in range(4):
        g(f"v_readfirstlane_b32 s{sMb+r}, v{M4+r}")
    g(f"v_cvt_pk_bf16_f32 v{SHO}, v{AC}, v{AC+1}")
    g(f"v_cvt_pk_bf16_f32 v{SHO+1}, v{AC+2}, v{AC+3}")
    opaddr()
    for r in range(4):
        g.c(f"-- edge {r}")
        l1 = g.newlab()
        g(f"s_cmp_ge_u32 s{sRem}, {R}")
        g(f"s_cbranch_scc1 {l1}")
        g("s_waitcnt vmcnt(0)")
        g.label(l1)
        g(f"s_waitcnt vmcnt({2*(R-1)})")
        for i in range(4):
            g(f"ds_read_b64_tr_b16 {v(B+2*i,2)}, v{vTr} offset:{r*2048+i*256}")
        l2 = g.newlab()
        if R == 4:
            g("s_waitcnt lgkmcnt(0)")
        g(f"s_cmp_le_u32 s{sRem}, {R}")
        g(f"s_cbranch_scc1 {l2}")
        issue(sMb if r + R >= 4 else sMa, (r + R) % 4)
        g.label(l2)
        if R < 4:
            g("s_waitcnt lgkmcnt(0)")
        for i in range(4):
            g(f"v_mfma_f32_4x4x4_16b_bf16 {v(D+4*i,4)}, {v(SHO,2)}, {v(B+2*i,2)}, 0 cbsz:4 abid:{r}")
        g.nop(1)
        g(f"s_set_gpr_idx_on s{sMa+r}, gpr_idx(SRC2,DST)")
        x = r & 1
        for i in range(4):
            rw = RW + 4 * i + (r & ~1)
            for wp in range(2):
                g(f"v_pk_fma_f32 {v(acc(0,i,2*wp),2)}, {v(D+4*i+2*wp,2)}, {v(rw,2)}, {v(acc(0,i,2*wp),2)} op_sel:[0,{x},0] op_sel_hi:[1,{x},1]")
        g("s_set_gpr_idx_off")
        g(f"s_mov_b32 s{sMa+r}, s{sMb+r}")
        g(f"s_sub_u32 s{sRem}, s{sRem}, 1")
        g(f"s_cmp_eq_u32 s{sRem}, 0")
        g(f"s_cbranch_scc{1 if r < 3 else 0} {'L_round_done' if r < 3 else 'L_group'}")
    g.label("L_round_done")
    g(f"s_add_u32 s{sRound}, s{sRound}, 1")
    g(f"s_cmp_lg_u32 s{sMore}, 0")
    g("s_cbranch_scc1 L_scan")
    g.stamp(4)
    g.cstamp(19)

    g.c("================ w_out fragments (published ~20 us ago; the flags are checked all the same) -> AGPRs")
    g(f"s_and_b32 s{sN}, s{sB}, 192")
    g(f"s_lshl_b32 s{sN}, s{sN}, 1")
    g(f"s_lshl4_add_u32 s{sN}, s{sWV}, s{sN}")
    g(f"s_lshl2_add_u32 s{sT}, s{sN}, {WS_FW}")
    g(f"v_and_b32 v16, 15, v{vLane}")
    g(f"v_lshl_add_u32 v16, v16, 2, s{sT}")
    g(f"s_lshl_b32 s{sT}, s{sN}, 10")
    g(f"s_add_u32 s{sT}, s{sT}, {WS_WF}")
    g(f"v_lshl_add_u32 v18, v{vLane}, 4, s{sT}")
    g(f"s_mov_b32 s{sC}, 0")
    g.label("L_pollw")
    g(f"buffer_load_dword v17, v16, {s(WS,4)}, 0 offen sc1")
    g("s_waitcnt vmcnt(0)")
    g(f"v_cmp_ne_u32 vcc, s{sTag}, v17")
    g("s_cbranch_vccz L_gotw")
    g("s_sleep 1")
    g(f"s_add_u32 s{sC}, s{sC}, 1")
    g(f"s_cmp_lt_u32 s{sC}, 0x400000")
    g("s_cbranch_scc1 L_pollw")
    g.label("L_gotw")
    for ks in range(16):
        g(f"buffer_load_dwordx4 {a_(aW+4*ks,4)}, v18, {s(WS,4)}, 0 offen offset:{(ks%4)*1024} sc1")
        if ks % 4 == 3:
            g(f"v_add_u32 v18, 4096, v18")
    g.c("================ agg image -> LDS")
    g(f"v_mul_u32_u24 v16, 320, v{vLane}")
    g(f"v_lshrrev_b32 v17, 2, v{vLane}")
    g(f"v_lshl_add_u32 v16, v17, 3, v16")
    for k in range(5):
        g(f"s_lshl_b32 s{sT}, s{sSlot+k}, 3")
        g(f"v_add_u32 v{17+k}, s{sT}, v16")
    t = 0
    for k in range(5):
        for i in range(4):
            p = 24 + 2 * t
            t += 1
            g(f"v_cvt_pk_bf16_f32 v{p}, v{acc(k,i,0)}, v{acc(k,i,1)}")
            g(f"v_cvt_pk_bf16_f32 v{p+1}, v{acc(k,i,2)}, v{acc(k,i,3)}")
    vG0, vG1, vO, vSw, vSr = 2, 3, 4, 5, 6
    g(f"v_lshrrev_b32 v70, 5, v{vLane}")
    g(f"v_mul_u32_u24 v71, 2576, v70")
    g(f"v_bfe_u32 v72, v{vLane}, 2, 2")
    g(f"v_mul_u32_u24 v74, 320, v72")
    g(f"v_bfe_u32 v73, v{vLane}, 4, 1")
    g(f"v_lshl_add_u32 v71, v73, 5, v71")
    g(f"v_and_b32 v73, 3, v{vLane}")
    g(f"v_lshl_add_u32 v71, v73, 3, v71")
    g(f"v_add_u32 v{vG0}, v71, v74")
    g(f"v_add_u32 v{vG1}, {8*5152}, v{vG0}")
    g(f"s_mul_i32 s{sT}, s{sWV}, 5120")
    g(f"s_add_u32 s{sT}, s{sT}, {STG}")
    g(f"v_and_b32 v74, 31, v{vLane}")
    g(f"v_mul_u32_u24 v74, 80, v74")
    g(f"v_lshl_add_u32 v74, v70, 3, v74")
    g(f"v_add_u32 v{vSw}, s{sT}, v74")
    g(f"v_lshrrev_b32 v74, 2, v{vLane}")
    g(f"v_mul_u32_u24 v74, 80, v74")
    g(f"v_lshl_add_u32 v74, v73, 4, v74")
    g(f"v_add_u32 v{vSr}, s{sT}, v74")
    g(f"v_lshrrev_b32 v74, 4, v{vLane}")
    g(f"v_lshlrev_b32 v74, 19, v74")
    g(f"v_lshl_add_u32 v74, v72, 9, v74")
    g(f"v_lshl_add_u32 v74, v73, 4, v74")
    g(f"s_lshl_b32 s{sT}, s{sB}, 11")
    g(f"s_lshl_b32 s{sN}, s{sWV}, 6")
    g(f"s_add_u32 s{sT}, s{sT}, s{sN}")
    g(f"v_add_u32 v{vO}, s{sT}, v74")
    g("s_barrier")
    g.stamp(5)
    t = 0
    for k in range(5):
        for i in range(4):
            p = 24 + 2 * t
            t += 1
            g(f"ds_write_b64 v{17+k}, {v(p,2)} offset:{i*20608}")
    g("s_waitcnt lgkmcnt(0)")
    g("s_barrier")
    g.stamp(6)
    g.cstamp(16)
    g.c("================ GEMM: out^T tile = W^T (A) x agg^T (B)")
    FB = [16, 32]
    DD = [48, 64]
    PK = [80, 88]
    OB = [96, 104]
    chunks = [(t, c) for t in range(5) for c in range(4)]

    def rd(n):
        t, c = chunks[n]
        for kk in range(4):
            ks = 4 * c + kk
            base = vG0 if ks < 8 else vG1
            for tt in range(2):
                g(f"ds_read_b64_tr_b16 {v(FB[n%2]+4*kk+2*tt,2)}, v{base} offset:{(ks%8)*5152 + tt*1288 + t*64}")

    def epi1(t):
        d, p, ob = DD[t % 2], PK[t % 2], OB[t % 2]
        for q in range(8):
            g(f"v_cvt_pk_bf16_f32 v{p+q}, v{d+2*q}, v{d+2*q+1}")
        for a in range(4):
            g(f"ds_write_b64 v{vSw}, {v(p+2*a,2)} offset:{2560*(t%2)+16*a}")
        for hf in range(2):
            g(f"ds_read_b128 {v(ob+4*hf,4)}, v{vSr} offset:{2560*(t%2)+1280*hf}")

    def epi2(t):
        ob = OB[t % 2]
        for hf in range(2):
            if not (o.nostore and t < 4):
                g(f"buffer_store_dwordx4 {v(ob+4*hf,4)}, v{vO}, {s(OUT,4)}, 0 offen{o.stflag}")
            g(f"v_add_u32 v{vO}, {4<<19}, v{vO}")
    PD = o.gdist
    NBUF = 8
    def rdj(j):
        t, ks = divmod(j, 16)
        base = vG0 if ks < 8 else vG1
        for tt in range(2):
            g(f"ds_read_b64_tr_b16 {v(16+4*(j%NBUF)+2*tt,2)}, v{base} offset:{(ks%8)*5152 + tt*1288 + t*64}")
    for j in range(PD):
        rdj(j)
    g("s_waitcnt vmcnt(0)")
    cv = []
    for j in range(80):
        t, ks = divmod(j, 16)
        g(f"s_waitcnt lgkmcnt({2*min(PD-1, 79-j)})")
        cin = "0" if ks == 0 else v(DD[t % 2], 16)
        g(f"v_mfma_f32_32x32x16_bf16 {v(DD[t%2],16)}, {a_(aW+4*ks,4)}, {v(16+4*(j%NBUF),4)}, {cin}")
        if j + PD < 80:
            rdj(j + PD)
        if t > 0:
            d, p, ob = DD[(t-1) % 2], PK[(t-1) % 2], OB[(t-1) % 2]
            so = 2560 * ((t-1) % 2)
            if 3 <= ks <= 6:
                a = ks - 3
                g(f"v_cvt_pk_bf16_f32 v{p+2*a}, v{d+4*a}, v{d+4*a+1}")
                g(f"v_cvt_pk_bf16_f32 v{p+2*a+1}, v{d+4*a+2}, v{d+4*a+3}")
                g(f"ds_write_b64 v{vSw}, {v(p+2*a,2)} offset:{so+16*a}")
            if ks in (7, 8):
                hf = ks - 7
                g(f"ds_read_b128 {v(ob+4*hf,4)}, v{vSr} offset:{so+1280*hf}")
            if ks == 15:
                assert PD <= 7
                epi2(t - 1)
    g.nop(12)
    epi1(4)
    g("s_waitcnt lgkmcnt(0)")
    epi2(4)
    if o.stamps:
        g.stamp(10)
        g.cstamp(17)
        g("s_waitcnt vmcnt(0)")
        g.stamp(7)
        g(f"s_lshl_b32 s{sT}, s{sB}, 3")
        g(f"s_add_u32 s{sT}, s{sT}, s{sWV}")
        g(f"s_lshl_b32 s{sT}, s{sT}, 8")
        g(f"s_add_u32 s{sT}, s{sT}, {WS_STAMP}")
        g(f"v_lshlrev_b32 v16, 2, v{vLane}")
        g(f"v_add_u32 v16, s{sT}, v16")
        g(f"buffer_store_dword v{vStamp}, v16, {s(WS,4)}, 0 offen")
    g.label("L_end")
    g("s_endpgm")
    return g.L


HEADER = open("/code/" + NAME + ".s.ref").read().split("; Override launch")[0]


def kd(name, vg, sg, acc):
    return f""".section .rodata,"a"
.p2align 6
.amdhsa_kernel {name}
  .amdhsa_next_free_vgpr {vg}
  .amdhsa_next_free_sgpr {sg}
  .amdhsa_accum_offset {acc}
  .amdhsa_group_segment_fixed_size 0
  .amdhsa_kernarg_size 88
  .amdhsa_user_sgpr_count 2
  .amdhsa_user_sgpr_kernarg_segment_ptr 1
  .amdhsa_system_sgpr_workgroup_id_x 1
  .amdhsa_float_denorm_mode_32 3
.end_amdhsa_kernel
"""


def emit(o):
    out = HEADER
    out += f"; @launch grid=(256,1,1) block=(512,1,1) lds={LDS_BYTES}\n"
    out += "; generated by dev/gen.py\n"
    out += '.amdgcn_target "amdgcn-amd-amdhsa--gfx950"\n.text\n'
    out += f".globl {NAME}_kernel\n.p2align 8\n.type {NAME}_kernel,@function\n{NAME}_kernel:\n"
    out += "\n".join(build(o)) + "\n"
    out += kd(NAME + "_kernel", 256, 102, 160)
    open(o.o, "w").write(out)


if __name__ == "__main__":
    ap = argparse.ArgumentParser()
    ap.add_argument("-o", default="/code/" + NAME + ".s")
    ap.add_argument("--stamps", action="store_true")
    ap.add_argument("--pf", default="0,0,0")
    ap.add_argument("--k1ld", default="")
    ap.add_argument("--eald", default="")
    ap.add_argument("--stflag", default=" sc1")
    ap.add_argument("--R", type=int, default=3)
    ap.add_argument("--nostore", action="store_true")
    ap.add_argument("--gdist", type=int, default=6)
    ap.add_argument("--pay", default="0,1,2,3")
    ap.add_argument("--prewait", type=int, default=1)
    ap.add_argument("--probe", type=int, default=0)
    ap.add_argument("--sleep", type=int, default=1)
    emit(ap.parse_args())
```

```python
import sys, argparse

NAME = "standalone__tensor_product_equiv_mace__graph"
N, E = 10000, 160000

RING = 0
POOLCAP = 1024
PEA = 65536
PSH = PEA + POOLCAP * 32
META = PSH + POOLCAP * 8
HIST = META + (POOLCAP + 64) * 4
DEG = HIST + 60 * 64
POOL = HIST + 59 * 64
OFF = HIST + 4096
ZERO = OFF + 4096
FLAG = ZERO + 16
PIMG = 0
WRIMG = 32768
PCNT = FLAG + 16
CAND = PCNT + 256
STG = 82432
LDS_BYTES = 128000
assert CAND + 8192 <= LDS_BYTES and CAND % 16 == 0
assert FLAG + 16 <= LDS_BYTES and META % 16 == 0 and HIST % 16 == 0 and STG + 8 * 5120 <= LDS_BYTES
WS_EP = 0
WS_FW = 4096
WS_WF = 1 << 20
WS_STAMP = 4 << 20
WS_CELLS = 8 << 20
ROWB = 64 * 384 + 128
WS_EXT = 16 << 20
WS_BYTES = 20 << 20
assert WS_CELLS + 256 * ROWB <= WS_EXT

sB, sWV = 2, 3
X, SRC, DST, SH, EA, OUT, WS = 8, 12, 16, 20, 24, 28, 32
sM = [36, 38, 40, 42]
sPB, sQ, sDm, sNomatch = 44, 45, 46, 47
sTag, sCand, sPM, sWfl = 48, 49, 50, 83
WO, WR, CG = 88, 92, 96
sKskip, sT, sN, sC = 52, 53, 54, 55
sSlot = 56
sBase, sRem, sRing = 61, 62, 63
sMa, sMb = 64, 68
sOff, sRound, sMore, sCnt, sL, sMask = 76, 77, 78, 79, 80, 82
sKey = 84
sAddr, sLimit = 64, 65

vLane, vDma0, vDma1, vTr, vEa1, vEa2, vMul1, vMul2, vSh, vMulS, vOwner, vStamp, vMetaA = range(1, 14)
ACC = 80
def acc(k, i, w): return ACC + 16 * k + 4 * i + w
aWR, aW = 0, 32
vCG = 14


class Gen:
    def __init__(self, stamps=False):
        self.L = []
        self.stamps = stamps
        self.nlab = 0

    def __call__(self, s):
        self.L.append("    " + s)

    def label(self, s):
        self.L.append(s + ":")

    def c(self, s):
        self.L.append("    ; " + s)

    def newlab(self, p="L"):
        self.nlab += 1
        return f"{p}_{self.nlab}"

    def nop(self, n):
        while n > 0:
            k = min(n, 16)
            self(f"s_nop {k-1}")
            n -= k

    def cstamp(self, i):
        if not self.stamps:
            return
        self(f"s_memtime s[4:5]")
        self("s_waitcnt lgkmcnt(0)")
        self(f"v_writelane_b32 v{vStamp}, s4, {i}")

    def stamp(self, i):
        if not self.stamps:
            return
        self(f"s_memrealtime s[4:5]")
        self("s_waitcnt lgkmcnt(0)")
        self(f"v_writelane_b32 v{vStamp}, s4, {i}")


def srd(g, d, ptr, nbytes):
    g(f"s_mov_b32 s{d}, s{ptr}")
    g(f"s_mov_b32 s{d+1}, s{ptr+1}")
    g(f"s_mov_b32 s{d+2}, {nbytes}")
    g(f"s_mov_b32 s{d+3}, 0x00020000")


def v(a, n=1):
    return f"v{a}" if n == 1 else f"v[{a}:{a+n-1}]"


def a_(a, n=1):
    return f"a{a}" if n == 1 else f"a[{a}:{a+n-1}]"


def s(a, n=1):
    return f"s{a}" if n == 1 else f"s[{a}:{a+n-1}]"


def build(o):
    g = Gen(o.stamps)
    R = o.R
    cM, cE, cX, cK, cR = 16, 20, 24, 28, 32
    vL2, vP16, vP4, vCand = 36, 37, 38, 39
    pfs = [int(x) for x in o.pf.split(",")]
    vPf = 79

    def pf(n):
        for _ in range(n):
            g(f"buffer_load_dwordx4 {v(ACC+76,4)}, v{vPf}, {s(X,4)}, 0 offen")
            g(f"v_add_u32 v{vPf}, {256*1024}, v{vPf}")
    g(f"s_cmp_ge_u32 s{sB}, 256")
    g("s_cbranch_scc1 L_end")
    g("s_load_dwordx2 s[84:85], s[0:1], 80")
    g("s_load_dwordx16 s[64:79], s[0:1], 0")
    g("s_load_dwordx2 s[80:81], s[0:1], 64")
    g(f"v_and_b32 v{vLane}, 63, v0")
    g(f"v_lshrrev_b32 v60, 6, v0")
    g(f"v_mov_b32 v{vStamp}, 0")
    g(f"v_readfirstlane_b32 s{sWV}, v60")
    g(f"s_and_b32 s{sC}, s{sB}, 63")
    g(f"s_and_b32 s{sN}, s{sB}, 192")
    g(f"s_mul_i32 s{sT}, s{sC}, 10000")
    g(f"v_lshlrev_b32 v63, 4, v0")
    g(f"v_add_u32 v60, s{sT}, v63")
    g(f"s_add_u32 s{sT}, s{sT}, 8192")
    g(f"v_lshl_add_u32 v61, v0, 2, s{sT}")
    g(f"v_lshlrev_b32 v64, 1, v60")
    g(f"v_lshlrev_b32 v65, 1, v61")
    g(f"s_lshl_b32 s{sT}, s{sN}, 1")
    g(f"v_mov_b32 v62, s{sT}")
    g("s_waitcnt lgkmcnt(0)")
    pD, pS, pH = 16, 24, 32
    srd(g, DST, 68, E * 4)
    g(f"buffer_load_dwordx4 {v(pD,4)}, v60, {s(DST,4)}, 0 offen{o.k1ld}")
    g(f"buffer_load_dword v{pD+4}, v61, {s(DST,4)}, 0 offen{o.k1ld}")
    srd(g, SRC, 66, E * 4)
    g(f"buffer_load_dwordx4 {v(pS,4)}, v60, {s(SRC,4)}, 0 offen{o.k1ld}")
    g(f"buffer_load_dword v{pS+4}, v61, {s(SRC,4)}, 0 offen{o.k1ld}")
    srd(g, WS, 84, WS_BYTES)
    g(f"buffer_load_dword v42, v62, {s(WS,4)}, 0 offen sc1")
    srd(g, SH, 70, E * 8)
    g(f"buffer_load_dwordx4 {v(pH,4)}, v64, {s(SH,4)}, 0 offen")
    g(f"buffer_load_dwordx4 {v(pH+4,4)}, v64, {s(SH,4)}, 0 offen offset:16")
    g(f"buffer_load_dwordx2 {v(pH+8,2)}, v65, {s(SH,4)}, 0 offen")
    g.stamp(0)
    g.c("---- LDS init: entry image = empty, counters, HIST, ZERO block, FLAG")
    for k in range(4):
        g(f"v_mov_b32 v{72+k}, -1")
    for i in range(4):
        g(f"ds_write_b128 v63, v[72:75] offset:{PIMG+8192*i}")
    g("v_mov_b32 v68, 0")
    g("v_mov_b32 v69, 0")
    g(f"v_lshlrev_b32 v60, 3, v0")
    g(f"v_add_u32 v60, {HIST}, v60")
    g("ds_write_b64 v60, v[68:69]")
    g(f"v_min_u32 v60, 35, v{vLane}")
    g(f"v_lshlrev_b32 v60, 3, v60")
    g(f"v_add_u32 v60, {ZERO}, v60")
    g("ds_write_b64 v60, v[68:69]")
    srd(g, X, 64, N * 2048)
    srd(g, EA, 72, E * 32)
    srd(g, OUT, 80, N * 2048)
    srd(g, CG, 74, 128)
    srd(g, WR, 76, 8192)
    srd(g, WO, 78, 131072)
    g(f"s_lshl_b32 s{sRing}, s{sWV}, 13")
    g(f"s_mov_b32 s{sKskip}, 0")
    g(f"s_mov_b32 s{sRound}, 0")
    g(f"s_mov_b32 s{sMask}, 0x3fff00")
    g(f"s_mov_b32 s{sWfl}, {WS_BYTES}")
    g(f"s_lshl_b32 s{sCand}, s{sWV}, 10")
    g(f"s_add_u32 s{sCand}, s{sCand}, {CAND}")
    g(f"s_movk_i32 s{sT}, 452")
    g(f"v_cmp_gt_u32 {s(sPM,2)}, s{sT}, v0")
    g(f"v_lshlrev_b32 v43, 22, v0")
    g(f"v_lshlrev_b32 v59, 20, v0")
    g("v_mov_b32 v58, 1")
    g("s_waitcnt lgkmcnt(0)")
    g("s_barrier")
    g.c("---- weights: cg operand, w_r image, this wave's share of the w_out transposition")
    g(f"v_and_b32 v60, 3, v{vLane}")
    g(f"v_lshlrev_b32 v61, 5, v60")
    g(f"v_lshrrev_b32 v66, 4, v{vLane}")
    g(f"v_lshl_add_u32 v61, v66, 1, v61")
    for q in range(4):
        g(f"buffer_load_ushort v{44+q}, v61, {s(CG,4)}, 0 offen offset:{q*8}")
    g(f"s_lshl_b32 s{sT}, s{sWV}, 10")
    g(f"s_add_u32 m0, s{sT}, {WRIMG}")
    g(f"v_lshlrev_b32 v64, 4, v{vLane}")
    g(f"buffer_load_dwordx4 v64, {s(WR,4)}, s{sT} offen lds")
    nlate = 5
    g(f"s_lshr_b32 s{sT}, s{sB}, 3")
    g(f"s_lshl3_add_u32 s{sT}, s{sT}, s{sWV}")
    g(f"s_lshl_b32 s{sT}, s{sT}, 10")
    g(f"v_add_u32 v{vPf}, s{sT}, v64")
    pf(pfs[0])
    nlate += pfs[0]
    if o.tlb:
        g.c("address-translation warm-up: one line per stride of x, out, edge_attr")
        g(f"v_lshlrev_b32 v64, {o.tlb}, v0")
        g(f"buffer_load_dword v{ACC+76}, v64, {s(X,4)}, 0 offen")
        g(f"buffer_load_dword v{ACC+77}, v64, {s(OUT,4)}, 0 offen")
        g(f"buffer_load_dword v{ACC+78}, v64, {s(EA,4)}, 0 offen")
        nlate += 3
    g.c("---- persistent per-lane constants")
    g(f"v_and_b32 v61, 7, v{vLane}")
    g(f"v_bfe_u32 v65, v{vLane}, 3, 1")
    g(f"v_lshlrev_b32 v65, 9, v65")
    g(f"v_lshl_add_u32 v65, v66, 7, v65")
    g(f"v_lshl_add_u32 v{vDma0}, v61, 4, v65")
    g(f"v_xor_b32 v61, 4, v61")
    g(f"v_lshl_add_u32 v{vDma1}, v61, 4, v65")
    g(f"v_bfe_u32 v60, v{vLane}, 2, 2")
    g(f"v_bfe_u32 v62, v{vLane}, 1, 1")
    g(f"v_lshl_add_u32 v62, v66, 1, v62")
    g(f"v_lshrrev_b32 v63, 1, v60")
    g(f"v_lshlrev_b32 v64, 2, v63")
    g(f"v_xor_b32 v62, v62, v64")
    g(f"v_and_b32 v64, 1, v60")
    g(f"v_lshl_add_u32 v62, v64, 3, v62")
    g(f"v_lshlrev_b32 v62, 4, v62")
    g(f"v_lshl_add_u32 v62, v63, 10, v62")
    g(f"v_and_b32 v64, 1, v{vLane}")
    g(f"v_lshl_add_u32 v62, v64, 3, v62")
    g(f"v_add_u32 v{vTr}, s{sRing}, v62")
    g(f"v_lshrrev_b32 v61, 5, v{vLane}")
    g(f"v_mov_b32 v63, 32")
    g(f"v_cmp_eq_u32 vcc, v60, v61")
    g(f"v_add_u32 v61, 2, v61")
    g(f"v_and_b32 v64, 3, v{vLane}")
    g(f"v_cndmask_b32 v{vMul1}, 0, v63, vcc")
    g(f"v_cmp_eq_u32 vcc, v60, v61")
    g(f"v_cmp_eq_u32 s[4:5], v64, v66")
    g(f"v_mov_b32 v65, 8")
    g(f"v_cndmask_b32 v{vMul2}, 0, v63, vcc")
    g(f"v_cndmask_b32 v{vMulS}, 0, v65, s[4:5]")
    CE = 70
    for k in range(3):
        g(f"v_add_u32 v61, {64*k}, v{vLane}")
        g(f"v_mul_u32_u24 v{73+k}, 2731, v61")
        g(f"v_lshrrev_b32 v{73+k}, 16, v{73+k}")
        g(f"v_lshlrev_b32 v61, 4, v61")
        g(f"v_lshl_add_u32 v{CE+k}, v{73+k}, 7, v61")
    g(f"s_lshl_b32 s{sPB}, s{sWV}, 12")
    g(f"s_lshl3_add_u32 s{sT}, s{sWV}, s{sN}")
    g(f"s_mul_i32 s{sQ}, s{sT}, {ROWB}")
    g(f"s_mul_i32 s{sDm}, s{sC}, 384")
    g(f"s_add_u32 s{sQ}, s{sQ}, s{sDm}")
    g(f"s_add_u32 s{sQ}, s{sQ}, {WS_CELLS}")
    g(f"s_movk_i32 s{sDm}, {ROWB-512}")
    for k in range(3):
        g(f"v_add_u32 v{61+k}, s{sPB}, v{CE+k}")
        g(f"v_mad_u32_u24 v{64+k}, v{73+k}, s{sDm}, v{CE+k}")
        g(f"v_add_u32 v{64+k}, s{sQ}, v{64+k}")
    g(f"s_lshl_b32 s{sQ}, s{sT}, 6")
    g(f"s_add_u32 s{sQ}, s{sQ}, s{sC}")
    g(f"s_lshl_b32 s{sQ}, s{sQ}, 7")
    g(f"s_add_u32 s{sQ}, s{sQ}, {WS_EXT}")
    g(f"v_lshrrev_b32 v68, 3, v{vLane}")
    g(f"s_lshl_b32 s{sOff}, s{sWV}, 5")
    g(f"s_add_u32 s{sOff}, s{sOff}, {PCNT}")
    g(f"v_lshl_add_u32 v67, v68, 2, s{sOff}")
    g.c("================ producer: bin this chunk's edges of the group's buckets")
    PB, PR = 48, 53
    PMK = [64, 66, 68, 70, 72]
    g(f"s_mov_b32 s{sT}, {PCNT}")
    g(f"s_waitcnt vmcnt({nlate+6})")
    g.stamp(11)
    for k in range(5):
        g(f"v_and_b32 v{PB+k}, 255, v{pD+k}")
        g(f"v_subrev_u32 v{PB+k}, s{sN}, v{PB+k}")
        g(f"v_cmp_gt_u32 {s(PMK[k],2)}, 64, v{PB+k}")
        g(f"v_lshl_add_u32 v60, v{PB+k}, 2, s{sT}")
        if k == 4:
            g(f"s_and_b64 {s(PMK[k],2)}, {s(PMK[k],2)}, {s(sPM,2)}")
        g(f"s_mov_b64 exec, {s(PMK[k],2)}")
        g(f"ds_add_rtn_u32 v{PR+k}, v60, v58")
        g("s_mov_b64 exec, -1")
    g(f"s_waitcnt vmcnt({nlate+4})")
    for k in range(5):
        g(f"v_bfe_u32 v{pD+k}, v{pD+k}, 8, 6")
        g(f"v_min_u32 v{pD+k}, 47, v{pD+k}")
        g(f"v_and_b32 v{pS+k}, 0x3fff, v{pS+k}")
        g(f"v_lshl_or_b32 v{pD+k}, v{pS+k}, 6, v{pD+k}")
        if k < 4:
            g(f"v_add_u32 v{pS+k}, {k<<20}, v43")
        else:
            g(f"v_add_u32 v{pS+k}, {2048<<20}, v59")
        g(f"v_or_b32 v{pD+k}, v{pD+k}, v{pS+k}")
        g(f"v_lshlrev_b32 v{PB+k}, 9, v{PB+k}")
    g("v_mov_b32 v59, -2")
    g(f"s_waitcnt vmcnt({nlate}) lgkmcnt(0)")
    g(f"v_readfirstlane_b32 s{sTag}, v42")
    for k in range(5):
        g(f"v_cmp_gt_u32 vcc, 31, v{PR+k}")
        g(f"v_min_u32 v{PR+k}, 31, v{PR+k}")
        g(f"v_lshl_add_u32 v{PB+k}, v{PR+k}, 4, v{PB+k}")
        g(f"v_cndmask_b32 v{pD+k}, v59, v{pD+k}, vcc")
        g(f"s_mov_b64 exec, {s(PMK[k],2)}")
        g(f"ds_write_b32 v{PB+k}, v{pD+k} offset:{PIMG}")
        g(f"ds_write_b64 v{PB+k}, {v(pH+2*k,2)} offset:{PIMG+8}")
        g("s_mov_b64 exec, -1")
    g(f"s_add_u32 s{sTag}, s{sTag}, 1")
    g("s_waitcnt lgkmcnt(0)")
    g("s_barrier")
    for k in range(3):
        g(f"ds_read_b128 {v(16+4*k,4)}, v{61+k} offset:{PIMG}")
    g("ds_read_b32 v67, v67")
    for k in range(3):
        g(f"s_waitcnt lgkmcnt({3-k})")
        g(f"v_mov_b32 v{17+4*k}, s{sTag}")
        g(f"buffer_store_dwordx4 {v(16+4*k,4)}, v{64+k}, {s(WS,4)}, 0 offen sc1")
    g("s_waitcnt lgkmcnt(0)")
    g("v_cmp_lt_u32 vcc, 23, v67")
    g("s_cbranch_vccz L_noup")
    g.c("cells with 24 or more entries also publish entries 24..31")
    g(f"v_and_b32 v60, 7, v{vLane}")
    g(f"v_lshlrev_b32 v60, 4, v60")
    g(f"v_lshl_add_u32 v69, v68, 9, v60")
    g(f"v_add_u32 v69, s{sPB}, v69")
    g(f"ds_read_b128 v[28:31], v69 offset:{PIMG+384}")
    g(f"v_lshl_add_u32 v69, v68, 13, v60")
    g(f"v_add_u32 v69, s{sQ}, v69")
    g("s_waitcnt lgkmcnt(0)")
    g(f"v_mov_b32 v29, s{sTag}")
    g("s_mov_b64 exec, vcc")
    g(f"buffer_store_dwordx4 v[28:31], v69, {s(WS,4)}, 0 offen sc1")
    g("s_mov_b64 exec, -1")
    g.label("L_noup")
    g.stamp(12)
    pf(pfs[1])
    g.c("---- waves 0,1: fragment gw = 2*chunk+wave of w_out (N-tile gw>>4, k-step gw&15), loads")
    g(f"s_cmp_ge_u32 s{sWV}, 2")
    g("s_cbranch_scc1 L_nowf")
    g(f"s_lshl1_add_u32 s{sPB}, s{sC}, s{sWV}")
    g(f"s_and_b32 s{sT}, s{sPB}, 15")
    g(f"s_lshl_b32 s{sT}, s{sT}, 13")
    g(f"s_lshr_b32 s{sOff}, s{sPB}, 4")
    g(f"s_lshl_b32 s{sOff}, s{sOff}, 6")
    g(f"s_add_u32 s{sT}, s{sT}, s{sOff}")
    g(f"v_lshrrev_b32 v60, 5, v{vLane}")
    g(f"v_lshlrev_b32 v60, 12, v60")
    g(f"v_and_b32 v61, 31, v{vLane}")
    g(f"v_lshl_add_u32 v60, v61, 1, v60")
    g(f"v_add_u32 v60, s{sT}, v60")
    for q in range(8):
        g(f"buffer_load_ushort v{32+q}, v60, {s(WO,4)}, 0 offen offset:{q*512}")
    g.label("L_nowf")
    vWb = 77
    g(f"v_lshrrev_b32 v60, 5, v{vLane}")
    g(f"v_bfe_u32 v61, v{vLane}, 2, 2")
    g(f"v_bfe_u32 v62, v{vLane}, 4, 1")
    g(f"v_and_b32 v63, 3, v{vLane}")
    g(f"v_lshlrev_b32 v{vWb}, 12, v62")
    g(f"v_lshl_add_u32 v{vWb}, v61, 9, v{vWb}")
    g(f"v_lshl_add_u32 v{vWb}, v60, 5, v{vWb}")
    g(f"v_lshl_add_u32 v{vWb}, v63, 3, v{vWb}")
    g(f"s_mul_i32 s{sT}, s{sB}, {ROWB}")
    g(f"s_mul_i32 s{sQ}, s{sWV}, 3072")
    g(f"s_add_u32 s{sT}, s{sT}, s{sQ}")
    g(f"s_add_u32 s{sT}, s{sT}, {WS_CELLS}")
    g(f"v_lshl_add_u32 v{CE}, v{vLane}, 4, s{sT}")
    g(f"s_lshl3_add_u32 s{sQ}, s{sB}, s{sWV}")
    g(f"s_lshl_b32 s{sQ}, s{sQ}, 10")
    g(f"s_add_u32 s{sQ}, s{sQ}, {WS_EXT}")
    g(f"s_mul_i32 s{sC}, s{sWV}, 20000")
    g(f"s_movk_i32 s{sDm}, 2500")
    for k in range(3):
        g(f"v_mul_u32_u24 v{73+k}, s{sDm}, v{73+k}")
        g(f"v_add_u32 v{73+k}, s{sC}, v{73+k}")
    for r in range(ACC, ACC + 76, 2):
        g(f"v_mov_b64 {v(r,2)}, 0")
    g.c("================ consumer: fetch this wave's entries until every tag matches")
    EN = [48, 52, 56, 40]
    g.stamp(13)
    for k in range(3):
        g(f"s_mov_b64 {s(sM[k],2)}, -1")
    g(f"s_mov_b32 s{sC}, 0")
    if o.prewait:
        g("s_waitcnt vmcnt(0)")
    g.stamp(14)
    g.label("L_poll")
    for k in range(3):
        lab = g.newlab()
        g(f"s_mov_b64 exec, {s(sM[k],2)}")
        g(f"s_cbranch_execz {lab}")
        g(f"buffer_load_dwordx4 {v(EN[k],4)}, v{CE}, {s(WS,4)}, 0 offen offset:{1024*k} sc1")
        g.label(lab)
    g("s_mov_b64 exec, -1")
    g("s_waitcnt vmcnt(0)")
    for k in range(3):
        g(f"v_cmp_ne_u32 {s(sM[k],2)}, s{sTag}, v{EN[k]+1}")
    g(f"s_or_b64 s[4:5], {s(sM[0],2)}, {s(sM[1],2)}")
    g(f"s_or_b64 s[4:5], s[4:5], {s(sM[2],2)}")
    g("s_cbranch_scc0 L_got")
    g(f"s_sleep {o.sleep}")
    g(f"s_add_u32 s{sC}, s{sC}, 1")
    g(f"s_cmp_lt_u32 s{sC}, 0x400000")
    g("s_cbranch_scc1 L_poll")
    g.label("L_got")
    g.stamp(1)
    g(f"v_lshl_or_b32 v{vCG}, v45, 16, v44")
    g(f"v_lshl_or_b32 v{vCG+1}, v47, 16, v46")
    lab = g.newlab()
    g(f"s_cmp_ge_u32 s{sWV}, 2")
    g(f"s_cbranch_scc1 {lab}")
    for q in range(4):
        g(f"v_lshl_or_b32 v{44+q}, v{33+2*q}, 16, v{32+2*q}")
    g(f"s_lshl_b32 s{sT}, s{sN}, 1")
    g(f"s_add_u32 s{sT}, s{sT}, s{sPB}")
    g(f"s_lshl2_add_u32 s{sWfl}, s{sT}, {WS_FW}")
    g(f"s_lshl_b32 s{sT}, s{sT}, 10")
    g(f"s_add_u32 s{sT}, s{sT}, {WS_WF}")
    g(f"v_lshl_add_u32 v60, v{vLane}, 4, s{sT}")
    g(f"buffer_store_dwordx4 v[44:47], v60, {s(WS,4)}, 0 offen sc1")
    g.label(lab)
    g(f"v_mov_b64 {v(ACC+76,2)}, 0")
    g(f"v_mov_b64 {v(ACC+78,2)}, 0")
    for k in range(3):
        g(f"v_cmp_gt_u32 {s(sM[k],2)}, -2, v{EN[k]}")
    g(f"v_mov_b32 v{EN[3]}, -1")
    g(f"s_mov_b64 {s(sM[3],2)}, 0")
    last = [(24*i+23) for i in range(8)]
    g("s_mov_b64 s[6:7], 0")
    for i, p in enumerate(last):
        g(f"s_bitcmp1_b64 {s(sM[p//64],2)}, {p%64}")
        g(f"s_cselect_b32 s{sT}, {0xff << (8*(i%4))}, 0")
        g(f"s_or_b32 s{6+i//4}, s{6+i//4}, s{sT}")
    g("s_cmp_eq_u64 s[6:7], 0")
    g("s_cbranch_scc1 L_noext")
    g.c("rare: entries 24..31 of the full cells")
    g(f"v_lshl_add_u32 v61, v{vLane}, 4, s{sQ}")
    g(f"v_mov_b32 v{EN[3]+1}, s{sTag}")
    g.label("L_poll2")
    g("s_mov_b64 exec, s[6:7]")
    g(f"buffer_load_dwordx4 {v(EN[3],4)}, v61, {s(WS,4)}, 0 offen sc1")
    g("s_mov_b64 exec, -1")
    g("s_waitcnt vmcnt(0)")
    g(f"v_cmp_ne_u32 vcc, s{sTag}, v{EN[3]+1}")
    g("s_cbranch_vccz L_got2")
    g("s_sleep 1")
    g(f"s_add_u32 s{sC}, s{sC}, 1")
    g(f"s_cmp_lt_u32 s{sC}, 0x400000")
    g("s_cbranch_scc1 L_poll2")
    g.label("L_got2")
    g(f"v_cmp_gt_u32 {s(sM[3],2)}, -2, v{EN[3]}")
    g.label("L_noext")
    g(f"v_lshrrev_b32 v60, 3, v{vLane}")
    g(f"v_mul_u32_u24 v72, s{sDm}, v60")
    g(f"s_mul_i32 s{sC}, s{sWV}, 20000")
    g(f"v_add_u32 v72, s{sC}, v72")
    EB = [73, 74, 75, 72]
    g(f"v_cmp_eq_u32 vcc, -2, v{EN[3]}")
    NK = [64, 65, 66, 67]
    for k in range(4):
        g(f"s_bcnt1_i32_b64 s{NK[k]}, {s(sM[k],2)}")
    g(f"s_add_u32 s65, s65, s64")
    g(f"s_add_u32 s66, s66, s65")
    g(f"s_add_u32 s{sCnt}, s67, s66")
    g(f"v_mov_b32 v61, s{sCnt}")
    g(f"v_mov_b32 v60, {POOL}")
    g("s_mov_b64 exec, 1")
    g("ds_add_rtn_u32 v61, v60, v61")
    g("s_mov_b64 exec, -1")
    PO = 62
    for k in range(4):
        g(f"v_mbcnt_lo_u32_b32 v{PO+k}, s{sM[k]}, 0")
        g(f"v_mbcnt_hi_u32_b32 v{PO+k}, s{sM[k]+1}, v{PO+k}")
        if k:
            g(f"v_add_u32 v{PO+k}, s{NK[k-1]}, v{PO+k}")
        g(f"v_lshrrev_b32 v{cE+k}, 20, v{EN[k]}")
        g(f"v_add_u32 v{cE+k}, v{cE+k}, v{EB[k]}")
        g(f"v_lshl_add_u32 v66, v{PO+k}, 2, s{sCand}")
        g(f"s_mov_b64 exec, {s(sM[k],2)}")
        g(f"ds_write_b32 v66, v{cE+k}")
        g("s_mov_b64 exec, -1")
        g(f"v_lshlrev_b32 v{cX+k}, 2, v{EN[k]}")
        g(f"v_and_b32 v{cX+k}, s{sMask}, v{cX+k}")
        g(f"v_and_b32 v{cM+k}, 63, v{EN[k]}")
    g(f"s_mov_b32 s{sL}, 79")
    g("s_waitcnt lgkmcnt(0)")
    g(f"v_readfirstlane_b32 s{sPB}, v61")
    g("s_cbranch_vccnz L_defer")
    g(f"s_add_u32 s{sT}, s{sPB}, s{sCnt}")
    g(f"s_cmp_gt_u32 s{sT}, {POOLCAP}")
    g("s_cbranch_scc1 L_defer")
    g(f"s_mov_b32 s{sT}, {PSH}")
    for k in range(4):
        g(f"v_add_u32 v{PO+k}, s{sPB}, v{PO+k}")
        g(f"v_lshl_or_b32 v{cX+k}, v{PO+k}, 22, v{cX+k}")
        g(f"v_lshl_add_u32 v{PO+k}, v{PO+k}, 3, s{sT}")
        g(f"s_mov_b64 exec, {s(sM[k],2)}")
        g(f"ds_write_b64 v{PO+k}, {v(EN[k]+2,2)}")
        g("s_mov_b64 exec, -1")
    g("s_branch L_have")
    g.label("L_defer")
    g.c("this wave's cells overflowed (or the pool is full): rescan its edge range in later rounds")
    g(f"s_mov_b32 s{sL}, 0")
    g(f"s_mov_b32 s{sCnt}, 0")
    g(f"s_mov_b32 s{sPB}, 0")
    for k in range(4):
        g(f"s_mov_b64 {s(sM[k],2)}, 0")
    g("v_mov_b32 v58, 1")
    g(f"v_mov_b32 v59, {FLAG}")
    g("ds_write_b32 v59, v58")
    g("s_branch L_have")

    g.label("L_scan")
    g.c("================ fallback scan of this wave's 20000 dst entries (rare path)")
    g("s_barrier")
    BUF = 60
    g(f"s_mov_b32 s{sAddr}, s{sRing}")
    g(f"s_add_u32 s{sLimit}, s{sRing}, {128*8}")
    g(f"s_xor_b32 s{sNomatch}, s{sB}, 1")
    g.label("L_sloop")
    g(f"s_cmp_ge_u32 s{sL}, 79")
    g("s_cbranch_scc1 L_scan_done")
    g(f"s_mul_i32 s{sT}, s{sWV}, 20000")
    g(f"s_lshl_b32 s{sN}, s{sL}, 8")
    g(f"s_add_u32 s{sC}, s{sT}, s{sN}")
    g(f"v_lshlrev_b32 v56, 2, v{vLane}")
    g(f"v_add_u32 v56, s{sC}, v56")
    g(f"v_lshlrev_b32 v57, 2, v56")
    g(f"buffer_load_dwordx4 {v(BUF,4)}, v57, {s(DST,4)}, 0 offen")
    g("s_waitcnt vmcnt(0)")
    g(f"s_cmp_lg_u32 s{sL}, 78")
    g("s_cbranch_scc1 L_snotlast")
    g(f"s_mov_b32 exec_lo, 0xffffff00")
    for k in range(4):
        g(f"v_mov_b32 v{BUF+k}, s{sNomatch}")
    g("s_mov_b64 exec, -1")
    g.label("L_snotlast")
    for k in range(4):
        lab = g.newlab()
        g(f"s_cmp_gt_u32 s{sKskip}, {k}")
        g(f"s_cbranch_scc1 {lab}")
        g(f"v_cmp_eq_u32_sdwa vcc, v{BUF+k}, s{sB} src0_sel:BYTE_0 src1_sel:DWORD")
        g(f"s_cbranch_vccz {lab}")
        g(f"s_bcnt1_i32_b64 s{sT}, vcc")
        g(f"s_lshl3_add_u32 s{sN}, s{sT}, s{sAddr}")
        g(f"s_mov_b32 s{sKskip}, {k}")
        g(f"s_cmp_gt_u32 s{sN}, s{sLimit}")
        g(f"s_cbranch_scc1 L_ovf")
        g(f"v_mbcnt_lo_u32_b32 v58, vcc_lo, 0")
        g(f"v_mbcnt_hi_u32_b32 v58, vcc_hi, v58")
        g(f"v_lshl_add_u32 v58, v58, 3, s{sAddr}")
        g(f"v_add_u32 v59, {k}, v56")
        g("s_mov_b64 exec, vcc")
        g(f"ds_write2_b32 v58, v{BUF+k}, v59 offset0:0 offset1:1")
        g("s_mov_b64 exec, -1")
        g(f"s_mov_b32 s{sAddr}, s{sN}")
        g.label(lab)
    g(f"s_mov_b32 s{sKskip}, 0")
    g(f"s_add_u32 s{sL}, s{sL}, 1")
    g("s_branch L_sloop")
    g.label("L_ovf")
    g("v_mov_b32 v58, 1")
    g(f"v_mov_b32 v59, {FLAG}")
    g("ds_write_b32 v59, v58")
    g.label("L_scan_done")
    g(f"s_sub_u32 s{sCnt}, s{sAddr}, s{sRing}")
    g(f"s_lshr_b32 s{sCnt}, s{sCnt}, 3")
    g(f"s_lshl_b32 s{sPB}, s{sWV}, 7")
    g(f"v_lshlrev_b32 v58, 3, v{vLane}")
    g(f"v_add_u32 v58, s{sRing}, v58")
    g("s_waitcnt lgkmcnt(0)")
    for k in range(2):
        g(f"ds_read_b32 v{cM+k}, v58 offset:{512*k}")
        g(f"ds_read_b32 v{cE+k}, v58 offset:{512*k+4}")
        g(f"s_sub_u32 s{sT}, s{sCnt}, {64*k}")
        g(f"v_cmp_gt_i32 {s(sM[k],2)}, s{sT}, v{vLane}")
    for k in range(2, 4):
        g(f"s_mov_b64 {s(sM[k],2)}, 0")
        g(f"v_mov_b32 v{cM+k}, 0")
        g(f"v_mov_b32 v{cX+k}, 0")
    g(f"v_lshl_add_u32 v58, v{vLane}, 2, s{sCand}")
    g(f"v_add_u32 v59, s{sPB}, v{vLane}")
    g(f"v_lshlrev_b32 v59, 22, v59")
    g("s_waitcnt lgkmcnt(0)")
    for k in range(2):
        g(f"v_lshlrev_b32 v{cK+k}, 2, v{cE+k}")
        g(f"buffer_load_dword v{cX+k}, v{cK+k}, {s(SRC,4)}, 0 offen")
        g(f"v_bfe_u32 v{cM+k}, v{cM+k}, 8, 6")
        g(f"v_min_u32 v{cM+k}, 47, v{cM+k}")
        g(f"ds_write_b32 v58, v{cE+k} offset:{256*k}")
    g("s_waitcnt vmcnt(0)")
    for k in range(2):
        g(f"v_and_b32 v{cX+k}, 0x3fff, v{cX+k}")
        g(f"v_lshl_or_b32 v{cX+k}, v{cX+k}, 8, v59")
        g(f"v_add_u32 v59, {64<<22}, v59")
    g.label("L_have")
    g.c("================ histogram over (slot, src bin); payload DMA set-up")
    g("v_mov_b32 v58, 1")
    g(f"s_mov_b32 s{sT}, {HIST}")
    g(f"s_mov_b32 s{sN}, {DEG}")
    for k in range(4):
        g(f"v_bfe_u32 v{cK+k}, v{cX+k}, 8, 14")
        g(f"v_mul_u32_u24 v{cK+k}, 6711, v{cK+k}")
        g(f"v_lshrrev_b32 v{cK+k}, 22, v{cK+k}")
        g(f"v_min_u32 v{cK+k}, 15, v{cK+k}")
        g(f"v_lshl_add_u32 v{cK+k}, v{cK+k}, 2, s{sT}")
        g(f"v_lshl_add_u32 v{cK+k}, v{cM+k}, 6, v{cK+k}")
        g(f"v_lshl_add_u32 v{cM+k}, v{cM+k}, 2, s{sN}")
        g(f"s_mov_b64 exec, {s(sM[k],2)}")
        g(f"ds_add_rtn_u32 v{cR+k}, v{cK+k}, v58")
        g(f"ds_add_u32 v{cM+k}, v58")
        g("s_mov_b64 exec, -1")
    g(f"v_lshrrev_b32 v{vL2}, 1, v{vLane}")
    g(f"v_lshl_add_u32 v{vCand}, v{vL2}, 2, s{sCand}")
    EI = 40
    for q in range(4):
        g(f"ds_read_b32 v{EI+q}, v{vCand} offset:{128*q}")
    g(f"v_and_b32 v{vP4}, 1, v{vLane}")
    g(f"v_lshlrev_b32 v{vP16}, 4, v{vP4}")
    g(f"v_lshlrev_b32 v{vP4}, 2, v{vP4}")
    g(f"s_mov_b32 s{sDm}, s{sCnt}")
    g(f"s_mov_b32 s{sQ}, s{sPB}")
    g(f"v_lshl_add_u32 v56, v{vLane}, 2, s{sN}")
    g(f"v_mov_b32 v57, {FLAG}")
    g("s_waitcnt lgkmcnt(0)")

    def pay(q):
        lab = g.newlab()
        g(f"s_cmp_le_i32 s{sDm}, 0")
        g(f"s_cbranch_scc1 {lab}")
        g(f"v_lshl_add_u32 v44, v{EI+q}, 5, v{vP16}")
        g(f"v_lshl_add_u32 v45, v{EI+q}, 3, v{vP4}")
        g(f"v_cmp_gt_i32 vcc, s{sDm}, v{vL2}")
        g(f"s_lshl_b32 s{sOff}, s{sQ}, 5")
        g(f"s_add_u32 m0, s{sOff}, {PEA}")
        g("s_mov_b64 exec, vcc")
        g(f"buffer_load_dwordx4 v44, {s(EA,4)}, 0 offen{o.eald} lds")
        l1 = g.newlab()
        g(f"s_lshl3_add_u32 m0, s{sQ}, {PSH}")
        g(f"s_cmp_eq_u32 s{sRound}, 0")
        g(f"s_cbranch_scc1 {l1}")
        g(f"buffer_load_dword v45, {s(SH,4)}, 0 offen lds")
        g.label(l1)
        g("s_mov_b64 exec, -1")
        g(f"s_add_u32 s{sQ}, s{sQ}, 32")
        g(f"s_sub_i32 s{sDm}, s{sDm}, 32")
        g.label(lab)
    sched = [int(x) for x in o.pay.split(",")]
    def stage(st):
        for q in range(4):
            if sched[q] == st:
                pay(q)
    stage(0)
    g("s_barrier")
    g.stamp(2)
    g.c("================ degrees, assignment, offsets")
    vDeg, vKey, vRank = 56, 57, 59
    g(f"ds_read_b32 v{vDeg}, v56")
    g(f"ds_read_b32 v57, v57")
    stage(1)
    g("s_waitcnt lgkmcnt(0)")
    g(f"v_readfirstlane_b32 s{sMore}, v57")
    g(f"s_cmp_lg_u32 s{sRound}, 0")
    g("s_cbranch_scc1 L_assigned")
    for i in range(4):
        for be in range(2):
            for t in range(2):
                g(f"ds_read_b64_tr_b16 {a_(aWR+8*i+4*be+2*t,2)}, v{vWb} offset:{WRIMG + t*2048 + (64*i+32*be)*2}")
    lab = g.newlab()
    g(f"s_and_b32 s{sT}, s{sB}, 63")
    g(f"s_or_b32 s{sT}, s{sT}, s{sWV}")
    g(f"s_cbranch_scc1 {lab}")
    g.c("the group's first workgroup has seen entries of all 64 members: all have read the epoch; advance it")
    g(f"s_lshl_b32 s{sT}, s{sB}, 1")
    g(f"v_mov_b32 v60, s{sT}")
    g(f"v_mov_b32 v61, s{sTag}")
    g("s_mov_b64 exec, 1")
    g(f"buffer_store_dword v61, v60, {s(WS,4)}, 0 offen sc1")
    g("s_mov_b64 exec, -1")
    g.label(lab)
    g(f"v_sub_u32 v{vKey}, 63, v{vLane}")
    g(f"v_lshl_add_u32 v{vKey}, v{vDeg}, 6, v{vKey}")
    g(f"v_mov_b32 v{vRank}, 0")
    masks = ["vcc", "s[4:5]", "s[6:7]"]
    for b0 in range(0, 40, 16):
        nb = min(16, 40 - b0)
        for j in range(nb):
            g(f"v_readlane_b32 s{sKey+j}, v{vKey}, {b0+j}")
        j = 0
        while j < nb:
            m = min(3, nb - j)
            for t in range(m):
                g(f"v_cmp_gt_u32 {masks[t]}, s{sKey+j+t}, v{vKey}")
            if m < 3:
                g.nop(3 - m)
            for t in range(m):
                g(f"v_addc_co_u32 v{vRank}, {masks[t]}, 0, v{vRank}, {masks[t]}")
            j += m
    g(f"v_bfe_u32 v60, v{vRank}, 3, 1")
    g(f"v_mul_u32_u24 v60, 7, v60")
    g(f"v_and_b32 v61, 7, v{vRank}")
    g(f"v_xor_b32 v{vOwner}, v60, v61")
    g(f"s_sub_u32 s{sT}, 7, s{sWV}")
    for k in range(5):
        g(f"s_add_u32 s{sN}, s{sT if k & 1 else sWV}, {8*k}")
        g(f"v_cmp_eq_u32 vcc, s{sN}, v{vRank}")
        g(f"s_ff1_i32_b64 s{sSlot+k}, vcc")
    g.label("L_assigned")
    g(f"v_cmp_gt_u32 vcc, s{sWV}, v{vOwner}")
    g(f"v_and_b32 v61, 15, v{vLane}")
    g(f"v_lshlrev_b32 v61, 2, v61")
    g(f"v_cndmask_b32 v60, 0, v{vDeg}, vcc")
    g(f"v_add_u32 v61, {HIST}, v61")
    AD, CN = 64, 70
    for k in range(5):
        g(f"s_lshl_b32 s{sKey+k}, s{sSlot+k}, 6")
        g(f"v_add_u32 v{AD+k}, s{sKey+k}, v61")
        g(f"ds_read_b32 v{CN+k}, v{AD+k}")
    for n_, sh_ in enumerate((1, 2, 4, 8)):
        g(f"v_add_u32_dpp v60, v60, v60 row_shr:{sh_} row_mask:0xf bank_mask:0xf bound_ctrl:1")
        g(f"v_readlane_b32 s{sKey+8+n_}, v{vDeg}, s{sSlot+n_}")
        g.nop(1)
    g(f"v_readlane_b32 s{sKey+12}, v{vDeg}, s{sSlot+4}")
    g(f"v_readlane_b32 s{sBase}, v60, 15")
    g(f"v_readlane_b32 s{sT}, v60, 31")
    g(f"v_readlane_b32 s{sN}, v60, 47")
    g(f"s_add_u32 s{sRem}, s{sKey+8}, s{sKey+9}")
    for k in range(2, 5):
        g(f"s_add_u32 s{sRem}, s{sRem}, s{sKey+8+k}")
    g(f"s_add_u32 s{sBase}, s{sBase}, s{sT}")
    g(f"s_add_u32 s{sBase}, s{sBase}, s{sN}")
    g(f"s_add_u32 s{sBase}, s{sBase}, 3")
    g(f"s_andn2_b32 s{sBase}, s{sBase}, 3")
    g(f"s_lshl2_add_u32 s{sBase}, s{sWV}, s{sBase}")
    g("s_waitcnt lgkmcnt(0)")
    g(f"v_add3_u32 v60, v{CN}, v{CN+1}, v{CN+2}")
    g(f"v_add3_u32 v60, v60, v{CN+3}, v{CN+4}")
    g("v_mov_b32 v61, v60")
    for sh_ in (1, 2, 4, 8):
        g.nop(2)
        g(f"v_add_u32_dpp v61, v61, v61 row_shr:{sh_} row_mask:0xf bank_mask:0xf bound_ctrl:1")
    g("v_sub_u32 v61, v61, v60")
    g(f"v_add_u32 v61, s{sBase}, v61")
    for k in range(5):
        g(f"v_lshl_add_u32 v{75+k}, v61, 8, {16*k}")
        g(f"ds_write_b32 v{AD+k}, v{75+k} offset:{OFF-HIST}")
        if k < 4:
            g(f"v_add_u32 v61, v61, v{CN+k}")
    stage(2)
    g("s_waitcnt lgkmcnt(0)")
    g("s_barrier")
    g.stamp(8)
    g.c("================ placement of (pool index | src | acc offset); re-zero HIST/FLAG")
    for k in range(4):
        g(f"ds_read_b32 v{cM+k}, v{cK+k} offset:{OFF-HIST}")
    g("v_mov_b32 v60, 0")
    g("v_mov_b32 v61, 0")
    g(f"v_lshlrev_b32 v64, 3, v0")
    g(f"v_add_u32 v64, {HIST}, v64")
    g("ds_write_b64 v64, v[60:61]")
    g(f"v_mov_b32 v64, {FLAG}")
    g("ds_write_b32 v64, v60")
    g(f"s_mov_b32 s{sT}, {META}")
    g(f"s_movk_i32 s{sN}, 255")
    g("s_waitcnt lgkmcnt(2)")
    for k in range(4):
        g(f"v_lshrrev_b32 v{cK+k}, 8, v{cM+k}")
        g(f"v_add_u32 v{cK+k}, v{cK+k}, v{cR+k}")
        g(f"v_and_or_b32 v{cM+k}, v{cM+k}, s{sN}, v{cX+k}")
        g(f"v_lshl_add_u32 v{cK+k}, v{cK+k}, 2, s{sT}")
        g(f"s_mov_b64 exec, {s(sM[k],2)}")
        g(f"ds_write_b32 v{cK+k}, v{cM+k}")
        g("s_mov_b64 exec, -1")
    stage(3)
    g.c("lists longer than 128 candidates (rare): fetch the rest")
    g.label("L_paymore")
    g(f"s_cmp_le_i32 s{sDm}, 0")
    g("s_cbranch_scc1 L_paydone")
    g(f"ds_read_b32 v{EI}, v{vCand} offset:512")
    g(f"v_add_u32 v{vCand}, 128, v{vCand}")
    g("s_waitcnt lgkmcnt(0)")
    pay(0)
    g("s_branch L_paymore")
    g.label("L_paydone")
    RW, D, B, EA1, EA2, AC, M4, I1, I2, SHO = 16, 32, 48, 56, 60, 32, 68, 72, 73, 64
    vB1, vB2, vBS, vM1, vM2 = 74, 75, 76, 77, 78
    g(f"s_lshl_b32 s{sBase}, s{sBase}, 2")
    g(f"s_add_u32 s{sBase}, s{sBase}, {META}")
    g(f"v_mov_b32 v{vMetaA}, s{sBase}")
    g(f"v_and_b32 v62, 3, v{vLane}")
    g(f"v_lshl_add_u32 v{vM1}, v62, 2, s{sBase}")
    g(f"v_bfe_u32 v62, v{vLane}, 2, 2")
    g(f"v_lshl_add_u32 v{vM2}, v62, 2, s{sBase}")
    g(f"v_bfe_u32 v63, v{vLane}, 4, 1")
    g(f"v_lshlrev_b32 v63, 4, v63")
    g(f"v_add_u32 v63, {PEA}, v63")
    g(f"v_mov_b32 v65, {PSH}")
    g(f"v_mov_b32 v62, {ZERO}")
    g(f"v_cmp_ne_u32 vcc, 0, v{vMul1}")
    g(f"v_cmp_ne_u32 s[4:5], 0, v{vMul2}")
    g(f"v_cmp_ne_u32 s[6:7], 0, v{vMulS}")
    g(f"v_cndmask_b32 v{vB1}, v62, v63, vcc")
    g(f"v_cndmask_b32 v{vB2}, v62, v63, s[4:5]")
    g(f"v_cndmask_b32 v{vBS}, v62, v65, s[6:7]")
    g("s_waitcnt lgkmcnt(0)")
    g("s_barrier")
    g.stamp(3)

    def issue(sm, r):
        g(f"s_and_b32 s{sOff}, s{sm+r}, s{sMask}")
        g(f"s_add_u32 m0, s{sRing}, {r*2048}")
        g(f"s_lshl_b32 s{sOff}, s{sOff}, 3")
        g(f"buffer_load_dwordx4 v{vDma0}, {s(X,4)}, s{sOff} offen lds")
        g(f"buffer_load_dwordx4 v{vDma1}, {s(X,4)}, s{sOff} offen offset:1024 lds")

    def opaddr():
        g(f"v_lshrrev_b32 v{I1}, 22, v{I1}")
        g(f"v_lshrrev_b32 v{I2}, 22, v{I2}")
        g(f"v_mad_u32_u24 v{vEa1}, v{I1}, v{vMul1}, v{vB1}")
        g(f"v_mad_u32_u24 v{vEa2}, v{I1}, v{vMul2}, v{vB2}")
        g(f"v_mad_u32_u24 v{vSh}, v{I2}, v{vMulS}, v{vBS}")

    g.c("================ first rows, then wait for everybody's payload")
    g(f"ds_read_b128 {v(M4,4)}, v{vMetaA}")
    g(f"ds_read_b32 v{I1}, v{vM1}")
    g(f"ds_read_b32 v{I2}, v{vM2}")
    g(f"s_cmp_lt_u32 s{sRem}, {R}")
    g("s_cbranch_scc1 L_short")
    g("s_waitcnt lgkmcnt(2)")
    for r in range(4):
        g(f"v_readfirstlane_b32 s{sMa+r}, v{M4+r}")
    for r in range(R):
        issue(sMa, r)
    g(f"s_waitcnt vmcnt({2*R})")
    g("s_branch L_go")
    g.label("L_short")
    g("s_waitcnt vmcnt(0) lgkmcnt(0)")
    for r in range(4):
        g(f"v_readfirstlane_b32 s{sMa+r}, v{M4+r}")
    for r in range(R - 1):
        g(f"s_cmp_le_u32 s{sRem}, {r}")
        g("s_cbranch_scc1 L_go")
        issue(sMa, r)
    g.label("L_go")
    lab = g.newlab()
    g(f"s_cmp_ge_u32 s{sWV}, 2")
    g(f"s_cbranch_scc1 {lab}")
    g(f"s_cmp_lg_u32 s{sRound}, 0")
    g(f"s_cbranch_scc1 {lab}")
    g.c("this wave's w_out fragment has been acknowledged: publish its flag (one extra wait step below)")
    g(f"v_mov_b32 v62, s{sWfl}")
    g(f"v_mov_b32 v63, s{sTag}")
    g("s_mov_b64 exec, 1")
    g(f"buffer_store_dword v63, v62, {s(WS,4)}, 0 offen sc1")
    g("s_mov_b64 exec, -1")
    g.label(lab)
    g("s_waitcnt lgkmcnt(0)")
    opaddr()
    g("s_barrier")
    g.stamp(9)
    g.cstamp(18)
    g(f"s_cmp_eq_u32 s{sRem}, 0")
    g("s_cbranch_scc1 L_round_done")
    g.c("================ sweep: groups of 4 edges")
    g.label("L_group")
    g(f"ds_read_b64 {v(SHO,2)}, v{vSh}")
    g(f"ds_read_b128 {v(EA1,4)}, v{vEa1}")
    g(f"ds_read_b128 {v(EA2,4)}, v{vEa2}")
    g(f"ds_read_b128 {v(M4,4)}, v{vMetaA} offset:16")
    g(f"ds_read_b32 v{I1}, v{vM1} offset:16")
    g(f"ds_read_b32 v{I2}, v{vM2} offset:16")
    g(f"v_add_u32 v{vMetaA}, 16, v{vMetaA}")
    g(f"v_add_u32 v{vM1}, 16, v{vM1}")
    g(f"v_add_u32 v{vM2}, 16, v{vM2}")
    g("s_waitcnt lgkmcnt(0)")
    g(f"v_mfma_f32_16x16x16_bf16 {v(AC,4)}, {v(vCG,2)}, {v(SHO,2)}, 0")
    for i in range(4):
        g(f"v_mfma_f32_16x16x32_bf16 {v(RW+4*i,4)}, {v(EA1,4)}, {a_(aWR+8*i,4)}, 0")
    for i in range(4):
        g(f"v_mfma_f32_16x16x32_bf16 {v(RW+4*i,4)}, {v(EA2,4)}, {a_(aWR+8*i+4,4)}, {v(RW+4*i,4)}")
    for r in range(4):
        g(f"v_readfirstlane_b32 s{sMb+r}, v{M4+r}")
    g(f"v_cvt_pk_bf16_f32 v{SHO}, v{AC}, v{AC+1}")
    g(f"v_cvt_pk_bf16_f32 v{SHO+1}, v{AC+2}, v{AC+3}")
    opaddr()
    for r in range(4):
        g.c(f"-- edge {r}")
        l1 = g.newlab()
        g(f"s_cmp_ge_u32 s{sRem}, {R}")
        g(f"s_cbranch_scc1 {l1}")
        g("s_waitcnt vmcnt(0)")
        g.label(l1)
        g(f"s_waitcnt vmcnt({2*(R-1)})")
        for i in range(4):
            g(f"ds_read_b64_tr_b16 {v(B+2*i,2)}, v{vTr} offset:{r*2048+i*256}")
        l2 = g.newlab()
        if R == 4:
            g("s_waitcnt lgkmcnt(0)")
        g(f"s_cmp_le_u32 s{sRem}, {R}")
        g(f"s_cbranch_scc1 {l2}")
        issue(sMb if r + R >= 4 else sMa, (r + R) % 4)
        g.label(l2)
        if R < 4:
            g("s_waitcnt lgkmcnt(0)")
        for i in range(4):
            g(f"v_mfma_f32_4x4x4_16b_bf16 {v(D+4*i,4)}, {v(SHO,2)}, {v(B+2*i,2)}, 0 cbsz:4 abid:{r}")
        g.nop(1)
        g(f"s_set_gpr_idx_on s{sMa+r}, gpr_idx(SRC2,DST)")
        x = r & 1
        for i in range(4):
            rw = RW + 4 * i + (r & ~1)
            for wp in range(2):
                g(f"v_pk_fma_f32 {v(acc(0,i,2*wp),2)}, {v(D+4*i+2*wp,2)}, {v(rw,2)}, {v(acc(0,i,2*wp),2)} op_sel:[0,{x},0] op_sel_hi:[1,{x},1]")
        g("s_set_gpr_idx_off")
        g(f"s_mov_b32 s{sMa+r}, s{sMb+r}")
        g(f"s_sub_u32 s{sRem}, s{sRem}, 1")
        g(f"s_cmp_eq_u32 s{sRem}, 0")
        g(f"s_cbranch_scc{1 if r < 3 else 0} {'L_round_done' if r < 3 else 'L_group'}")
    g.label("L_round_done")
    g(f"s_add_u32 s{sRound}, s{sRound}, 1")
    g(f"s_cmp_lg_u32 s{sMore}, 0")
    g("s_cbranch_scc1 L_scan")
    g.stamp(4)
    g.cstamp(19)

    g.c("================ w_out fragments (published ~20 us ago; the flags are checked all the same) -> AGPRs")
    g(f"s_and_b32 s{sN}, s{sB}, 192")
    g(f"s_lshl_b32 s{sN}, s{sN}, 1")
    g(f"s_lshl4_add_u32 s{sN}, s{sWV}, s{sN}")
    g(f"s_lshl2_add_u32 s{sT}, s{sN}, {WS_FW}")
    g(f"v_and_b32 v16, 15, v{vLane}")
    g(f"v_lshl_add_u32 v16, v16, 2, s{sT}")
    g(f"s_lshl_b32 s{sT}, s{sN}, 10")
    g(f"s_add_u32 s{sT}, s{sT}, {WS_WF}")
    g(f"v_lshl_add_u32 v18, v{vLane}, 4, s{sT}")
    g(f"s_mov_b32 s{sC}, 0")
    g.label("L_pollw")
    g(f"buffer_load_dword v17, v16, {s(WS,4)}, 0 offen sc1")
    g("s_waitcnt vmcnt(0)")
    g(f"v_cmp_ne_u32 vcc, s{sTag}, v17")
    g("s_cbranch_vccz L_gotw")
    g("s_sleep 1")
    g(f"s_add_u32 s{sC}, s{sC}, 1")
    g(f"s_cmp_lt_u32 s{sC}, 0x400000")
    g("s_cbranch_scc1 L_pollw")
    g.label("L_gotw")
    for ks in range(16):
        g(f"buffer_load_dwordx4 {a_(aW+4*ks,4)}, v18, {s(WS,4)}, 0 offen offset:{(ks%4)*1024} sc1")
        if ks % 4 == 3:
            g(f"v_add_u32 v18, 4096, v18")
    g.c("================ agg image -> LDS")
    g(f"v_mul_u32_u24 v16, 320, v{vLane}")
    g(f"v_lshrrev_b32 v17, 2, v{vLane}")
    g(f"v_lshl_add_u32 v16, v17, 3, v16")
    for k in range(5):
        g(f"s_lshl_b32 s{sT}, s{sSlot+k}, 3")
        g(f"v_add_u32 v{17+k}, s{sT}, v16")
    t = 0
    for k in range(5):
        for i in range(4):
            p = 24 + 2 * t
            t += 1
            g(f"v_cvt_pk_bf16_f32 v{p}, v{acc(k,i,0)}, v{acc(k,i,1)}")
            g(f"v_cvt_pk_bf16_f32 v{p+1}, v{acc(k,i,2)}, v{acc(k,i,3)}")
    vG0, vG1, vO, vSw, vSr = 2, 3, 4, 5, 6
    g(f"v_lshrrev_b32 v70, 5, v{vLane}")
    g(f"v_mul_u32_u24 v71, 2576, v70")
    g(f"v_bfe_u32 v72, v{vLane}, 2, 2")
    g(f"v_mul_u32_u24 v74, 320, v72")
    g(f"v_bfe_u32 v73, v{vLane}, 4, 1")
    g(f"v_lshl_add_u32 v71, v73, 5, v71")
    g(f"v_and_b32 v73, 3, v{vLane}")
    g(f"v_lshl_add_u32 v71, v73, 3, v71")
    g(f"v_add_u32 v{vG0}, v71, v74")
    g(f"v_add_u32 v{vG1}, {8*5152}, v{vG0}")
    g(f"s_mul_i32 s{sT}, s{sWV}, 5120")
    g(f"s_add_u32 s{sT}, s{sT}, {STG}")
    g(f"v_and_b32 v74, 31, v{vLane}")
    g(f"v_mul_u32_u24 v74, 80, v74")
    g(f"v_lshl_add_u32 v74, v70, 3, v74")
    g(f"v_add_u32 v{vSw}, s{sT}, v74")
    g(f"v_lshrrev_b32 v74, 2, v{vLane}")
    g(f"v_mul_u32_u24 v74, 80, v74")
    g(f"v_lshl_add_u32 v74, v73, 4, v74")
    g(f"v_add_u32 v{vSr}, s{sT}, v74")
    g(f"v_lshrrev_b32 v74, 4, v{vLane}")
    g(f"v_lshlrev_b32 v74, 19, v74")
    g(f"v_lshl_add_u32 v74, v72, 9, v74")
    g(f"v_lshl_add_u32 v74, v73, 4, v74")
    g(f"s_lshl_b32 s{sT}, s{sB}, 11")
    g(f"s_lshl_b32 s{sN}, s{sWV}, 6")
    g(f"s_add_u32 s{sT}, s{sT}, s{sN}")
    g(f"v_add_u32 v{vO}, s{sT}, v74")
    g("s_barrier")
    g.stamp(5)
    t = 0
    for k in range(5):
        for i in range(4):
            p = 24 + 2 * t
            t += 1
            g(f"ds_write_b64 v{17+k}, {v(p,2)} offset:{i*20608}")
    g("s_waitcnt lgkmcnt(0)")
    g("s_barrier")
    g.stamp(6)
    g.cstamp(16)
    g.c("================ GEMM: out^T tile = W^T (A) x agg^T (B)")
    FB = [16, 32]
    DD = [48, 64]
    PK = [80, 88]
    OB = [96, 104]
    chunks = [(t, c) for t in range(5) for c in range(4)]

    def rd(n):
        t, c = chunks[n]
        for kk in range(4):
            ks = 4 * c + kk
            base = vG0 if ks < 8 else vG1
            for tt in range(2):
                g(f"ds_read_b64_tr_b16 {v(FB[n%2]+4*kk+2*tt,2)}, v{base} offset:{(ks%8)*5152 + tt*1288 + t*64}")

    def epi1(t):
        d, p, ob = DD[t % 2], PK[t % 2], OB[t % 2]
        for q in range(8):
            g(f"v_cvt_pk_bf16_f32 v{p+q}, v{d+2*q}, v{d+2*q+1}")
        for a in range(4):
            g(f"ds_write_b64 v{vSw}, {v(p+2*a,2)} offset:{2560*(t%2)+16*a}")
        for hf in range(2):
            g(f"ds_read_b128 {v(ob+4*hf,4)}, v{vSr} offset:{2560*(t%2)+1280*hf}")

    def epi2(t):
        ob = OB[t % 2]
        for hf in range(2):
            if not (o.nostore and t < 4):
                g(f"buffer_store_dwordx4 {v(ob+4*hf,4)}, v{vO}, {s(OUT,4)}, 0 offen{o.stflag}")
            g(f"v_add_u32 v{vO}, {4<<19}, v{vO}")
    PD = o.gdist
    NBUF = 8
    def rdj(j):
        t, ks = divmod(j, 16)
        base = vG0 if ks < 8 else vG1
        for tt in range(2):
            g(f"ds_read_b64_tr_b16 {v(16+4*(j%NBUF)+2*tt,2)}, v{base} offset:{(ks%8)*5152 + tt*1288 + t*64}")
    for j in range(PD):
        rdj(j)
    g("s_waitcnt vmcnt(0)")
    cv = []
    for j in range(80):
        t, ks = divmod(j, 16)
        g(f"s_waitcnt lgkmcnt({2*min(PD-1, 79-j)})")
        cin = "0" if ks == 0 else v(DD[t % 2], 16)
        g(f"v_mfma_f32_32x32x16_bf16 {v(DD[t%2],16)}, {a_(aW+4*ks,4)}, {v(16+4*(j%NBUF),4)}, {cin}")
        if j + PD < 80:
            rdj(j + PD)
        if t > 0:
            d, p, ob = DD[(t-1) % 2], PK[(t-1) % 2], OB[(t-1) % 2]
            so = 2560 * ((t-1) % 2)
            if 3 <= ks <= 6:
                a = ks - 3
                g(f"v_cvt_pk_bf16_f32 v{p+2*a}, v{d+4*a}, v{d+4*a+1}")
                g(f"v_cvt_pk_bf16_f32 v{p+2*a+1}, v{d+4*a+2}, v{d+4*a+3}")
                g(f"ds_write_b64 v{vSw}, {v(p+2*a,2)} offset:{so+16*a}")
            if ks in (7, 8):
                hf = ks - 7
                g(f"ds_read_b128 {v(ob+4*hf,4)}, v{vSr} offset:{so+1280*hf}")
            if ks == 15:
                assert PD <= 7
                epi2(t - 1)
    g.nop(12)
    epi1(4)
    g("s_waitcnt lgkmcnt(0)")
    epi2(4)
    if o.stamps:
        g.stamp(10)
        g.cstamp(17)
        g("s_waitcnt vmcnt(0)")
        g.stamp(7)
        g(f"s_lshl_b32 s{sT}, s{sB}, 3")
        g(f"s_add_u32 s{sT}, s{sT}, s{sWV}")
        g(f"s_lshl_b32 s{sT}, s{sT}, 8")
        g(f"s_add_u32 s{sT}, s{sT}, {WS_STAMP}")
        g(f"v_lshlrev_b32 v16, 2, v{vLane}")
        g(f"v_add_u32 v16, s{sT}, v16")
        g(f"buffer_store_dword v{vStamp}, v16, {s(WS,4)}, 0 offen")
    g.label("L_end")
    g("s_endpgm")
    return g.L


HEADER = open("/code/" + NAME + ".s.ref").read().split("; Override launch")[0]


def kd(name, vg, sg, acc):
    return f""".section .rodata,"a"
.p2align 6
.amdhsa_kernel {name}
  .amdhsa_next_free_vgpr {vg}
  .amdhsa_next_free_sgpr {sg}
  .amdhsa_accum_offset {acc}
  .amdhsa_group_segment_fixed_size 0
  .amdhsa_kernarg_size 88
  .amdhsa_user_sgpr_count 2
  .amdhsa_user_sgpr_kernarg_segment_ptr 1
  .amdhsa_system_sgpr_workgroup_id_x 1
  .amdhsa_float_denorm_mode_32 3
.end_amdhsa_kernel
"""


def emit(o):
    out = HEADER
    out += f"; @launch grid=(256,1,1) block=(512,1,1) lds={LDS_BYTES}\n"
    out += "; generated by dev/gen.py\n"
    out += '.amdgcn_target "amdgcn-amd-amdhsa--gfx950"\n.text\n'
    out += f".globl {NAME}_kernel\n.p2align 8\n.type {NAME}_kernel,@function\n{NAME}_kernel:\n"
    out += "\n".join(build(o)) + "\n"
    out += kd(NAME + "_kernel", 256, 102, 160)
    open(o.o, "w").write(out)


if __name__ == "__main__":
    ap = argparse.ArgumentParser()
    ap.add_argument("-o", default="/code/" + NAME + ".s")
    ap.add_argument("--stamps", action="store_true")
    ap.add_argument("--pf", default="0,0,0")
    ap.add_argument("--k1ld", default="")
    ap.add_argument("--eald", default="")
    ap.add_argument("--stflag", default=" sc1")
    ap.add_argument("--R", type=int, default=3)
    ap.add_argument("--nostore", action="store_true")
    ap.add_argument("--gdist", type=int, default=6)
    ap.add_argument("--pay", default="0,1,2,3")
    ap.add_argument("--prewait", type=int, default=1)
    ap.add_argument("--probe", type=int, default=0)
    ap.add_argument("--sleep", type=int, default=4)
    ap.add_argument("--tlb", type=int, default=0)
    emit(ap.parse_args())
```

```python
import sys, argparse

NAME = "standalone__tensor_product_equiv_mace__graph"
N, E = 10000, 160000

RING = 0
POOLCAP = 1024
PEA = 65536
PSH = PEA + POOLCAP * 32
META = PSH + POOLCAP * 8
HIST = META + (POOLCAP + 64) * 4
DEG = HIST + 60 * 64
POOL = HIST + 59 * 64
OFF = HIST + 4096
ZERO = OFF + 4096
FLAG = ZERO + 16
PIMG = 0
WRIMG = 32768
PCNT = FLAG + 16
CAND = PCNT + 256
STG = 82432
LDS_BYTES = 128000
assert CAND + 8192 <= LDS_BYTES and CAND % 16 == 0
assert FLAG + 16 <= LDS_BYTES and META % 16 == 0 and HIST % 16 == 0 and STG + 8 * 5120 <= LDS_BYTES
WS_EP = 0
WS_FW = 4096
WS_WF = 1 << 20
WS_STAMP = 4 << 20
WS_CELLS = 8 << 20
ROWB = 64 * 384 + 128
WS_EXT = 16 << 20
WS_BYTES = 20 << 20
assert WS_CELLS + 256 * ROWB <= WS_EXT

sB, sWV = 2, 3
X, SRC, DST, SH, EA, OUT, WS = 8, 12, 16, 20, 24, 28, 32
sM = [36, 38, 40, 42]
sPB, sQ, sDm, sNomatch = 44, 45, 46, 47
sTag, sCand, sPM, sWfl = 48, 49, 50, 83
WO, WR, CG = 88, 92, 96
sKskip, sT, sN, sC = 52, 53, 54, 55
sSlot = 56
sBase, sRem, sRing = 61, 62, 63
sMa, sMb = 64, 68
sOff, sRound, sMore, sCnt, sL, sMask = 76, 77, 78, 79, 80, 82
sKey = 84
sAddr, sLimit = 64, 65

vLane, vDma0, vDma1, vTr, vEa1, vEa2, vMul1, vMul2, vSh, vMulS, vOwner, vStamp, vMetaA = range(1, 14)
ACC = 80
def acc(k, i, w): return ACC + 16 * k + 4 * i + w
aWR, aW = 0, 32
vCG = 14


class Gen:
    def __init__(self, stamps=False):
        self.L = []
        self.stamps = stamps
        self.nlab = 0

    def __call__(self, s):
        self.L.append("    " + s)

    def label(self, s):
        self.L.append(s + ":")

    def c(self, s):
        self.L.append("    ; " + s)

    def newlab(self, p="L"):
        self.nlab += 1
        return f"{p}_{self.nlab}"

    def nop(self, n):
        while n > 0:
            k = min(n, 16)
            self(f"s_nop {k-1}")
            n -= k

    def cstamp(self, i):
        if not self.stamps:
            return
        self(f"s_memtime s[4:5]")
        self("s_waitcnt lgkmcnt(0)")
        self(f"v_writelane_b32 v{vStamp}, s4, {i}")

    def stamp(self, i):
        if not self.stamps:
            return
        self(f"s_memrealtime s[4:5]")
        self("s_waitcnt lgkmcnt(0)")
        self(f"v_writelane_b32 v{vStamp}, s4, {i}")


def srd(g, d, ptr, nbytes):
    g(f"s_mov_b32 s{d}, s{ptr}")
    g(f"s_mov_b32 s{d+1}, s{ptr+1}")
    g(f"s_mov_b32 s{d+2}, {nbytes}")
    g(f"s_mov_b32 s{d+3}, 0x00020000")


def v(a, n=1):
    return f"v{a}" if n == 1 else f"v[{a}:{a+n-1}]"


def a_(a, n=1):
    return f"a{a}" if n == 1 else f"a[{a}:{a+n-1}]"


def s(a, n=1):
    return f"s{a}" if n == 1 else f"s[{a}:{a+n-1}]"


def build(o):
    g = Gen(o.stamps)
    R = o.R
    cM, cE, cX, cK, cR = 16, 20, 24, 28, 32
    vL2, vP16, vP4, vCand = 36, 37, 38, 39
    pfs = [int(x) for x in o.pf.split(",")]
    vPf = 79

    def pf(n):
        for _ in range(n):
            g(f"buffer_load_dwordx4 {v(ACC+76,4)}, v{vPf}, {s(X,4)}, 0 offen")
            g(f"v_add_u32 v{vPf}, {256*1024}, v{vPf}")
    g(f"s_cmp_ge_u32 s{sB}, 256")
    g("s_cbranch_scc1 L_end")
    g("s_load_dwordx2 s[84:85], s[0:1], 80")
    g("s_load_dwordx16 s[64:79], s[0:1], 0")
    g("s_load_dwordx2 s[80:81], s[0:1], 64")
    g(f"v_and_b32 v{vLane}, 63, v0")
    g(f"v_lshrrev_b32 v60, 6, v0")
    g(f"v_mov_b32 v{vStamp}, 0")
    g(f"v_readfirstlane_b32 s{sWV}, v60")
    g(f"s_and_b32 s{sC}, s{sB}, 63")
    g(f"s_and_b32 s{sN}, s{sB}, 192")
    g(f"s_mul_i32 s{sT}, s{sC}, 10000")
    g(f"v_lshlrev_b32 v63, 4, v0")
    g(f"v_add_u32 v60, s{sT}, v63")
    g(f"s_add_u32 s{sT}, s{sT}, 8192")
    g(f"v_lshl_add_u32 v61, v0, 2, s{sT}")
    g(f"v_lshlrev_b32 v64, 1, v60")
    g(f"v_lshlrev_b32 v65, 1, v61")
    g(f"s_lshl_b32 s{sT}, s{sN}, 1")
    g(f"v_mov_b32 v62, s{sT}")
    g("s_waitcnt lgkmcnt(0)")
    pD, pS, pH = 16, 24, 32
    srd(g, DST, 68, E * 4)
    g(f"buffer_load_dwordx4 {v(pD,4)}, v60, {s(DST,4)}, 0 offen{o.k1ld}")
    g(f"buffer_load_dword v{pD+4}, v61, {s(DST,4)}, 0 offen{o.k1ld}")
    srd(g, SRC, 66, E * 4)
    g(f"buffer_load_dwordx4 {v(pS,4)}, v60, {s(SRC,4)}, 0 offen{o.k1ld}")
    g(f"buffer_load_dword v{pS+4}, v61, {s(SRC,4)}, 0 offen{o.k1ld}")
    srd(g, WS, 84, WS_BYTES)
    g(f"buffer_load_dword v42, v62, {s(WS,4)}, 0 offen sc1")
    srd(g, SH, 70, E * 8)
    g(f"buffer_load_dwordx4 {v(pH,4)}, v64, {s(SH,4)}, 0 offen")
    g(f"buffer_load_dwordx4 {v(pH+4,4)}, v64, {s(SH,4)}, 0 offen offset:16")
    g(f"buffer_load_dwordx2 {v(pH+8,2)}, v65, {s(SH,4)}, 0 offen")
    g.stamp(0)
    g.c("---- LDS init: entry image = empty, counters, HIST, ZERO block, FLAG")
    for k in range(4):
        g(f"v_mov_b32 v{72+k}, -1")
    for i in range(4):
        g(f"ds_write_b128 v63, v[72:75] offset:{PIMG+8192*i}")
    g("v_mov_b32 v68, 0")
    g("v_mov_b32 v69, 0")
    g(f"v_lshlrev_b32 v60, 3, v0")
    g(f"v_add_u32 v60, {HIST}, v60")
    g("ds_write_b64 v60, v[68:69]")
    g(f"v_min_u32 v60, 35, v{vLane}")
    g(f"v_lshlrev_b32 v60, 3, v60")
    g(f"v_add_u32 v60, {ZERO}, v60")
    g("ds_write_b64 v60, v[68:69]")
    srd(g, X, 64, N * 2048)
    srd(g, EA, 72, E * 32)
    srd(g, OUT, 80, N * 2048)
    srd(g, CG, 74, 128)
    srd(g, WR, 76, 8192)
    srd(g, WO, 78, 131072)
    g(f"s_lshl_b32 s{sRing}, s{sWV}, 13")
    g(f"s_mov_b32 s{sKskip}, 0")
    g(f"s_mov_b32 s{sRound}, 0")
    g(f"s_mov_b32 s{sMask}, 0x3fff00")
    g(f"s_mov_b32 s{sWfl}, {WS_BYTES}")
    g(f"s_lshl_b32 s{sCand}, s{sWV}, 10")
    g(f"s_add_u32 s{sCand}, s{sCand}, {CAND}")
    g(f"s_movk_i32 s{sT}, 452")
    g(f"v_cmp_gt_u32 {s(sPM,2)}, s{sT}, v0")
    g(f"v_lshlrev_b32 v43, 22, v0")
    g(f"v_lshlrev_b32 v59, 20, v0")
    g("v_mov_b32 v58, 1")
    g("s_waitcnt lgkmcnt(0)")
    g("s_barrier")
    g.c("---- weights: cg operand, w_r image, this wave's share of the w_out transposition")
    g(f"v_and_b32 v60, 3, v{vLane}")
    g(f"v_lshlrev_b32 v61, 5, v60")
    g(f"v_lshrrev_b32 v66, 4, v{vLane}")
    g(f"v_lshl_add_u32 v61, v66, 1, v61")
    for q in range(4):
        g(f"buffer_load_ushort v{44+q}, v61, {s(CG,4)}, 0 offen offset:{q*8}")
    g(f"s_lshl_b32 s{sT}, s{sWV}, 10")
    g(f"s_add_u32 m0, s{sT}, {WRIMG}")
    g(f"v_lshlrev_b32 v64, 4, v{vLane}")
    g(f"buffer_load_dwordx4 v64, {s(WR,4)}, s{sT} offen lds")
    nlate = 5
    g(f"s_lshr_b32 s{sT}, s{sB}, 3")
    g(f"s_lshl3_add_u32 s{sT}, s{sT}, s{sWV}")
    g(f"s_lshl_b32 s{sT}, s{sT}, 10")
    g(f"v_add_u32 v{vPf}, s{sT}, v64")
    pf(pfs[0])
    nlate += pfs[0]
    if o.tlb:
        g.c("address-translation warm-up: one line per stride of x, out, edge_attr")
        g(f"v_lshlrev_b32 v64, {o.tlb}, v0")
        g(f"buffer_load_dword v{ACC+76}, v64, {s(X,4)}, 0 offen")
        g(f"buffer_load_dword v{ACC+77}, v64, {s(OUT,4)}, 0 offen")
        g(f"buffer_load_dword v{ACC+78}, v64, {s(EA,4)}, 0 offen")
        nlate += 3
    g.c("---- persistent per-lane constants")
    g(f"v_and_b32 v61, 7, v{vLane}")
    g(f"v_bfe_u32 v65, v{vLane}, 3, 1")
    g(f"v_lshlrev_b32 v65, 9, v65")
    g(f"v_lshl_add_u32 v65, v66, 7, v65")
    g(f"v_lshl_add_u32 v{vDma0}, v61, 4, v65")
    g(f"v_xor_b32 v61, 4, v61")
    g(f"v_lshl_add_u32 v{vDma1}, v61, 4, v65")
    g(f"v_bfe_u32 v60, v{vLane}, 2, 2")
    g(f"v_bfe_u32 v62, v{vLane}, 1, 1")
    g(f"v_lshl_add_u32 v62, v66, 1, v62")
    g(f"v_lshrrev_b32 v63, 1, v60")
    g(f"v_lshlrev_b32 v64, 2, v63")
    g(f"v_xor_b32 v62, v62, v64")
    g(f"v_and_b32 v64, 1, v60")
    g(f"v_lshl_add_u32 v62, v64, 3, v62")
    g(f"v_lshlrev_b32 v62, 4, v62")
    g(f"v_lshl_add_u32 v62, v63, 10, v62")
    g(f"v_and_b32 v64, 1, v{vLane}")
    g(f"v_lshl_add_u32 v62, v64, 3, v62")
    g(f"v_add_u32 v{vTr}, s{sRing}, v62")
    g(f"v_lshrrev_b32 v61, 5, v{vLane}")
    g(f"v_mov_b32 v63, 32")
    g(f"v_cmp_eq_u32 vcc, v60, v61")
    g(f"v_add_u32 v61, 2, v61")
    g(f"v_and_b32 v64, 3, v{vLane}")
    g(f"v_cndmask_b32 v{vMul1}, 0, v63, vcc")
    g(f"v_cmp_eq_u32 vcc, v60, v61")
    g(f"v_cmp_eq_u32 s[4:5], v64, v66")
    g(f"v_mov_b32 v65, 8")
    g(f"v_cndmask_b32 v{vMul2}, 0, v63, vcc")
    g(f"v_cndmask_b32 v{vMulS}, 0, v65, s[4:5]")
    CE = 70
    for k in range(3):
        g(f"v_add_u32 v61, {64*k}, v{vLane}")
        g(f"v_mul_u32_u24 v{73+k}, 2731, v61")
        g(f"v_lshrrev_b32 v{73+k}, 16, v{73+k}")
        g(f"v_lshlrev_b32 v61, 4, v61")
        g(f"v_lshl_add_u32 v{CE+k}, v{73+k}, 7, v61")
    g(f"s_lshl_b32 s{sPB}, s{sWV}, 12")
    g(f"s_lshl3_add_u32 s{sT}, s{sWV}, s{sN}")
    g(f"s_mul_i32 s{sQ}, s{sT}, {ROWB}")
    g(f"s_mul_i32 s{sDm}, s{sC}, 384")
    g(f"s_add_u32 s{sQ}, s{sQ}, s{sDm}")
    g(f"s_add_u32 s{sQ}, s{sQ}, {WS_CELLS}")
    g(f"s_movk_i32 s{sDm}, {ROWB-512}")
    for k in range(3):
        g(f"v_add_u32 v{61+k}, s{sPB}, v{CE+k}")
        g(f"v_mad_u32_u24 v{64+k}, v{73+k}, s{sDm}, v{CE+k}")
        g(f"v_add_u32 v{64+k}, s{sQ}, v{64+k}")
    g(f"s_lshl_b32 s{sQ}, s{sT}, 6")
    g(f"s_add_u32 s{sQ}, s{sQ}, s{sC}")
    g(f"s_lshl_b32 s{sQ}, s{sQ}, 7")
    g(f"s_add_u32 s{sQ}, s{sQ}, {WS_EXT}")
    g(f"v_lshrrev_b32 v68, 3, v{vLane}")
    g(f"s_lshl_b32 s{sOff}, s{sWV}, 5")
    g(f"s_add_u32 s{sOff}, s{sOff}, {PCNT}")
    g(f"v_lshl_add_u32 v67, v68, 2, s{sOff}")
    g.c("================ producer: bin this chunk's edges of the group's buckets")
    PB, PR = 48, 53
    PMK = [64, 66, 68, 70, 72]
    g(f"s_mov_b32 s{sT}, {PCNT}")
    g(f"s_waitcnt vmcnt({nlate+6})")
    g.stamp(11)
    for k in range(5):
        g(f"v_and_b32 v{PB+k}, 255, v{pD+k}")
        g(f"v_subrev_u32 v{PB+k}, s{sN}, v{PB+k}")
        g(f"v_cmp_gt_u32 {s(PMK[k],2)}, 64, v{PB+k}")
        g(f"v_lshl_add_u32 v60, v{PB+k}, 2, s{sT}")
        if k == 4:
            g(f"s_and_b64 {s(PMK[k],2)}, {s(PMK[k],2)}, {s(sPM,2)}")
        g(f"s_mov_b64 exec, {s(PMK[k],2)}")
        g(f"ds_add_rtn_u32 v{PR+k}, v60, v58")
        g("s_mov_b64 exec, -1")
    g(f"s_waitcnt vmcnt({nlate+4})")
    for k in range(5):
        g(f"v_bfe_u32 v{pD+k}, v{pD+k}, 8, 6")
        g(f"v_min_u32 v{pD+k}, 47, v{pD+k}")
        g(f"v_and_b32 v{pS+k}, 0x3fff, v{pS+k}")
        g(f"v_lshl_or_b32 v{pD+k}, v{pS+k}, 6, v{pD+k}")
        if k < 4:
            g(f"v_add_u32 v{pS+k}, {k<<20}, v43")
        else:
            g(f"v_add_u32 v{pS+k}, {2048<<20}, v59")
        g(f"v_or_b32 v{pD+k}, v{pD+k}, v{pS+k}")
        g(f"v_lshlrev_b32 v{PB+k}, 9, v{PB+k}")
    g("v_mov_b32 v59, -2")
    g(f"s_waitcnt vmcnt({nlate}) lgkmcnt(0)")
    g(f"v_readfirstlane_b32 s{sTag}, v42")
    for k in range(5):
        g(f"v_cmp_gt_u32 vcc, 31, v{PR+k}")
        g(f"v_min_u32 v{PR+k}, 31, v{PR+k}")
        g(f"v_lshl_add_u32 v{PB+k}, v{PR+k}, 4, v{PB+k}")
        g(f"v_cndmask_b32 v{pD+k}, v59, v{pD+k}, vcc")
        g(f"s_mov_b64 exec, {s(PMK[k],2)}")
        g(f"ds_write_b32 v{PB+k}, v{pD+k} offset:{PIMG}")
        g(f"ds_write_b64 v{PB+k}, {v(pH+2*k,2)} offset:{PIMG+8}")
        g("s_mov_b64 exec, -1")
    g(f"s_add_u32 s{sTag}, s{sTag}, 1")
    g("s_waitcnt lgkmcnt(0)")
    g("s_barrier")
    for k in range(3):
        g(f"ds_read_b128 {v(16+4*k,4)}, v{61+k} offset:{PIMG}")
    g("ds_read_b32 v67, v67")
    for k in range(3):
        g(f"s_waitcnt lgkmcnt({3-k})")
        g(f"v_mov_b32 v{17+4*k}, s{sTag}")
        g(f"buffer_store_dwordx4 {v(16+4*k,4)}, v{64+k}, {s(WS,4)}, 0 offen sc1")
    g("s_waitcnt lgkmcnt(0)")
    g("v_cmp_lt_u32 vcc, 23, v67")
    g("s_cbranch_vccz L_noup")
    g.c("cells with 24 or more entries also publish entries 24..31")
    g(f"v_and_b32 v60, 7, v{vLane}")
    g(f"v_lshlrev_b32 v60, 4, v60")
    g(f"v_lshl_add_u32 v69, v68, 9, v60")
    g(f"v_add_u32 v69, s{sPB}, v69")
    g(f"ds_read_b128 v[28:31], v69 offset:{PIMG+384}")
    g(f"v_lshl_add_u32 v69, v68, 13, v60")
    g(f"v_add_u32 v69, s{sQ}, v69")
    g("s_waitcnt lgkmcnt(0)")
    g(f"v_mov_b32 v29, s{sTag}")
    g("s_mov_b64 exec, vcc")
    g(f"buffer_store_dwordx4 v[28:31], v69, {s(WS,4)}, 0 offen sc1")
    g("s_mov_b64 exec, -1")
    g.label("L_noup")
    g.stamp(12)
    pf(pfs[1])
    g.c("---- waves 0,1: fragment gw = 2*chunk+wave of w_out (N-tile gw>>4, k-step gw&15), loads")
    g(f"s_cmp_ge_u32 s{sWV}, 2")
    g("s_cbranch_scc1 L_nowf")
    g(f"s_lshl1_add_u32 s{sPB}, s{sC}, s{sWV}")
    g(f"s_and_b32 s{sT}, s{sPB}, 15")
    g(f"s_lshl_b32 s{sT}, s{sT}, 13")
    g(f"s_lshr_b32 s{sOff}, s{sPB}, 4")
    g(f"s_lshl_b32 s{sOff}, s{sOff}, 6")
    g(f"s_add_u32 s{sT}, s{sT}, s{sOff}")
    g(f"v_lshrrev_b32 v60, 5, v{vLane}")
    g(f"v_lshlrev_b32 v60, 12, v60")
    g(f"v_and_b32 v61, 31, v{vLane}")
    g(f"v_lshl_add_u32 v60, v61, 1, v60")
    g(f"v_add_u32 v60, s{sT}, v60")
    for q in range(8):
        g(f"buffer_load_ushort v{32+q}, v60, {s(WO,4)}, 0 offen offset:{q*512}")
    g.label("L_nowf")
    vWb = 77
    g(f"v_lshrrev_b32 v60, 5, v{vLane}")
    g(f"v_bfe_u32 v61, v{vLane}, 2, 2")
    g(f"v_bfe_u32 v62, v{vLane}, 4, 1")
    g(f"v_and_b32 v63, 3, v{vLane}")
    g(f"v_lshlrev_b32 v{vWb}, 12, v62")
    g(f"v_lshl_add_u32 v{vWb}, v61, 9, v{vWb}")
    g(f"v_lshl_add_u32 v{vWb}, v60, 5, v{vWb}")
    g(f"v_lshl_add_u32 v{vWb}, v63, 3, v{vWb}")
    g(f"s_mul_i32 s{sT}, s{sB}, {ROWB}")
    g(f"s_mul_i32 s{sQ}, s{sWV}, 3072")
    g(f"s_add_u32 s{sT}, s{sT}, s{sQ}")
    g(f"s_add_u32 s{sT}, s{sT}, {WS_CELLS}")
    g(f"v_lshl_add_u32 v{CE}, v{vLane}, 4, s{sT}")
    g(f"s_lshl3_add_u32 s{sQ}, s{sB}, s{sWV}")
    g(f"s_lshl_b32 s{sQ}, s{sQ}, 10")
    g(f"s_add_u32 s{sQ}, s{sQ}, {WS_EXT}")
    g(f"s_mul_i32 s{sC}, s{sWV}, 20000")
    g(f"s_movk_i32 s{sDm}, 2500")
    for k in range(3):
        g(f"v_mul_u32_u24 v{73+k}, s{sDm}, v{73+k}")
        g(f"v_add_u32 v{73+k}, s{sC}, v{73+k}")
    for r in range(ACC, ACC + 76, 2):
        g(f"v_mov_b64 {v(r,2)}, 0")
    g.c("================ consumer: fetch this wave's entries until every tag matches")
    EN = [48, 52, 56, 40]
    g.stamp(13)
    for k in range(3):
        g(f"s_mov_b64 {s(sM[k],2)}, -1")
    g(f"s_mov_b32 s{sC}, 0")
    if o.prewait:
        g("s_waitcnt vmcnt(0)")
    g.stamp(14)
    g.label("L_poll")
    for k in range(3):
        lab = g.newlab()
        g(f"s_mov_b64 exec, {s(sM[k],2)}")
        g(f"s_cbranch_execz {lab}")
        g(f"buffer_load_dwordx4 {v(EN[k],4)}, v{CE}, {s(WS,4)}, 0 offen offset:{1024*k} sc1")
        g.label(lab)
    g("s_mov_b64 exec, -1")
    g("s_waitcnt vmcnt(0)")
    for k in range(3):
        g(f"v_cmp_ne_u32 {s(sM[k],2)}, s{sTag}, v{EN[k]+1}")
    g(f"s_or_b64 s[4:5], {s(sM[0],2)}, {s(sM[1],2)}")
    g(f"s_or_b64 s[4:5], s[4:5], {s(sM[2],2)}")
    g("s_cbranch_scc0 L_got")
    g(f"s_sleep {o.sleep}")
    g(f"s_add_u32 s{sC}, s{sC}, 1")
    g(f"s_cmp_lt_u32 s{sC}, 0x400000")
    g("s_cbranch_scc1 L_poll")
    g.label("L_got")
    g.stamp(1)
    g(f"v_lshl_or_b32 v{vCG}, v45, 16, v44")
    g(f"v_lshl_or_b32 v{vCG+1}, v47, 16, v46")
    lab = g.newlab()
    g(f"s_cmp_ge_u32 s{sWV}, 2")
    g(f"s_cbranch_scc1 {lab}")
    for q in range(4):
        g(f"v_lshl_or_b32 v{44+q}, v{33+2*q}, 16, v{32+2*q}")
    g(f"s_lshl_b32 s{sT}, s{sN}, 1")
    g(f"s_add_u32 s{sT}, s{sT}, s{sPB}")
    g(f"s_lshl2_add_u32 s{sWfl}, s{sT}, {WS_FW}")
    g(f"s_lshl_b32 s{sT}, s{sT}, 10")
    g(f"s_add_u32 s{sT}, s{sT}, {WS_WF}")
    g(f"v_lshl_add_u32 v60, v{vLane}, 4, s{sT}")
    g(f"buffer_store_dwordx4 v[44:47], v60, {s(WS,4)}, 0 offen sc1")
    g.label(lab)
    g(f"v_mov_b64 {v(ACC+76,2)}, 0")
    g(f"v_mov_b64 {v(ACC+78,2)}, 0")
    for k in range(3):
        g(f"v_cmp_gt_u32 {s(sM[k],2)}, -2, v{EN[k]}")
    g(f"v_mov_b32 v{EN[3]}, -1")
    g(f"s_mov_b64 {s(sM[3],2)}, 0")
    last = [(24*i+23) for i in range(8)]
    g("s_mov_b64 s[6:7], 0")
    for i, p in enumerate(last):
        g(f"s_bitcmp1_b64 {s(sM[p//64],2)}, {p%64}")
        g(f"s_cselect_b32 s{sT}, {0xff << (8*(i%4))}, 0")
        g(f"s_or_b32 s{6+i//4}, s{6+i//4}, s{sT}")
    g("s_cmp_eq_u64 s[6:7], 0")
    g("s_cbranch_scc1 L_noext")
    g.c("rare: entries 24..31 of the full cells")
    g(f"v_lshl_add_u32 v61, v{vLane}, 4, s{sQ}")
    g(f"v_mov_b32 v{EN[3]+1}, s{sTag}")
    g.label("L_poll2")
    g("s_mov_b64 exec, s[6:7]")
    g(f"buffer_load_dwordx4 {v(EN[3],4)}, v61, {s(WS,4)}, 0 offen sc1")
    g("s_mov_b64 exec, -1")
    g("s_waitcnt vmcnt(0)")
    g(f"v_cmp_ne_u32 vcc, s{sTag}, v{EN[3]+1}")
    g("s_cbranch_vccz L_got2")
    g("s_sleep 1")
    g(f"s_add_u32 s{sC}, s{sC}, 1")
    g(f"s_cmp_lt_u32 s{sC}, 0x400000")
    g("s_cbranch_scc1 L_poll2")
    g.label("L_got2")
    g(f"v_cmp_gt_u32 {s(sM[3],2)}, -2, v{EN[3]}")
    g.label("L_noext")
    g(f"v_lshrrev_b32 v60, 3, v{vLane}")
    g(f"v_mul_u32_u24 v72, s{sDm}, v60")
    g(f"s_mul_i32 s{sC}, s{sWV}, 20000")
    g(f"v_add_u32 v72, s{sC}, v72")
    EB = [73, 74, 75, 72]
    g(f"v_cmp_eq_u32 vcc, -2, v{EN[3]}")
    NK = [64, 65, 66, 67]
    for k in range(4):
        g(f"s_bcnt1_i32_b64 s{NK[k]}, {s(sM[k],2)}")
    g(f"s_add_u32 s65, s65, s64")
    g(f"s_add_u32 s66, s66, s65")
    g(f"s_add_u32 s{sCnt}, s67, s66")
    g(f"v_mov_b32 v61, s{sCnt}")
    g(f"v_mov_b32 v60, {POOL}")
    g("s_mov_b64 exec, 1")
    g("ds_add_rtn_u32 v61, v60, v61")
    g("s_mov_b64 exec, -1")
    PO = 62
    for k in range(4):
        g(f"v_mbcnt_lo_u32_b32 v{PO+k}, s{sM[k]}, 0")
        g(f"v_mbcnt_hi_u32_b32 v{PO+k}, s{sM[k]+1}, v{PO+k}")
        if k:
            g(f"v_add_u32 v{PO+k}, s{NK[k-1]}, v{PO+k}")
        g(f"v_lshrrev_b32 v{cE+k}, 20, v{EN[k]}")
        g(f"v_add_u32 v{cE+k}, v{cE+k}, v{EB[k]}")
        g(f"v_lshl_add_u32 v66, v{PO+k}, 2, s{sCand}")
        g(f"s_mov_b64 exec, {s(sM[k],2)}")
        g(f"ds_write_b32 v66, v{cE+k}")
        g("s_mov_b64 exec, -1")
        g(f"v_lshlrev_b32 v{cX+k}, 2, v{EN[k]}")
        g(f"v_and_b32 v{cX+k}, s{sMask}, v{cX+k}")
        g(f"v_and_b32 v{cM+k}, 63, v{EN[k]}")
    g(f"s_mov_b32 s{sL}, 79")
    g("s_waitcnt lgkmcnt(0)")
    g(f"v_readfirstlane_b32 s{sPB}, v61")
    g("s_cbranch_vccnz L_defer")
    g(f"s_add_u32 s{sT}, s{sPB}, s{sCnt}")
    g(f"s_cmp_gt_u32 s{sT}, {POOLCAP}")
    g("s_cbranch_scc1 L_defer")
    g(f"s_mov_b32 s{sT}, {PSH}")
    for k in range(4):
        g(f"v_add_u32 v{PO+k}, s{sPB}, v{PO+k}")
        g(f"v_lshl_or_b32 v{cX+k}, v{PO+k}, 22, v{cX+k}")
        g(f"v_lshl_add_u32 v{PO+k}, v{PO+k}, 3, s{sT}")
        g(f"s_mov_b64 exec, {s(sM[k],2)}")
        g(f"ds_write_b64 v{PO+k}, {v(EN[k]+2,2)}")
        g("s_mov_b64 exec, -1")
    g("s_branch L_have")
    g.label("L_defer")
    g.c("this wave's cells overflowed (or the pool is full): rescan its edge range in later rounds")
    g(f"s_mov_b32 s{sL}, 0")
    g(f"s_mov_b32 s{sCnt}, 0")
    g(f"s_mov_b32 s{sPB}, 0")
    for k in range(4):
        g(f"s_mov_b64 {s(sM[k],2)}, 0")
    g("v_mov_b32 v58, 1")
    g(f"v_mov_b32 v59, {FLAG}")
    g("ds_write_b32 v59, v58")
    g("s_branch L_have")

    g.label("L_scan")
    g.c("================ fallback scan of this wave's 20000 dst entries (rare path)")
    g("s_barrier")
    BUF = 60
    g(f"s_mov_b32 s{sAddr}, s{sRing}")
    g(f"s_add_u32 s{sLimit}, s{sRing}, {128*8}")
    g(f"s_xor_b32 s{sNomatch}, s{sB}, 1")
    g.label("L_sloop")
    g(f"s_cmp_ge_u32 s{sL}, 79")
    g("s_cbranch_scc1 L_scan_done")
    g(f"s_mul_i32 s{sT}, s{sWV}, 20000")
    g(f"s_lshl_b32 s{sN}, s{sL}, 8")
    g(f"s_add_u32 s{sC}, s{sT}, s{sN}")
    g(f"v_lshlrev_b32 v56, 2, v{vLane}")
    g(f"v_add_u32 v56, s{sC}, v56")
    g(f"v_lshlrev_b32 v57, 2, v56")
    g(f"buffer_load_dwordx4 {v(BUF,4)}, v57, {s(DST,4)}, 0 offen")
    g("s_waitcnt vmcnt(0)")
    g(f"s_cmp_lg_u32 s{sL}, 78")
    g("s_cbranch_scc1 L_snotlast")
    g(f"s_mov_b32 exec_lo, 0xffffff00")
    for k in range(4):
        g(f"v_mov_b32 v{BUF+k}, s{sNomatch}")
    g("s_mov_b64 exec, -1")
    g.label("L_snotlast")
    for k in range(4):
        lab = g.newlab()
        g(f"s_cmp_gt_u32 s{sKskip}, {k}")
        g(f"s_cbranch_scc1 {lab}")
        g(f"v_cmp_eq_u32_sdwa vcc, v{BUF+k}, s{sB} src0_sel:BYTE_0 src1_sel:DWORD")
        g(f"s_cbranch_vccz {lab}")
        g(f"s_bcnt1_i32_b64 s{sT}, vcc")
        g(f"s_lshl3_add_u32 s{sN}, s{sT}, s{sAddr}")
        g(f"s_mov_b32 s{sKskip}, {k}")
        g(f"s_cmp_gt_u32 s{sN}, s{sLimit}")
        g(f"s_cbranch_scc1 L_ovf")
        g(f"v_mbcnt_lo_u32_b32 v58, vcc_lo, 0")
        g(f"v_mbcnt_hi_u32_b32 v58, vcc_hi, v58")
        g(f"v_lshl_add_u32 v58, v58, 3, s{sAddr}")
        g(f"v_add_u32 v59, {k}, v56")
        g("s_mov_b64 exec, vcc")
        g(f"ds_write2_b32 v58, v{BUF+k}, v59 offset0:0 offset1:1")
        g("s_mov_b64 exec, -1")
        g(f"s_mov_b32 s{sAddr}, s{sN}")
        g.label(lab)
    g(f"s_mov_b32 s{sKskip}, 0")
    g(f"s_add_u32 s{sL}, s{sL}, 1")
    g("s_branch L_sloop")
    g.label("L_ovf")
    g("v_mov_b32 v58, 1")
    g(f"v_mov_b32 v59, {FLAG}")
    g("ds_write_b32 v59, v58")
    g.label("L_scan_done")
    g(f"s_sub_u32 s{sCnt}, s{sAddr}, s{sRing}")
    g(f"s_lshr_b32 s{sCnt}, s{sCnt}, 3")
    g(f"s_lshl_b32 s{sPB}, s{sWV}, 7")
    g(f"v_lshlrev_b32 v58, 3, v{vLane}")
    g(f"v_add_u32 v58, s{sRing}, v58")
    g("s_waitcnt lgkmcnt(0)")
    for k in range(2):
        g(f"ds_read_b32 v{cM+k}, v58 offset:{512*k}")
        g(f"ds_read_b32 v{cE+k}, v58 offset:{512*k+4}")
        g(f"s_sub_u32 s{sT}, s{sCnt}, {64*k}")
        g(f"v_cmp_gt_i32 {s(sM[k],2)}, s{sT}, v{vLane}")
    for k in range(2, 4):
        g(f"s_mov_b64 {s(sM[k],2)}, 0")
        g(f"v_mov_b32 v{cM+k}, 0")
        g(f"v_mov_b32 v{cX+k}, 0")
    g(f"v_lshl_add_u32 v58, v{vLane}, 2, s{sCand}")
    g(f"v_add_u32 v59, s{sPB}, v{vLane}")
    g(f"v_lshlrev_b32 v59, 22, v59")
    g("s_waitcnt lgkmcnt(0)")
    for k in range(2):
        g(f"v_lshlrev_b32 v{cK+k}, 2, v{cE+k}")
        g(f"buffer_load_dword v{cX+k}, v{cK+k}, {s(SRC,4)}, 0 offen")
        g(f"v_bfe_u32 v{cM+k}, v{cM+k}, 8, 6")
        g(f"v_min_u32 v{cM+k}, 47, v{cM+k}")
        g(f"ds_write_b32 v58, v{cE+k} offset:{256*k}")
    g("s_waitcnt vmcnt(0)")
    for k in range(2):
        g(f"v_and_b32 v{cX+k}, 0x3fff, v{cX+k}")
        g(f"v_lshl_or_b32 v{cX+k}, v{cX+k}, 8, v59")
        g(f"v_add_u32 v59, {64<<22}, v59")
    g.label("L_have")
    g.c("================ histogram over (slot, src bin); payload DMA set-up")
    g("v_mov_b32 v58, 1")
    g(f"s_mov_b32 s{sT}, {HIST}")
    g(f"s_mov_b32 s{sN}, {DEG}")
    for k in range(4):
        g(f"v_bfe_u32 v{cK+k}, v{cX+k}, 8, 14")
        g(f"v_mul_u32_u24 v{cK+k}, 6711, v{cK+k}")
        g(f"v_lshrrev_b32 v{cK+k}, 22, v{cK+k}")
        g(f"v_min_u32 v{cK+k}, 15, v{cK+k}")
        g(f"v_lshl_add_u32 v{cK+k}, v{cK+k}, 2, s{sT}")
        g(f"v_lshl_add_u32 v{cK+k}, v{cM+k}, 6, v{cK+k}")
        g(f"v_lshl_add_u32 v{cM+k}, v{cM+k}, 2, s{sN}")
        g(f"s_mov_b64 exec, {s(sM[k],2)}")
        g(f"ds_add_rtn_u32 v{cR+k}, v{cK+k}, v58")
        g(f"ds_add_u32 v{cM+k}, v58")
        g("s_mov_b64 exec, -1")
    g(f"v_lshrrev_b32 v{vL2}, 1, v{vLane}")
    g(f"v_lshl_add_u32 v{vCand}, v{vL2}, 2, s{sCand}")
    EI = 40
    for q in range(4):
        g(f"ds_read_b32 v{EI+q}, v{vCand} offset:{128*q}")
    g(f"v_and_b32 v{vP4}, 1, v{vLane}")
    g(f"v_lshlrev_b32 v{vP16}, 4, v{vP4}")
    g(f"v_lshlrev_b32 v{vP4}, 2, v{vP4}")
    g(f"s_mov_b32 s{sDm}, s{sCnt}")
    g(f"s_mov_b32 s{sQ}, s{sPB}")
    g(f"v_lshl_add_u32 v56, v{vLane}, 2, s{sN}")
    g(f"v_mov_b32 v57, {FLAG}")
    g("s_waitcnt lgkmcnt(0)")

    def pay(q):
        lab = g.newlab()
        g(f"s_cmp_le_i32 s{sDm}, 0")
        g(f"s_cbranch_scc1 {lab}")
        g(f"v_lshl_add_u32 v44, v{EI+q}, 5, v{vP16}")
        g(f"v_lshl_add_u32 v45, v{EI+q}, 3, v{vP4}")
        g(f"v_cmp_gt_i32 vcc, s{sDm}, v{vL2}")
        g(f"s_lshl_b32 s{sOff}, s{sQ}, 5")
        g(f"s_add_u32 m0, s{sOff}, {PEA}")
        g("s_mov_b64 exec, vcc")
        g(f"buffer_load_dwordx4 v44, {s(EA,4)}, 0 offen{o.eald} lds")
        l1 = g.newlab()
        g(f"s_lshl3_add_u32 m0, s{sQ}, {PSH}")
        g(f"s_cmp_eq_u32 s{sRound}, 0")
        g(f"s_cbranch_scc1 {l1}")
        g(f"buffer_load_dword v45, {s(SH,4)}, 0 offen lds")
        g.label(l1)
        g("s_mov_b64 exec, -1")
        g(f"s_add_u32 s{sQ}, s{sQ}, 32")
        g(f"s_sub_i32 s{sDm}, s{sDm}, 32")
        g.label(lab)
    sched = [int(x) for x in o.pay.split(",")]
    def stage(st):
        for q in range(4):
            if sched[q] == st:
                pay(q)
    stage(0)
    g("s_barrier")
    g.stamp(2)
    g.c("================ degrees, assignment, offsets")
    vDeg, vKey, vRank = 56, 57, 59
    g(f"ds_read_b32 v{vDeg}, v56")
    g(f"ds_read_b32 v57, v57")
    stage(1)
    g("s_waitcnt lgkmcnt(0)")
    g(f"v_readfirstlane_b32 s{sMore}, v57")
    g(f"s_cmp_lg_u32 s{sRound}, 0")
    g("s_cbranch_scc1 L_assigned")
    for i in range(4):
        for be in range(2):
            for t in range(2):
                g(f"ds_read_b64_tr_b16 {a_(aWR+8*i+4*be+2*t,2)}, v{vWb} offset:{WRIMG + t*2048 + (64*i+32*be)*2}")
    lab = g.newlab()
    g(f"s_and_b32 s{sT}, s{sB}, 63")
    g(f"s_or_b32 s{sT}, s{sT}, s{sWV}")
    g(f"s_cbranch_scc1 {lab}")
    g.c("the group's first workgroup has seen entries of all 64 members: all have read the epoch; advance it")
    g(f"s_lshl_b32 s{sT}, s{sB}, 1")
    g(f"v_mov_b32 v60, s{sT}")
    g(f"v_mov_b32 v61, s{sTag}")
    g("s_mov_b64 exec, 1")
    g(f"buffer_store_dword v61, v60, {s(WS,4)}, 0 offen sc1")
    g("s_mov_b64 exec, -1")
    g.label(lab)
    g(f"v_sub_u32 v{vKey}, 63, v{vLane}")
    g(f"v_lshl_add_u32 v{vKey}, v{vDeg}, 6, v{vKey}")
    g(f"v_mov_b32 v{vRank}, 0")
    masks = ["vcc", "s[4:5]", "s[6:7]"]
    for b0 in range(0, 40, 16):
        nb = min(16, 40 - b0)
        for j in range(nb):
            g(f"v_readlane_b32 s{sKey+j}, v{vKey}, {b0+j}")
        j = 0
        while j < nb:
            m = min(3, nb - j)
            for t in range(m):
                g(f"v_cmp_gt_u32 {masks[t]}, s{sKey+j+t}, v{vKey}")
            if m < 3:
                g.nop(3 - m)
            for t in range(m):
                g(f"v_addc_co_u32 v{vRank}, {masks[t]}, 0, v{vRank}, {masks[t]}")
            j += m
    g(f"v_bfe_u32 v60, v{vRank}, 3, 1")
    g(f"v_mul_u32_u24 v60, 7, v60")
    g(f"v_and_b32 v61, 7, v{vRank}")
    g(f"v_xor_b32 v{vOwner}, v60, v61")
    g(f"s_sub_u32 s{sT}, 7, s{sWV}")
    for k in range(5):
        g(f"s_add_u32 s{sN}, s{sT if k & 1 else sWV}, {8*k}")
        g(f"v_cmp_eq_u32 vcc, s{sN}, v{vRank}")
        g(f"s_ff1_i32_b64 s{sSlot+k}, vcc")
    g.label("L_assigned")
    g(f"v_cmp_gt_u32 vcc, s{sWV}, v{vOwner}")
    g(f"v_and_b32 v61, 15, v{vLane}")
    g(f"v_lshlrev_b32 v61, 2, v61")
    g(f"v_cndmask_b32 v60, 0, v{vDeg}, vcc")
    g(f"v_add_u32 v61, {HIST}, v61")
    AD, CN = 64, 70
    for k in range(5):
        g(f"s_lshl_b32 s{sKey+k}, s{sSlot+k}, 6")
        g(f"v_add_u32 v{AD+k}, s{sKey+k}, v61")
        g(f"ds_read_b32 v{CN+k}, v{AD+k}")
    for n_, sh_ in enumerate((1, 2, 4, 8)):
        g(f"v_add_u32_dpp v60, v60, v60 row_shr:{sh_} row_mask:0xf bank_mask:0xf bound_ctrl:1")
        g(f"v_readlane_b32 s{sKey+8+n_}, v{vDeg}, s{sSlot+n_}")
        g.nop(1)
    g(f"v_readlane_b32 s{sKey+12}, v{vDeg}, s{sSlot+4}")
    g(f"v_readlane_b32 s{sBase}, v60, 15")
    g(f"v_readlane_b32 s{sT}, v60, 31")
    g(f"v_readlane_b32 s{sN}, v60, 47")
    g(f"s_add_u32 s{sRem}, s{sKey+8}, s{sKey+9}")
    for k in range(2, 5):
        g(f"s_add_u32 s{sRem}, s{sRem}, s{sKey+8+k}")
    g(f"s_add_u32 s{sBase}, s{sBase}, s{sT}")
    g(f"s_add_u32 s{sBase}, s{sBase}, s{sN}")
    g(f"s_add_u32 s{sBase}, s{sBase}, 3")
    g(f"s_andn2_b32 s{sBase}, s{sBase}, 3")
    g(f"s_lshl2_add_u32 s{sBase}, s{sWV}, s{sBase}")
    g("s_waitcnt lgkmcnt(0)")
    g(f"v_add3_u32 v60, v{CN}, v{CN+1}, v{CN+2}")
    g(f"v_add3_u32 v60, v60, v{CN+3}, v{CN+4}")
    g("v_mov_b32 v61, v60")
    for sh_ in (1, 2, 4, 8):
        g.nop(2)
        g(f"v_add_u32_dpp v61, v61, v61 row_shr:{sh_} row_mask:0xf bank_mask:0xf bound_ctrl:1")
    g("v_sub_u32 v61, v61, v60")
    g(f"v_add_u32 v61, s{sBase}, v61")
    for k in range(5):
        g(f"v_lshl_add_u32 v{75+k}, v61, 8, {16*k}")
        g(f"ds_write_b32 v{AD+k}, v{75+k} offset:{OFF-HIST}")
        if k < 4:
            g(f"v_add_u32 v61, v61, v{CN+k}")
    stage(2)
    g("s_waitcnt lgkmcnt(0)")
    g("s_barrier")
    g.stamp(8)
    g.c("================ placement of (pool index | src | acc offset); re-zero HIST/FLAG")
    for k in range(4):
        g(f"ds_read_b32 v{cM+k}, v{cK+k} offset:{OFF-HIST}")
    g("v_mov_b32 v60, 0")
    g("v_mov_b32 v61, 0")
    g(f"v_lshlrev_b32 v64, 3, v0")
    g(f"v_add_u32 v64, {HIST}, v64")
    g("ds_write_b64 v64, v[60:61]")
    g(f"v_mov_b32 v64, {FLAG}")
    g("ds_write_b32 v64, v60")
    g(f"s_mov_b32 s{sT}, {META}")
    g(f"s_movk_i32 s{sN}, 255")
    g("s_waitcnt lgkmcnt(2)")
    for k in range(4):
        g(f"v_lshrrev_b32 v{cK+k}, 8, v{cM+k}")
        g(f"v_add_u32 v{cK+k}, v{cK+k}, v{cR+k}")
        g(f"v_and_or_b32 v{cM+k}, v{cM+k}, s{sN}, v{cX+k}")
        g(f"v_lshl_add_u32 v{cK+k}, v{cK+k}, 2, s{sT}")
        g(f"s_mov_b64 exec, {s(sM[k],2)}")
        g(f"ds_write_b32 v{cK+k}, v{cM+k}")
        g("s_mov_b64 exec, -1")
    stage(3)
    g.c("lists longer than 128 candidates (rare): fetch the rest")
    g.label("L_paymore")
    g(f"s_cmp_le_i32 s{sDm}, 0")
    g("s_cbranch_scc1 L_paydone")
    g(f"ds_read_b32 v{EI}, v{vCand} offset:512")
    g(f"v_add_u32 v{vCand}, 128, v{vCand}")
    g("s_waitcnt lgkmcnt(0)")
    pay(0)
    g("s_branch L_paymore")
    g.label("L_paydone")
    RW, D, B, EA1, EA2, AC, M4, I1, I2, SHO = 16, 32, 48, 56, 60, 32, 68, 72, 73, 64
    vB1, vB2, vBS, vM1, vM2 = 74, 75, 76, 77, 78
    g(f"s_lshl_b32 s{sBase}, s{sBase}, 2")
    g(f"s_add_u32 s{sBase}, s{sBase}, {META}")
    g(f"v_mov_b32 v{vMetaA}, s{sBase}")
    g(f"v_and_b32 v62, 3, v{vLane}")
    g(f"v_lshl_add_u32 v{vM1}, v62, 2, s{sBase}")
    g(f"v_bfe_u32 v62, v{vLane}, 2, 2")
    g(f"v_lshl_add_u32 v{vM2}, v62, 2, s{sBase}")
    g(f"v_bfe_u32 v63, v{vLane}, 4, 1")
    g(f"v_lshlrev_b32 v63, 4, v63")
    g(f"v_add_u32 v63, {PEA}, v63")
    g(f"v_mov_b32 v65, {PSH}")
    g(f"v_mov_b32 v62, {ZERO}")
    g(f"v_cmp_ne_u32 vcc, 0, v{vMul1}")
    g(f"v_cmp_ne_u32 s[4:5], 0, v{vMul2}")
    g(f"v_cmp_ne_u32 s[6:7], 0, v{vMulS}")
    g(f"v_cndmask_b32 v{vB1}, v62, v63, vcc")
    g(f"v_cndmask_b32 v{vB2}, v62, v63, s[4:5]")
    g(f"v_cndmask_b32 v{vBS}, v62, v65, s[6:7]")
    g("s_waitcnt lgkmcnt(0)")
    g("s_barrier")
    g.stamp(3)

    def issue(sm, r):
        g(f"s_and_b32 s{sOff}, s{sm+r}, s{sMask}")
        g(f"s_add_u32 m0, s{sRing}, {r*2048}")
        g(f"s_lshl_b32 s{sOff}, s{sOff}, 3")
        g(f"buffer_load_dwordx4 v{vDma0}, {s(X,4)}, s{sOff} offen lds")
        g(f"buffer_load_dwordx4 v{vDma1}, {s(X,4)}, s{sOff} offen offset:1024 lds")

    def opaddr():
        g(f"v_lshrrev_b32 v{I1}, 22, v{I1}")
        g(f"v_lshrrev_b32 v{I2}, 22, v{I2}")
        g(f"v_mad_u32_u24 v{vEa1}, v{I1}, v{vMul1}, v{vB1}")
        g(f"v_mad_u32_u24 v{vEa2}, v{I1}, v{vMul2}, v{vB2}")
        g(f"v_mad_u32_u24 v{vSh}, v{I2}, v{vMulS}, v{vBS}")

    g.c("================ first rows, then wait for everybody's payload")
    g(f"ds_read_b128 {v(M4,4)}, v{vMetaA}")
    g(f"ds_read_b32 v{I1}, v{vM1}")
    g(f"ds_read_b32 v{I2}, v{vM2}")
    g(f"s_cmp_lt_u32 s{sRem}, {R}")
    g("s_cbranch_scc1 L_short")
    g("s_waitcnt lgkmcnt(2)")
    for r in range(4):
        g(f"v_readfirstlane_b32 s{sMa+r}, v{M4+r}")
    for r in range(R):
        issue(sMa, r)
    g(f"s_waitcnt vmcnt({2*R})")
    g("s_branch L_go")
    g.label("L_short")
    g("s_waitcnt vmcnt(0) lgkmcnt(0)")
    for r in range(4):
        g(f"v_readfirstlane_b32 s{sMa+r}, v{M4+r}")
    for r in range(R - 1):
        g(f"s_cmp_le_u32 s{sRem}, {r}")
        g("s_cbranch_scc1 L_go")
        issue(sMa, r)
    g.label("L_go")
    lab = g.newlab()
    g(f"s_cmp_ge_u32 s{sWV}, 2")
    g(f"s_cbranch_scc1 {lab}")
    g(f"s_cmp_lg_u32 s{sRound}, 0")
    g(f"s_cbranch_scc1 {lab}")
    g.c("this wave's w_out fragment has been acknowledged: publish its flag (one extra wait step below)")
    g(f"v_mov_b32 v62, s{sWfl}")
    g(f"v_mov_b32 v63, s{sTag}")
    g("s_mov_b64 exec, 1")
    g(f"buffer_store_dword v63, v62, {s(WS,4)}, 0 offen sc1")
    g("s_mov_b64 exec, -1")
    g.label(lab)
    g("s_waitcnt lgkmcnt(0)")
    opaddr()
    g("s_barrier")
    g.stamp(9)
    g.cstamp(18)
    g(f"s_cmp_eq_u32 s{sRem}, 0")
    g("s_cbranch_scc1 L_round_done")
    g.c("================ sweep: groups of 4 edges")
    g.label("L_group")
    g(f"ds_read_b64 {v(SHO,2)}, v{vSh}")
    g(f"ds_read_b128 {v(EA1,4)}, v{vEa1}")
    g(f"ds_read_b128 {v(EA2,4)}, v{vEa2}")
    g(f"ds_read_b128 {v(M4,4)}, v{vMetaA} offset:16")
    g(f"ds_read_b32 v{I1}, v{vM1} offset:16")
    g(f"ds_read_b32 v{I2}, v{vM2} offset:16")
    g(f"v_add_u32 v{vMetaA}, 16, v{vMetaA}")
    g(f"v_add_u32 v{vM1}, 16, v{vM1}")
    g(f"v_add_u32 v{vM2}, 16, v{vM2}")
    g("s_waitcnt lgkmcnt(0)")
    g(f"v_mfma_f32_16x16x16_bf16 {v(AC,4)}, {v(vCG,2)}, {v(SHO,2)}, 0")
    for i in range(4):
        g(f"v_mfma_f32_16x16x32_bf16 {v(RW+4*i,4)}, {v(EA1,4)}, {a_(aWR+8*i,4)}, 0")
    for i in range(4):
        g(f"v_mfma_f32_16x16x32_bf16 {v(RW+4*i,4)}, {v(EA2,4)}, {a_(aWR+8*i+4,4)}, {v(RW+4*i,4)}")
    for r in range(4):
        g(f"v_readfirstlane_b32 s{sMb+r}, v{M4+r}")
    g(f"v_cvt_pk_bf16_f32 v{SHO}, v{AC}, v{AC+1}")
    g(f"v_cvt_pk_bf16_f32 v{SHO+1}, v{AC+2}, v{AC+3}")
    opaddr()
    for r in range(4):
        g.c(f"-- edge {r}")
        l1 = g.newlab()
        g(f"s_cmp_ge_u32 s{sRem}, {R}")
        g(f"s_cbranch_scc1 {l1}")
        g("s_waitcnt vmcnt(0)")
        g.label(l1)
        g(f"s_waitcnt vmcnt({2*(R-1)})")
        for i in range(4):
            g(f"ds_read_b64_tr_b16 {v(B+2*i,2)}, v{vTr} offset:{r*2048+i*256}")
        l2 = g.newlab()
        if R == 4:
            g("s_waitcnt lgkmcnt(0)")
        g(f"s_cmp_le_u32 s{sRem}, {R}")
        g(f"s_cbranch_scc1 {l2}")
        issue(sMb if r + R >= 4 else sMa, (r + R) % 4)
        g.label(l2)
        if R < 4:
            g("s_waitcnt lgkmcnt(0)")
        for i in range(4):
            g(f"v_mfma_f32_4x4x4_16b_bf16 {v(D+4*i,4)}, {v(SHO,2)}, {v(B+2*i,2)}, 0 cbsz:4 abid:{r}")
        g.nop(1)
        g(f"s_set_gpr_idx_on s{sMa+r}, gpr_idx(SRC2,DST)")
        x = r & 1
        for i in range(4):
            rw = RW + 4 * i + (r & ~1)
            for wp in range(2):
                g(f"v_pk_fma_f32 {v(acc(0,i,2*wp),2)}, {v(D+4*i+2*wp,2)}, {v(rw,2)}, {v(acc(0,i,2*wp),2)} op_sel:[0,{x},0] op_sel_hi:[1,{x},1]")
        g("s_set_gpr_idx_off")
        g(f"s_mov_b32 s{sMa+r}, s{sMb+r}")
        g(f"s_sub_u32 s{sRem}, s{sRem}, 1")
        g(f"s_cmp_eq_u32 s{sRem}, 0")
        g(f"s_cbranch_scc{1 if r < 3 else 0} {'L_round_done' if r < 3 else 'L_group'}")
    g.label("L_round_done")
    g(f"s_add_u32 s{sRound}, s{sRound}, 1")
    g(f"s_cmp_lg_u32 s{sMore}, 0")
    g("s_cbranch_scc1 L_scan")
    g.stamp(4)
    g.cstamp(19)

    g.c("================ w_out fragments (published ~20 us ago; the flags are checked all the same) -> AGPRs")
    g(f"s_and_b32 s{sN}, s{sB}, 192")
    g(f"s_lshl_b32 s{sN}, s{sN}, 1")
    g(f"s_lshl4_add_u32 s{sN}, s{sWV}, s{sN}")
    g(f"s_lshl2_add_u32 s{sT}, s{sN}, {WS_FW}")
    g(f"v_and_b32 v16, 15, v{vLane}")
    g(f"v_lshl_add_u32 v16, v16, 2, s{sT}")
    g(f"s_lshl_b32 s{sT}, s{sN}, 10")
    g(f"s_add_u32 s{sT}, s{sT}, {WS_WF}")
    g(f"v_lshl_add_u32 v18, v{vLane}, 4, s{sT}")
    g(f"s_mov_b32 s{sC}, 0")
    g.label("L_pollw")
    g(f"buffer_load_dword v17, v16, {s(WS,4)}, 0 offen sc1")
    g("s_waitcnt vmcnt(0)")
    g(f"v_cmp_ne_u32 vcc, s{sTag}, v17")
    g("s_cbranch_vccz L_gotw")
    g("s_sleep 1")
    g(f"s_add_u32 s{sC}, s{sC}, 1")
    g(f"s_cmp_lt_u32 s{sC}, 0x400000")
    g("s_cbranch_scc1 L_pollw")
    g.label("L_gotw")
    for ks in range(16):
        g(f"buffer_load_dwordx4 {a_(aW+4*ks,4)}, v18, {s(WS,4)}, 0 offen offset:{(ks%4)*1024} sc1")
        if ks % 4 == 3:
            g(f"v_add_u32 v18, 4096, v18")
    g.c("================ agg image -> LDS")
    g(f"v_mul_u32_u24 v16, 320, v{vLane}")
    g(f"v_lshrrev_b32 v17, 2, v{vLane}")
    g(f"v_lshl_add_u32 v16, v17, 3, v16")
    for k in range(5):
        g(f"s_lshl_b32 s{sT}, s{sSlot+k}, 3")
        g(f"v_add_u32 v{17+k}, s{sT}, v16")
    t = 0
    for k in range(5):
        for i in range(4):
            p = 24 + 2 * t
            t += 1
            g(f"v_cvt_pk_bf16_f32 v{p}, v{acc(k,i,0)}, v{acc(k,i,1)}")
            g(f"v_cvt_pk_bf16_f32 v{p+1}, v{acc(k,i,2)}, v{acc(k,i,3)}")
    vG0, vG1, vO, vSw, vSr = 2, 3, 4, 5, 6
    g(f"v_lshrrev_b32 v70, 5, v{vLane}")
    g(f"v_mul_u32_u24 v71, 2576, v70")
    g(f"v_bfe_u32 v72, v{vLane}, 2, 2")
    g(f"v_mul_u32_u24 v74, 320, v72")
    g(f"v_bfe_u32 v73, v{vLane}, 4, 1")
    g(f"v_lshl_add_u32 v71, v73, 5, v71")
    g(f"v_and_b32 v73, 3, v{vLane}")
    g(f"v_lshl_add_u32 v71, v73, 3, v71")
    g(f"v_add_u32 v{vG0}, v71, v74")
    g(f"v_add_u32 v{vG1}, {8*5152}, v{vG0}")
    g(f"s_mul_i32 s{sT}, s{sWV}, 5120")
    g(f"s_add_u32 s{sT}, s{sT}, {STG}")
    g(f"v_and_b32 v74, 31, v{vLane}")
    g(f"v_mul_u32_u24 v74, 80, v74")
    g(f"v_lshl_add_u32 v74, v70, 3, v74")
    g(f"v_add_u32 v{vSw}, s{sT}, v74")
    g(f"v_lshrrev_b32 v74, 2, v{vLane}")
    g(f"v_mul_u32_u24 v74, 80, v74")
    g(f"v_lshl_add_u32 v74, v73, 4, v74")
    g(f"v_add_u32 v{vSr}, s{sT}, v74")
    g(f"v_lshrrev_b32 v74, 4, v{vLane}")
    g(f"v_lshlrev_b32 v74, 19, v74")
    g(f"v_lshl_add_u32 v74, v72, 9, v74")
    g(f"v_lshl_add_u32 v74, v73, 4, v74")
    g(f"s_lshl_b32 s{sT}, s{sB}, 11")
    g(f"s_lshl_b32 s{sN}, s{sWV}, 6")
    g(f"s_add_u32 s{sT}, s{sT}, s{sN}")
    g(f"v_add_u32 v{vO}, s{sT}, v74")
    g("s_barrier")
    g.stamp(5)
    t = 0
    for k in range(5):
        for i in range(4):
            p = 24 + 2 * t
            t += 1
            g(f"ds_write_b64 v{17+k}, {v(p,2)} offset:{i*20608}")
    g("s_waitcnt lgkmcnt(0)")
    g("s_barrier")
    g.stamp(6)
    g.cstamp(16)
    g.c("================ GEMM: out^T tile = W^T (A) x agg^T (B)")
    FB = [16, 32]
    DD = [48, 64]
    PK = [80, 88]
    OB = [96, 104]
    chunks = [(t, c) for t in range(5) for c in range(4)]

    def rd(n):
        t, c = chunks[n]
        for kk in range(4):
            ks = 4 * c + kk
            base = vG0 if ks < 8 else vG1
            for tt in range(2):
                g(f"ds_read_b64_tr_b16 {v(FB[n%2]+4*kk+2*tt,2)}, v{base} offset:{(ks%8)*5152 + tt*1288 + t*64}")

    def epi1(t):
        d, p, ob = DD[t % 2], PK[t % 2], OB[t % 2]
        for q in range(8):
            g(f"v_cvt_pk_bf16_f32 v{p+q}, v{d+2*q}, v{d+2*q+1}")
        for a in range(4):
            g(f"ds_write_b64 v{vSw}, {v(p+2*a,2)} offset:{2560*(t%2)+16*a}")
        for hf in range(2):
            g(f"ds_read_b128 {v(ob+4*hf,4)}, v{vSr} offset:{2560*(t%2)+1280*hf}")

    def epi2(t):
        ob = OB[t % 2]
        for hf in range(2):
            if not (o.nostore and t < 4):
                g(f"buffer_store_dwordx4 {v(ob+4*hf,4)}, v{vO}, {s(OUT,4)}, 0 offen{o.stflag}")
            g(f"v_add_u32 v{vO}, {4<<19}, v{vO}")
    PD = o.gdist
    NBUF = 8
    def rdj(j):
        t, ks = divmod(j, 16)
        base = vG0 if ks < 8 else vG1
        for tt in range(2):
            g(f"ds_read_b64_tr_b16 {v(16+4*(j%NBUF)+2*tt,2)}, v{base} offset:{(ks%8)*5152 + tt*1288 + t*64}")
    for j in range(PD):
        rdj(j)
    g("s_waitcnt vmcnt(0)")
    cv = []
    for j in range(80):
        t, ks = divmod(j, 16)
        g(f"s_waitcnt lgkmcnt({2*min(PD-1, 79-j)})")
        cin = "0" if ks == 0 else v(DD[t % 2], 16)
        g(f"v_mfma_f32_32x32x16_bf16 {v(DD[t%2],16)}, {a_(aW+4*ks,4)}, {v(16+4*(j%NBUF),4)}, {cin}")
        if j + PD < 80:
            rdj(j + PD)
        if t > 0:
            d, p, ob = DD[(t-1) % 2], PK[(t-1) % 2], OB[(t-1) % 2]
            so = 2560 * ((t-1) % 2)
            if 3 <= ks <= 6:
                a = ks - 3
                g(f"v_cvt_pk_bf16_f32 v{p+2*a}, v{d+4*a}, v{d+4*a+1}")
                g(f"v_cvt_pk_bf16_f32 v{p+2*a+1}, v{d+4*a+2}, v{d+4*a+3}")
                g(f"ds_write_b64 v{vSw}, {v(p+2*a,2)} offset:{so+16*a}")
            if ks in (7, 8):
                hf = ks - 7
                g(f"ds_read_b128 {v(ob+4*hf,4)}, v{vSr} offset:{so+1280*hf}")
            if ks == 15:
                assert PD <= 7
                epi2(t - 1)
    g.nop(12)
    epi1(4)
    g("s_waitcnt lgkmcnt(0)")
    epi2(4)
    if o.stamps:
        g.stamp(10)
        g.cstamp(17)
        g("s_waitcnt vmcnt(0)")
        g.stamp(7)
        g(f"s_lshl_b32 s{sT}, s{sB}, 3")
        g(f"s_add_u32 s{sT}, s{sT}, s{sWV}")
        g(f"s_lshl_b32 s{sT}, s{sT}, 8")
        g(f"s_add_u32 s{sT}, s{sT}, {WS_STAMP}")
        g(f"v_lshlrev_b32 v16, 2, v{vLane}")
        g(f"v_add_u32 v16, s{sT}, v16")
        g(f"buffer_store_dword v{vStamp}, v16, {s(WS,4)}, 0 offen")
    if o.amp:
        i0, i1 = [int(x) for x in o.amp.split(",")]
        g(f"v_readlane_b32 s60, v{vStamp}, {i0}")
        g(f"v_readlane_b32 s61, v{vStamp}, {i1}")
        g(f"v_readlane_b32 s62, v{vStamp}, 7")
        g("s_sub_u32 s61, s61, s60")
        g("s_lshl_b32 s61, s61, 2")
        g.label("L_amp")
        g("s_memrealtime s[4:5]")
        g("s_waitcnt lgkmcnt(0)")
        g("s_sub_u32 s4, s4, s62")
        g("s_cmp_lt_u32 s4, s61")
        g("s_cbranch_scc1 L_amp")
    g.label("L_end")
    g("s_endpgm")
    return g.L


HEADER = open("/code/" + NAME + ".s.ref").read().split("; Override launch")[0]


def kd(name, vg, sg, acc):
    return f""".section .rodata,"a"
.p2align 6
.amdhsa_kernel {name}
  .amdhsa_next_free_vgpr {vg}
  .amdhsa_next_free_sgpr {sg}
  .amdhsa_accum_offset {acc}
  .amdhsa_group_segment_fixed_size 0
  .amdhsa_kernarg_size 88
  .amdhsa_user_sgpr_count 2
  .amdhsa_user_sgpr_kernarg_segment_ptr 1
  .amdhsa_system_sgpr_workgroup_id_x 1
  .amdhsa_float_denorm_mode_32 3
.end_amdhsa_kernel
"""


def emit(o):
    out = HEADER
    out += f"; @launch grid=(256,1,1) block=(512,1,1) lds={LDS_BYTES}\n"
    out += "; generated by dev/gen.py\n"
    out += '.amdgcn_target "amdgcn-amd-amdhsa--gfx950"\n.text\n'
    out += f".globl {NAME}_kernel\n.p2align 8\n.type {NAME}_kernel,@function\n{NAME}_kernel:\n"
    out += "\n".join(build(o)) + "\n"
    out += kd(NAME + "_kernel", 256, 102, 160)
    open(o.o, "w").write(out)


if __name__ == "__main__":
    ap = argparse.ArgumentParser()
    ap.add_argument("-o", default="/code/" + NAME + ".s")
    ap.add_argument("--stamps", action="store_true")
    ap.add_argument("--pf", default="0,0,0")
    ap.add_argument("--k1ld", default="")
    ap.add_argument("--eald", default="")
    ap.add_argument("--stflag", default=" sc1")
    ap.add_argument("--R", type=int, default=3)
    ap.add_argument("--nostore", action="store_true")
    ap.add_argument("--gdist", type=int, default=6)
    ap.add_argument("--pay", default="0,1,2,3")
    ap.add_argument("--prewait", type=int, default=1)
    ap.add_argument("--probe", type=int, default=0)
    ap.add_argument("--sleep", type=int, default=4)
    ap.add_argument("--tlb", type=int, default=0)
    ap.add_argument("--amp", default="", help="diagnostic: spin 4x the time between two stamps at the end")
    emit(ap.parse_args())
```

```python
import sys, argparse

NAME = "standalone__tensor_product_equiv_mace__graph"
N, E = 10000, 160000

RING = 0
POOLCAP = 1024
PEA = 65536
PSH = PEA + POOLCAP * 32
META = PSH + POOLCAP * 8
MREG = POOLCAP + 16
HIST = META + 8 * MREG * 4
DEG = HIST + 60 * 64
POOL = HIST + 59 * 64
OFF = HIST + 4096
ZERO = OFF + 4096
FLAG = ZERO + 16
PIMG = 0
WRIMG = 32768
PCNT = FLAG + 16
CAND = PCNT + 256
STG = 82432
LDS_BYTES = 157440
assert CAND + 8192 <= LDS_BYTES and CAND % 16 == 0
assert FLAG + 16 <= LDS_BYTES and META % 16 == 0 and HIST % 16 == 0 and STG + 8 * 5120 <= LDS_BYTES
WS_EP = 0
WS_FW = 4096
WS_WF = 1 << 20
WS_STAMP = 4 << 20
WS_CELLS = 8 << 20
ROWB = 64 * 128 + 128
WS_EXT = 16 << 20
WS_BYTES = 20 << 20
assert WS_CELLS + 256 * ROWB <= WS_EXT

sB, sWV = 2, 3
X, SRC, DST, SH, EA, OUT, WS = 8, 12, 16, 20, 24, 28, 32
sM = [36, 38, 40, 42]
sPB, sQ, sDm, sNomatch = 44, 45, 46, 47
sTag, sCand, sPM, sWfl = 48, 49, 50, 83
WO, WR, CG = 88, 92, 96
sKskip, sT, sN, sC = 52, 53, 54, 55
sSlot = 56
sBase, sRem, sRing = 61, 62, 63
sMa, sMb = 64, 68
sOff, sRound, sMore, sCnt, sL, sMask = 76, 77, 78, 79, 80, 82
sKey = 84
sAddr, sLimit = 64, 65

vLane, vDma0, vDma1, vTr, vEa1, vEa2, vMul1, vMul2, vSh, vMulS, vOwner, vStamp, vMetaA = range(1, 14)
ACC = 80
def acc(k, i, w): return ACC + 16 * k + 4 * i + w
aWR, aW = 0, 32
vCG = 14


class Gen:
    def __init__(self, stamps=False):
        self.L = []
        self.stamps = stamps
        self.nlab = 0

    def __call__(self, s):
        self.L.append("    " + s)

    def label(self, s):
        self.L.append(s + ":")

    def c(self, s):
        self.L.append("    ; " + s)

    def newlab(self, p="L"):
        self.nlab += 1
        return f"{p}_{self.nlab}"

    def nop(self, n):
        while n > 0:
            k = min(n, 16)
            self(f"s_nop {k-1}")
            n -= k

    def cstamp(self, i):
        if not self.stamps:
            return
        self(f"s_memtime s[4:5]")
        self("s_waitcnt lgkmcnt(0)")
        self(f"v_writelane_b32 v{vStamp}, s4, {i}")

    def stamp(self, i):
        if not self.stamps:
            return
        self(f"s_memrealtime s[4:5]")
        self("s_waitcnt lgkmcnt(0)")
        self(f"v_writelane_b32 v{vStamp}, s4, {i}")


def srd(g, d, ptr, nbytes):
    g(f"s_mov_b32 s{d}, s{ptr}")
    g(f"s_mov_b32 s{d+1}, s{ptr+1}")
    g(f"s_mov_b32 s{d+2}, {nbytes}")
    g(f"s_mov_b32 s{d+3}, 0x00020000")


def v(a, n=1):
    return f"v{a}" if n == 1 else f"v[{a}:{a+n-1}]"


def a_(a, n=1):
    return f"a{a}" if n == 1 else f"a[{a}:{a+n-1}]"


def s(a, n=1):
    return f"s{a}" if n == 1 else f"s[{a}:{a+n-1}]"


def build(o):
    g = Gen(o.stamps)
    R = o.R
    cM, cE, cX, cK, cR = 16, 20, 24, 28, 32
    vL2, vP16, vP4, vCand = 36, 37, 38, 39
    pfs = [int(x) for x in o.pf.split(",")]
    vPf = 79

    def pf(n):
        for _ in range(n):
            g(f"buffer_load_dwordx4 {v(ACC+76,4)}, v{vPf}, {s(X,4)}, 0 offen")
            g(f"v_add_u32 v{vPf}, {256*1024}, v{vPf}")
    g(f"s_cmp_ge_u32 s{sB}, 256")
    g("s_cbranch_scc1 L_end")
    g("s_load_dwordx2 s[84:85], s[0:1], 80")
    g("s_load_dwordx16 s[64:79], s[0:1], 0")
    g("s_load_dwordx2 s[80:81], s[0:1], 64")
    g(f"v_and_b32 v{vLane}, 63, v0")
    g(f"v_lshrrev_b32 v60, 6, v0")
    g(f"v_mov_b32 v{vStamp}, 0")
    g(f"v_readfirstlane_b32 s{sWV}, v60")
    g(f"s_and_b32 s{sC}, s{sB}, 63")
    g(f"s_and_b32 s{sN}, s{sB}, 192")
    g(f"s_mul_i32 s{sT}, s{sC}, 10000")
    g(f"v_lshlrev_b32 v63, 4, v0")
    g(f"v_add_u32 v60, s{sT}, v63")
    g(f"s_add_u32 s{sT}, s{sT}, 8192")
    g(f"v_lshl_add_u32 v61, v0, 2, s{sT}")
    g(f"s_lshl_b32 s{sT}, s{sN}, 1")
    g(f"v_mov_b32 v62, s{sT}")
    g("s_waitcnt lgkmcnt(0)")
    pD, pS, pH = 16, 24, 32
    srd(g, DST, 68, E * 4)
    g(f"buffer_load_dwordx4 {v(pD,4)}, v60, {s(DST,4)}, 0 offen{o.k1ld}")
    g(f"buffer_load_dword v{pD+4}, v61, {s(DST,4)}, 0 offen{o.k1ld}")
    srd(g, SRC, 66, E * 4)
    g(f"buffer_load_dwordx4 {v(pS,4)}, v60, {s(SRC,4)}, 0 offen{o.k1ld}")
    g(f"buffer_load_dword v{pS+4}, v61, {s(SRC,4)}, 0 offen{o.k1ld}")
    srd(g, WS, 84, WS_BYTES)
    g(f"buffer_load_dword v42, v62, {s(WS,4)}, 0 offen sc1")
    srd(g, SH, 70, E * 8)
    g.stamp(0)
    g.c("---- LDS init: entry image = empty, counters, HIST, ZERO block, FLAG")
    for k in range(4):
        g(f"v_mov_b32 v{72+k}, -1")
    for i in range(2):
        g(f"ds_write_b128 v63, v[72:75] offset:{PIMG+8192*i}")
    g("v_mov_b32 v68, 0")
    g("v_mov_b32 v69, 0")
    g(f"v_lshlrev_b32 v60, 3, v0")
    g(f"v_add_u32 v60, {HIST}, v60")
    g("ds_write_b64 v60, v[68:69]")
    g(f"v_min_u32 v60, 35, v{vLane}")
    g(f"v_lshlrev_b32 v60, 3, v60")
    g(f"v_add_u32 v60, {ZERO}, v60")
    g("ds_write_b64 v60, v[68:69]")
    srd(g, X, 64, N * 2048)
    srd(g, EA, 72, E * 32)
    srd(g, OUT, 80, N * 2048)
    srd(g, CG, 74, 128)
    srd(g, WR, 76, 8192)
    srd(g, WO, 78, 131072)
    g(f"s_lshl_b32 s{sRing}, s{sWV}, 13")
    g(f"s_mov_b32 s{sKskip}, 0")
    g(f"s_mov_b32 s{sRound}, 0")
    g(f"s_mov_b32 s{sMask}, 0x3fff00")
    g(f"s_mov_b32 s{sWfl}, {WS_BYTES}")
    g(f"s_lshl_b32 s{sCand}, s{sWV}, 10")
    g(f"s_add_u32 s{sCand}, s{sCand}, {CAND}")
    g(f"s_movk_i32 s{sT}, 452")
    g(f"v_cmp_gt_u32 {s(sPM,2)}, s{sT}, v0")
    g(f"v_lshlrev_b32 v43, 22, v0")
    g(f"v_lshlrev_b32 v59, 20, v0")
    g("v_mov_b32 v58, 1")
    g("s_waitcnt lgkmcnt(0)")
    g("s_barrier")
    g.c("---- weights: cg operand, w_r image, this wave's share of the w_out transposition")
    g(f"v_and_b32 v60, 3, v{vLane}")
    g(f"v_lshlrev_b32 v61, 5, v60")
    g(f"v_lshrrev_b32 v66, 4, v{vLane}")
    g(f"v_lshl_add_u32 v61, v66, 1, v61")
    for q in range(4):
        g(f"buffer_load_ushort v{44+q}, v61, {s(CG,4)}, 0 offen offset:{q*8}")
    g(f"s_lshl_b32 s{sT}, s{sWV}, 10")
    g(f"s_add_u32 m0, s{sT}, {WRIMG}")
    g(f"v_lshlrev_b32 v64, 4, v{vLane}")
    g(f"buffer_load_dwordx4 v64, {s(WR,4)}, s{sT} offen lds")
    nlate = 5
    g(f"s_lshr_b32 s{sT}, s{sB}, 3")
    g(f"s_lshl3_add_u32 s{sT}, s{sT}, s{sWV}")
    g(f"s_lshl_b32 s{sT}, s{sT}, 10")
    g(f"v_add_u32 v{vPf}, s{sT}, v64")
    if o.codepf:
        g.c("read the rest of this kernel's own code once so that instruction fetches find it in L2")
        g("s_getpc_b64 s[4:5]")
        g(f"v_lshlrev_b32 v65, 7, v{vLane}")
        g(f"s_cmp_ge_u32 s{sWV}, {o.codepf}")
        g(f"s_cselect_b32 s{sT}, 0, s{sRing}")
        g(f"v_add_u32 v65, s{sT}, v65")
        g(f"global_load_dword v{ACC+76}, v65, s[4:5]")
        nlate += 1
    g.c("sh -> L2: the 32 workgroups b%8==const (one XCD when dealt round-robin; speed only) read all of it")
    for i in range(o.shpf):
        g(f"buffer_load_dwordx4 {v(ACC+76,4)}, v{vPf}, {s(SH,4)}, 0 offen")
        g(f"v_add_u32 v{vPf}, {256*1024}, v{vPf}")
    nlate += o.shpf
    if o.shpf:
        g(f"v_subrev_u32 v{vPf}, {o.shpf*256*1024}, v{vPf}")
    pf(pfs[0])
    nlate += pfs[0]
    if o.tlb:
        g.c("address-translation warm-up: one line per stride of x, out, edge_attr")
        g(f"v_lshlrev_b32 v64, {o.tlb}, v0")
        g(f"buffer_load_dword v{ACC+76}, v64, {s(X,4)}, 0 offen")
        g(f"buffer_load_dword v{ACC+77}, v64, {s(OUT,4)}, 0 offen")
        g(f"buffer_load_dword v{ACC+78}, v64, {s(EA,4)}, 0 offen")
        nlate += 3
    g.c("---- persistent per-lane constants")
    g(f"v_and_b32 v61, 7, v{vLane}")
    g(f"v_bfe_u32 v65, v{vLane}, 3, 1")
    g(f"v_lshlrev_b32 v65, 9, v65")
    g(f"v_lshl_add_u32 v65, v66, 7, v65")
    g(f"v_lshl_add_u32 v{vDma0}, v61, 4, v65")
    g(f"v_xor_b32 v61, 4, v61")
    g(f"v_lshl_add_u32 v{vDma1}, v61, 4, v65")
    g(f"v_bfe_u32 v60, v{vLane}, 2, 2")
    g(f"v_bfe_u32 v62, v{vLane}, 1, 1")
    g(f"v_lshl_add_u32 v62, v66, 1, v62")
    g(f"v_lshrrev_b32 v63, 1, v60")
    g(f"v_lshlrev_b32 v64, 2, v63")
    g(f"v_xor_b32 v62, v62, v64")
    g(f"v_and_b32 v64, 1, v60")
    g(f"v_lshl_add_u32 v62, v64, 3, v62")
    g(f"v_lshlrev_b32 v62, 4, v62")
    g(f"v_lshl_add_u32 v62, v63, 10, v62")
    g(f"v_and_b32 v64, 1, v{vLane}")
    g(f"v_lshl_add_u32 v62, v64, 3, v62")
    g(f"v_add_u32 v{vTr}, s{sRing}, v62")
    g(f"v_lshrrev_b32 v61, 5, v{vLane}")
    g(f"v_mov_b32 v63, 32")
    g(f"v_cmp_eq_u32 vcc, v60, v61")
    g(f"v_add_u32 v61, 2, v61")
    g(f"v_and_b32 v64, 3, v{vLane}")
    g(f"v_cndmask_b32 v{vMul1}, 0, v63, vcc")
    g(f"v_cmp_eq_u32 vcc, v60, v61")
    g(f"v_cmp_eq_u32 s[4:5], v64, v66")
    g(f"v_mov_b32 v65, 8")
    g(f"v_cndmask_b32 v{vMul2}, 0, v63, vcc")
    g(f"v_cndmask_b32 v{vMulS}, 0, v65, s[4:5]")
    CE = 70
    g(f"v_lshrrev_b32 v68, 3, v0")
    g(f"v_and_b32 v69, 7, v0")
    g(f"v_lshlrev_b32 v69, 4, v69")
    g(f"v_add_u32 v61, s{sN}, v68")
    g(f"s_movk_i32 s{sDm}, {ROWB}")
    g(f"v_mad_u32_u24 v64, v61, s{sDm}, v69")
    g(f"s_lshl_b32 s{sQ}, s{sC}, 7")
    g(f"s_add_u32 s{sT}, s{sQ}, {WS_CELLS}")
    g(f"v_add_u32 v64, s{sT}, v64")
    g(f"v_lshl_add_u32 v65, v61, 13, v69")
    g(f"s_add_u32 s{sT}, s{sQ}, {WS_EXT}")
    g(f"v_add_u32 v65, s{sT}, v65")
    g(f"v_lshlrev_b32 v61, 4, v0")
    g(f"s_mov_b32 s{sT}, {PCNT}")
    g(f"v_lshl_add_u32 v67, v68, 2, s{sT}")
    g.c("================ producer: bin this chunk's edges of the group's buckets")
    PB, PR = 48, 53
    PMK = [64, 66, 68, 70, 72]
    g(f"s_waitcnt vmcnt({nlate+3})")
    g.stamp(11)
    for k in range(5):
        g(f"v_and_b32 v{PB+k}, 255, v{pD+k}")
        g(f"v_subrev_u32 v{PB+k}, s{sN}, v{PB+k}")
        g(f"v_cmp_gt_u32 {s(PMK[k],2)}, 64, v{PB+k}")
        g(f"v_lshl_add_u32 v60, v{PB+k}, 2, s{sT}")
        if k == 4:
            g(f"s_and_b64 {s(PMK[k],2)}, {s(PMK[k],2)}, {s(sPM,2)}")
        g(f"s_mov_b64 exec, {s(PMK[k],2)}")
        g(f"ds_add_rtn_u32 v{PR+k}, v60, v58")
        g("s_mov_b64 exec, -1")
    g(f"s_waitcnt vmcnt({nlate})")
    g(f"v_readfirstlane_b32 s{sTag}, v42")
    for k in range(5):
        g(f"v_bfe_u32 v{pD+k}, v{pD+k}, 8, 6")
        g(f"v_min_u32 v{pD+k}, 47, v{pD+k}")
        g(f"v_and_b32 v{pS+k}, 0x3fff, v{pS+k}")
        g(f"v_lshl_or_b32 v{pD+k}, v{pS+k}, 6, v{pD+k}")
        if k < 4:
            g(f"v_add_u32 v{pS+k}, {k<<20}, v43")
        else:
            g(f"v_add_u32 v{pS+k}, {2048<<20}, v59")
        g(f"v_or_b32 v{pD+k}, v{pD+k}, v{pS+k}")
        g(f"v_lshlrev_b32 v{PB+k}, 7, v{PB+k}")
    g("v_mov_b32 v59, -2")
    g(f"s_add_u32 s{sTag}, s{sTag}, 1")
    g(f"s_movk_i32 s{sT}, {8192 - 24*16}")
    g("s_waitcnt lgkmcnt(0)")
    for k in range(5):
        g(f"v_cmp_gt_u32 vcc, 31, v{PR+k}")
        g(f"v_min_u32 v{PR+k}, 31, v{PR+k}")
        g(f"v_mul_u32_u24 v32, 43, v{PR+k}")
        g(f"v_cndmask_b32 v{pD+k}, v59, v{pD+k}, vcc")
        g(f"v_lshrrev_b32 v32, 7, v32")
        g(f"v_cmp_gt_u32 vcc, 24, v{PR+k}")
        g(f"v_add_lshl_u32 v32, v32, v{PR+k}, 2")
        g(f"v_lshl_add_u32 v33, v{PR+k}, 4, s{sT}")
        g(f"v_cndmask_b32 v32, v33, v32, vcc")
        g(f"v_add_u32 v{PB+k}, v{PB+k}, v32")
        g(f"s_mov_b64 exec, {s(PMK[k],2)}")
        g(f"ds_write_b32 v{PB+k}, v{pD+k} offset:{PIMG}")
        g("s_mov_b64 exec, -1")
    g("s_waitcnt lgkmcnt(0)")
    g("s_barrier")
    g(f"ds_read_b128 v[16:19], v61 offset:{PIMG}")
    g("ds_read_b32 v67, v67")
    g("s_waitcnt lgkmcnt(1)")
    g(f"v_mov_b32 v19, s{sTag}")
    g(f"buffer_store_dwordx4 v[16:19], v64, {s(WS,4)}, 0 offen{o.pubflag}")
    g("s_waitcnt lgkmcnt(0)")
    g("v_cmp_lt_u32 vcc, 23, v67")
    g("s_cbranch_vccz L_noup")
    g.c("cells with 24 or more entries also publish entries 24..31")
    g(f"ds_read_b128 v[28:31], v61 offset:{PIMG+8192}")
    g("s_waitcnt lgkmcnt(0)")
    g(f"v_mov_b32 v31, s{sTag}")
    g("s_mov_b64 exec, vcc")
    g(f"buffer_store_dwordx4 v[28:31], v65, {s(WS,4)}, 0 offen sc1")
    g("s_mov_b64 exec, -1")
    g.label("L_noup")
    g.stamp(12)
    pf(pfs[1])
    g.c("---- waves 0,1: fragment gw = 2*chunk+wave of w_out (N-tile gw>>4, k-step gw&15), loads")
    g(f"s_cmp_ge_u32 s{sWV}, 2")
    g("s_cbranch_scc1 L_nowf")
    g(f"s_lshl1_add_u32 s{sPB}, s{sC}, s{sWV}")
    g(f"s_and_b32 s{sT}, s{sPB}, 15")
    g(f"s_lshl_b32 s{sT}, s{sT}, 13")
    g(f"s_lshr_b32 s{sOff}, s{sPB}, 4")
    g(f"s_lshl_b32 s{sOff}, s{sOff}, 6")
    g(f"s_add_u32 s{sT}, s{sT}, s{sOff}")
    g(f"v_lshrrev_b32 v60, 5, v{vLane}")
    g(f"v_lshlrev_b32 v60, 12, v60")
    g(f"v_and_b32 v61, 31, v{vLane}")
    g(f"v_lshl_add_u32 v60, v61, 1, v60")
    g(f"v_add_u32 v60, s{sT}, v60")
    for q in range(8):
        g(f"buffer_load_ushort v{32+q}, v60, {s(WO,4)}, 0 offen offset:{q*512}")
    g.label("L_nowf")
    vWb = 77
    g(f"v_lshrrev_b32 v60, 5, v{vLane}")
    g(f"v_bfe_u32 v61, v{vLane}, 2, 2")
    g(f"v_bfe_u32 v62, v{vLane}, 4, 1")
    g(f"v_and_b32 v63, 3, v{vLane}")
    g(f"v_lshlrev_b32 v{vWb}, 12, v62")
    g(f"v_lshl_add_u32 v{vWb}, v61, 9, v{vWb}")
    g(f"v_lshl_add_u32 v{vWb}, v60, 5, v{vWb}")
    g(f"v_lshl_add_u32 v{vWb}, v63, 3, v{vWb}")
    g(f"s_mul_i32 s{sT}, s{sB}, {ROWB}")
    g(f"s_add_u32 s{sT}, s{sT}, {WS_CELLS}")
    g(f"v_lshl_add_u32 v{CE}, v0, 4, s{sT}")
    g(f"s_lshl_b32 s{sT}, s{sB}, 13")
    g(f"s_add_u32 s{sT}, s{sT}, {WS_EXT}")
    g(f"v_lshl_add_u32 v{CE+1}, v0, 4, s{sT}")
    g(f"v_mul_u32_u24 v73, 2500, v68")
    for r in range(ACC, ACC + 76, 2):
        g(f"v_mov_b64 {v(r,2)}, 0")
    g.c("================ consumer: fetch this wave's entries until every tag matches")
    EN = [48, 49, 50, 52]
    g.stamp(13)
    g("s_mov_b64 s[6:7], -1")
    g(f"s_mov_b32 s{sC}, 0")
    if o.prewait:
        g("s_waitcnt vmcnt(0)")
    if o.prewait == 2:
        g("s_barrier")
    g.stamp(14)
    g.label("L_poll")
    g("s_mov_b64 exec, s[6:7]")
    g(f"buffer_load_dwordx4 v[48:51], v{CE}, {s(WS,4)}, 0 offen sc1")
    g("s_mov_b64 exec, -1")
    g("s_waitcnt vmcnt(0)")
    g(f"v_cmp_ne_u32 s[6:7], s{sTag}, v51")
    g("s_cmp_eq_u64 s[6:7], 0")
    g("s_cbranch_scc1 L_got")
    g(f"s_sleep {o.sleep}")
    g(f"s_add_u32 s{sC}, s{sC}, 1")
    g(f"s_cmp_lt_u32 s{sC}, 0x400000")
    g("s_cbranch_scc1 L_poll")
    g.label("L_got")
    g.stamp(1)
    for k in range(3):
        g(f"v_cmp_gt_u32 {s(sM[k],2)}, -2, v{EN[k]}")
    g(f"v_mov_b32 v{EN[3]}, -1")
    g(f"s_mov_b64 {s(sM[3],2)}, 0")
    g(f"s_mov_b32 s{sT}, 0x80808080")
    g(f"s_and_b32 s6, s{sM[2]}, s{sT}")
    g(f"s_and_b32 s7, s{sM[2]+1}, s{sT}")
    g("s_cmp_eq_u64 s[6:7], 0")
    g("s_cbranch_scc1 L_noext")
    g.c("rare: entries 24..31 of the full cells")
    g("s_lshr_b64 s[6:7], s[6:7], 7")
    g("s_mul_i32 s6, s6, 255")
    g("s_mul_i32 s7, s7, 255")
    g(f"v_mov_b32 v55, s{sTag}")
    g.label("L_poll2")
    g("s_mov_b64 exec, s[6:7]")
    g(f"buffer_load_dwordx4 v[52:55], v{CE+1}, {s(WS,4)}, 0 offen sc1")
    g("s_mov_b64 exec, -1")
    g("s_waitcnt vmcnt(0)")
    g(f"v_cmp_ne_u32 vcc, s{sTag}, v55")
    g("s_cbranch_vccz L_got2")
    g("s_sleep 1")
    g(f"s_add_u32 s{sC}, s{sC}, 1")
    g(f"s_cmp_lt_u32 s{sC}, 0x400000")
    g("s_cbranch_scc1 L_poll2")
    g.label("L_got2")
    g(f"v_cmp_gt_u32 {s(sM[3],2)}, -2, v{EN[3]}")
    g.label("L_noext")
    g(f"v_cmp_eq_u32 vcc, -2, v{EN[3]}")
    NK = [64, 65, 66, 67]
    for k in range(4):
        g(f"s_bcnt1_i32_b64 s{NK[k]}, {s(sM[k],2)}")
    g(f"s_add_u32 s65, s65, s64")
    g(f"s_add_u32 s66, s66, s65")
    g(f"s_add_u32 s{sCnt}, s67, s66")
    g(f"v_mov_b32 v61, s{sCnt}")
    g(f"v_mov_b32 v60, {POOL}")
    g("s_mov_b64 exec, 1")
    g("ds_add_rtn_u32 v61, v60, v61")
    g("s_mov_b64 exec, -1")
    PO = 62
    for k in range(4):
        g(f"v_mbcnt_lo_u32_b32 v{PO+k}, s{sM[k]}, 0")
        g(f"v_mbcnt_hi_u32_b32 v{PO+k}, s{sM[k]+1}, v{PO+k}")
        if k:
            g(f"v_add_u32 v{PO+k}, s{NK[k-1]}, v{PO+k}")
        g(f"v_lshrrev_b32 v{cE+k}, 20, v{EN[k]}")
        g(f"v_add_u32 v{cE+k}, v{cE+k}, v73")
        g(f"v_lshl_add_u32 v66, v{PO+k}, 2, s{sCand}")
        g(f"s_mov_b64 exec, {s(sM[k],2)}")
        g(f"ds_write_b32 v66, v{cE+k}")
        g("s_mov_b64 exec, -1")
        g(f"v_lshlrev_b32 v{cX+k}, 2, v{EN[k]}")
        g(f"v_and_b32 v{cX+k}, s{sMask}, v{cX+k}")
        g(f"v_and_b32 v{cM+k}, 63, v{EN[k]}")
    g(f"v_lshl_or_b32 v{vCG}, v45, 16, v44")
    g(f"v_lshl_or_b32 v{vCG+1}, v47, 16, v46")
    g(f"v_mov_b64 {v(ACC+76,2)}, 0")
    g(f"v_mov_b64 {v(ACC+78,2)}, 0")
    lab = g.newlab()
    g(f"s_cmp_ge_u32 s{sWV}, 2")
    g(f"s_cbranch_scc1 {lab}")
    for q in range(4):
        g(f"v_lshl_or_b32 v{56+q}, v{33+2*q}, 16, v{32+2*q}")
    g(f"s_lshl_b32 s{sT}, s{sN}, 1")
    g(f"s_add_u32 s{sT}, s{sT}, s{sPB}")
    g(f"s_lshl2_add_u32 s{sWfl}, s{sT}, {WS_FW}")
    g(f"s_lshl_b32 s{sT}, s{sT}, 10")
    g(f"s_add_u32 s{sT}, s{sT}, {WS_WF}")
    g(f"v_lshl_add_u32 v60, v{vLane}, 4, s{sT}")
    g(f"buffer_store_dwordx4 v[56:59], v60, {s(WS,4)}, 0 offen sc1")
    g.label(lab)
    g(f"s_mov_b32 s{sL}, 79")
    g("s_waitcnt lgkmcnt(0)")
    g(f"v_readfirstlane_b32 s{sPB}, v61")
    g("s_cbranch_vccnz L_defer")
    g(f"s_add_u32 s{sT}, s{sPB}, s{sCnt}")
    g(f"s_cmp_gt_u32 s{sT}, {POOLCAP}")
    g("s_cbranch_scc1 L_defer")
    for k in range(4):
        g(f"v_add_u32 v{PO+k}, s{sPB}, v{PO+k}")
        g(f"v_lshl_or_b32 v{cX+k}, v{PO+k}, 22, v{cX+k}")
    g("s_branch L_have")
    g.label("L_defer")
    g.c("this wave's cells overflowed (or the pool is full): rescan its edge range in later rounds")
    g(f"s_mov_b32 s{sL}, 0")
    g(f"s_mov_b32 s{sCnt}, 0")
    g(f"s_mov_b32 s{sPB}, 0")
    for k in range(4):
        g(f"s_mov_b64 {s(sM[k],2)}, 0")
    g("v_mov_b32 v58, 1")
    g(f"v_mov_b32 v59, {FLAG}")
    g("ds_write_b32 v59, v58")
    g("s_branch L_have")

    g.label("L_scan")
    g.c("================ fallback scan of this wave's 20000 dst entries (rare path)")
    g("s_barrier")
    BUF = 60
    g(f"s_mov_b32 s{sAddr}, s{sRing}")
    g(f"s_add_u32 s{sLimit}, s{sRing}, {128*8}")
    g(f"s_xor_b32 s{sNomatch}, s{sB}, 1")
    g.label("L_sloop")
    g(f"s_cmp_ge_u32 s{sL}, 79")
    g("s_cbranch_scc1 L_scan_done")
    g(f"s_mul_i32 s{sT}, s{sWV}, 20000")
    g(f"s_lshl_b32 s{sN}, s{sL}, 8")
    g(f"s_add_u32 s{sC}, s{sT}, s{sN}")
    g(f"v_lshlrev_b32 v56, 2, v{vLane}")
    g(f"v_add_u32 v56, s{sC}, v56")
    g(f"v_lshlrev_b32 v57, 2, v56")
    g(f"buffer_load_dwordx4 {v(BUF,4)}, v57, {s(DST,4)}, 0 offen")
    g("s_waitcnt vmcnt(0)")
    g(f"s_cmp_lg_u32 s{sL}, 78")
    g("s_cbranch_scc1 L_snotlast")
    g(f"s_mov_b32 exec_lo, 0xffffff00")
    for k in range(4):
        g(f"v_mov_b32 v{BUF+k}, s{sNomatch}")
    g("s_mov_b64 exec, -1")
    g.label("L_snotlast")
    for k in range(4):
        lab = g.newlab()
        g(f"s_cmp_gt_u32 s{sKskip}, {k}")
        g(f"s_cbranch_scc1 {lab}")
        g(f"v_cmp_eq_u32_sdwa vcc, v{BUF+k}, s{sB} src0_sel:BYTE_0 src1_sel:DWORD")
        g(f"s_cbranch_vccz {lab}")
        g(f"s_bcnt1_i32_b64 s{sT}, vcc")
        g(f"s_lshl3_add_u32 s{sN}, s{sT}, s{sAddr}")
        g(f"s_mov_b32 s{sKskip}, {k}")
        g(f"s_cmp_gt_u32 s{sN}, s{sLimit}")
        g(f"s_cbranch_scc1 L_ovf")
        g(f"v_mbcnt_lo_u32_b32 v58, vcc_lo, 0")
        g(f"v_mbcnt_hi_u32_b32 v58, vcc_hi, v58")
        g(f"v_lshl_add_u32 v58, v58, 3, s{sAddr}")
        g(f"v_add_u32 v59, {k}, v56")
        g("s_mov_b64 exec, vcc")
        g(f"ds_write2_b32 v58, v{BUF+k}, v59 offset0:0 offset1:1")
        g("s_mov_b64 exec, -1")
        g(f"s_mov_b32 s{sAddr}, s{sN}")
        g.label(lab)
    g(f"s_mov_b32 s{sKskip}, 0")
    g(f"s_add_u32 s{sL}, s{sL}, 1")
    g("s_branch L_sloop")
    g.label("L_ovf")
    g("v_mov_b32 v58, 1")
    g(f"v_mov_b32 v59, {FLAG}")
    g("ds_write_b32 v59, v58")
    g.label("L_scan_done")
    g(f"s_sub_u32 s{sCnt}, s{sAddr}, s{sRing}")
    g(f"s_lshr_b32 s{sCnt}, s{sCnt}, 3")
    g(f"s_lshl_b32 s{sPB}, s{sWV}, 7")
    g(f"v_lshlrev_b32 v58, 3, v{vLane}")
    g(f"v_add_u32 v58, s{sRing}, v58")
    g("s_waitcnt lgkmcnt(0)")
    for k in range(2):
        g(f"ds_read_b32 v{cM+k}, v58 offset:{512*k}")
        g(f"ds_read_b32 v{cE+k}, v58 offset:{512*k+4}")
        g(f"s_sub_u32 s{sT}, s{sCnt}, {64*k}")
        g(f"v_cmp_gt_i32 {s(sM[k],2)}, s{sT}, v{vLane}")
    for k in range(2, 4):
        g(f"s_mov_b64 {s(sM[k],2)}, 0")
        g(f"v_mov_b32 v{cM+k}, 0")
        g(f"v_mov_b32 v{cX+k}, 0")
    g(f"v_lshl_add_u32 v58, v{vLane}, 2, s{sCand}")
    g(f"v_add_u32 v59, s{sPB}, v{vLane}")
    g(f"v_lshlrev_b32 v59, 22, v59")
    g("s_waitcnt lgkmcnt(0)")
    for k in range(2):
        g(f"v_lshlrev_b32 v{cK+k}, 2, v{cE+k}")
        g(f"buffer_load_dword v{cX+k}, v{cK+k}, {s(SRC,4)}, 0 offen")
        g(f"v_bfe_u32 v{cM+k}, v{cM+k}, 8, 6")
        g(f"v_min_u32 v{cM+k}, 47, v{cM+k}")
        g(f"ds_write_b32 v58, v{cE+k} offset:{256*k}")
    g("s_waitcnt vmcnt(0)")
    for k in range(2):
        g(f"v_and_b32 v{cX+k}, 0x3fff, v{cX+k}")
        g(f"v_lshl_or_b32 v{cX+k}, v{cX+k}, 8, v59")
        g(f"v_add_u32 v59, {64<<22}, v59")
    g.label("L_have")
    g.c("================ histogram over (slot, src bin); payload DMA set-up")
    g("v_mov_b32 v58, 1")
    g(f"s_mov_b32 s{sT}, {HIST}")
    g(f"s_mov_b32 s{sN}, {DEG}")
    for k in range(4):
        g(f"v_bfe_u32 v{cK+k}, v{cX+k}, 8, 14")
        g(f"v_mul_u32_u24 v{cK+k}, 6711, v{cK+k}")
        g(f"v_lshrrev_b32 v{cK+k}, 22, v{cK+k}")
        g(f"v_min_u32 v{cK+k}, 15, v{cK+k}")
        g(f"v_lshl_add_u32 v{cK+k}, v{cK+k}, 2, s{sT}")
        g(f"v_lshl_add_u32 v{cK+k}, v{cM+k}, 6, v{cK+k}")
        g(f"v_lshl_add_u32 v{cM+k}, v{cM+k}, 2, s{sN}")
        g(f"s_mov_b64 exec, {s(sM[k],2)}")
        g(f"ds_add_rtn_u32 v{cR+k}, v{cK+k}, v58")
        g(f"ds_add_u32 v{cM+k}, v58")
        g("s_mov_b64 exec, -1")
    g(f"v_lshrrev_b32 v{vL2}, 1, v{vLane}")
    g(f"v_lshl_add_u32 v{vCand}, v{vL2}, 2, s{sCand}")
    EI = 40
    for q in range(4):
        g(f"ds_read_b32 v{EI+q}, v{vCand} offset:{128*q}")
    g(f"v_and_b32 v{vP4}, 1, v{vLane}")
    g(f"v_lshlrev_b32 v{vP16}, 4, v{vP4}")
    g(f"v_lshlrev_b32 v{vP4}, 2, v{vP4}")
    g(f"s_mov_b32 s{sDm}, s{sCnt}")
    g(f"s_mov_b32 s{sQ}, s{sPB}")
    g(f"v_lshl_add_u32 v56, v{vLane}, 2, s{sN}")
    g(f"v_mov_b32 v57, {FLAG}")
    g("s_waitcnt lgkmcnt(0)")

    def pay(q):
        lab = g.newlab()
        g(f"s_cmp_le_i32 s{sDm}, 0")
        g(f"s_cbranch_scc1 {lab}")
        g(f"v_lshl_add_u32 v44, v{EI+q}, 5, v{vP16}")
        g(f"v_lshl_add_u32 v45, v{EI+q}, 3, v{vP4}")
        g(f"v_cmp_gt_i32 vcc, s{sDm}, v{vL2}")
        g(f"s_lshl_b32 s{sOff}, s{sQ}, 5")
        g(f"s_add_u32 m0, s{sOff}, {PEA}")
        g("s_mov_b64 exec, vcc")
        g(f"buffer_load_dwordx4 v44, {s(EA,4)}, 0 offen{o.eald} lds")
        g(f"s_lshl3_add_u32 m0, s{sQ}, {PSH}")
        g(f"s_add_u32 s{sQ}, s{sQ}, 32")
        g(f"buffer_load_dword v45, {s(SH,4)}, 0 offen lds")
        g("s_mov_b64 exec, -1")
        g(f"s_sub_i32 s{sDm}, s{sDm}, 32")
        g.label(lab)
    sched = [int(x) for x in o.pay.split(",")]
    def stage(st):
        for q in range(4):
            if sched[q] == st:
                pay(q)
    stage(0)
    g("s_barrier")
    g.stamp(2)
    g.c("================ degrees, assignment, offsets")
    vDeg, vKey, vRank = 56, 57, 59
    g(f"ds_read_b32 v{vDeg}, v56")
    g(f"ds_read_b32 v57, v57")
    stage(1)
    g("s_waitcnt lgkmcnt(0)")
    g(f"v_readfirstlane_b32 s{sMore}, v57")
    g(f"s_cmp_lg_u32 s{sRound}, 0")
    g("s_cbranch_scc1 L_assigned")
    for i in range(4):
        for be in range(2):
            for t in range(2):
                g(f"ds_read_b64_tr_b16 {a_(aWR+8*i+4*be+2*t,2)}, v{vWb} offset:{WRIMG + t*2048 + (64*i+32*be)*2}")
    lab = g.newlab()
    g(f"s_and_b32 s{sT}, s{sB}, 63")
    g(f"s_or_b32 s{sT}, s{sT}, s{sWV}")
    g(f"s_cbranch_scc1 {lab}")
    g.c("the group's first workgroup has seen entries of all 64 members: all have read the epoch; advance it")
    g(f"s_lshl_b32 s{sT}, s{sB}, 1")
    g(f"v_mov_b32 v60, s{sT}")
    g(f"v_mov_b32 v61, s{sTag}")
    g("s_mov_b64 exec, 1")
    g(f"buffer_store_dword v61, v60, {s(WS,4)}, 0 offen sc1")
    g("s_mov_b64 exec, -1")
    g.label(lab)
    g(f"v_sub_u32 v{vKey}, 63, v{vLane}")
    g(f"v_lshl_add_u32 v{vKey}, v{vDeg}, 6, v{vKey}")
    g(f"v_mov_b32 v{vRank}, 0")
    masks = ["vcc", "s[4:5]", "s[6:7]"]
    for b0 in range(0, 40, 16):
        nb = min(16, 40 - b0)
        for j in range(nb):
            g(f"v_readlane_b32 s{sKey+j}, v{vKey}, {b0+j}")
        j = 0
        while j < nb:
            m = min(3, nb - j)
            for t in range(m):
                g(f"v_cmp_gt_u32 {masks[t]}, s{sKey+j+t}, v{vKey}")
            if m < 3:
                g.nop(3 - m)
            for t in range(m):
                g(f"v_addc_co_u32 v{vRank}, {masks[t]}, 0, v{vRank}, {masks[t]}")
            j += m
    g(f"s_sub_u32 s{sT}, 7, s{sWV}")
    for k in range(5):
        g(f"s_add_u32 s{sN}, s{sT if k & 1 else sWV}, {8*k}")
        g(f"v_cmp_eq_u32 vcc, s{sN}, v{vRank}")
        g(f"s_ff1_i32_b64 s{sSlot+k}, vcc")
    g.label("L_assigned")
    g(f"v_and_b32 v61, 15, v{vLane}")
    g(f"v_lshlrev_b32 v61, 2, v61")
    g(f"v_add_u32 v61, {HIST}, v61")
    AD, CN = 64, 70
    for k in range(5):
        g(f"s_lshl_b32 s{sKey+k}, s{sSlot+k}, 6")
        g(f"v_add_u32 v{AD+k}, s{sKey+k}, v61")
        g(f"ds_read_b32 v{CN+k}, v{AD+k}")
    for k in range(5):
        g(f"v_readlane_b32 s{sKey+8+k}, v{vDeg}, s{sSlot+k}")
    g(f"s_mul_i32 s{sBase}, s{sWV}, {MREG}")
    g(f"s_add_u32 s{sRem}, s{sKey+8}, s{sKey+9}")
    for k in range(2, 5):
        g(f"s_add_u32 s{sRem}, s{sRem}, s{sKey+8+k}")
    g("s_waitcnt lgkmcnt(0)")
    g(f"v_add3_u32 v60, v{CN}, v{CN+1}, v{CN+2}")
    g(f"v_add3_u32 v60, v60, v{CN+3}, v{CN+4}")
    g("v_mov_b32 v61, v60")
    for sh_ in (1, 2, 4, 8):
        g.nop(2)
        g(f"v_add_u32_dpp v61, v61, v61 row_shr:{sh_} row_mask:0xf bank_mask:0xf bound_ctrl:1")
    g("v_sub_u32 v61, v61, v60")
    g(f"v_add_u32 v61, s{sBase}, v61")
    for k in range(5):
        g(f"v_lshl_add_u32 v{75+k}, v61, 8, {16*k}")
        g(f"ds_write_b32 v{AD+k}, v{75+k} offset:{OFF-HIST}")
        if k < 4:
            g(f"v_add_u32 v61, v61, v{CN+k}")
    stage(2)
    g("s_waitcnt lgkmcnt(0)")
    g("s_barrier")
    g.stamp(8)
    g.c("================ placement of (pool index | src | acc offset); re-zero HIST/FLAG")
    for k in range(4):
        g(f"ds_read_b32 v{cM+k}, v{cK+k} offset:{OFF-HIST}")
    g("v_mov_b32 v60, 0")
    g("v_mov_b32 v61, 0")
    g(f"v_lshlrev_b32 v64, 3, v0")
    g(f"v_add_u32 v64, {HIST}, v64")
    g("ds_write_b64 v64, v[60:61]")
    g(f"v_mov_b32 v64, {FLAG}")
    g("ds_write_b32 v64, v60")
    g(f"s_mov_b32 s{sT}, {META}")
    g(f"s_movk_i32 s{sN}, 255")
    g("s_waitcnt lgkmcnt(2)")
    for k in range(4):
        g(f"v_lshrrev_b32 v{cK+k}, 8, v{cM+k}")
        g(f"v_add_u32 v{cK+k}, v{cK+k}, v{cR+k}")
        g(f"v_and_or_b32 v{cM+k}, v{cM+k}, s{sN}, v{cX+k}")
        g(f"v_lshl_add_u32 v{cK+k}, v{cK+k}, 2, s{sT}")
        g(f"s_mov_b64 exec, {s(sM[k],2)}")
        g(f"ds_write_b32 v{cK+k}, v{cM+k}")
        g("s_mov_b64 exec, -1")
    stage(3)
    g.c("lists longer than 128 candidates (rare): fetch the rest")
    g.label("L_paymore")
    g(f"s_cmp_le_i32 s{sDm}, 0")
    g("s_cbranch_scc1 L_paydone")
    g(f"ds_read_b32 v{EI}, v{vCand} offset:512")
    g(f"v_add_u32 v{vCand}, 128, v{vCand}")
    g("s_waitcnt lgkmcnt(0)")
    pay(0)
    g("s_branch L_paymore")
    g.label("L_paydone")
    RW, D, B, EA1, EA2, AC, M4, I1, I2, SHO = 16, 32, 48, 56, 60, 32, 68, 72, 73, 64
    vB1, vB2, vBS, vM1, vM2 = 74, 75, 76, 77, 78
    g(f"s_lshl_b32 s{sBase}, s{sBase}, 2")
    g(f"s_add_u32 s{sBase}, s{sBase}, {META}")
    g(f"s_and_b32 s{sN}, s{sB}, 192")
    g(f"s_lshl_b32 s{sN}, s{sN}, 1")
    g(f"s_lshl4_add_u32 s{sN}, s{sWV}, s{sN}")
    g(f"s_lshl2_add_u32 s{sT}, s{sN}, {WS_FW}")
    g(f"v_and_b32 v{vOwner}, 15, v{vLane}")
    g(f"v_lshl_add_u32 v{vOwner}, v{vOwner}, 2, s{sT}")
    g(f"s_xor_b32 s{sT}, s{sTag}, 1")
    g(f"v_mov_b32 v79, s{sT}")
    g(f"v_mov_b32 v{vMetaA}, s{sBase}")
    g(f"v_and_b32 v62, 3, v{vLane}")
    g(f"v_lshl_add_u32 v{vM1}, v62, 2, s{sBase}")
    g(f"v_bfe_u32 v62, v{vLane}, 2, 2")
    g(f"v_lshl_add_u32 v{vM2}, v62, 2, s{sBase}")
    g(f"v_bfe_u32 v63, v{vLane}, 4, 1")
    g(f"v_lshlrev_b32 v63, 4, v63")
    g(f"v_add_u32 v63, {PEA}, v63")
    g(f"v_mov_b32 v65, {PSH}")
    g(f"v_mov_b32 v62, {ZERO}")
    g(f"v_cmp_ne_u32 vcc, 0, v{vMul1}")
    g(f"v_cmp_ne_u32 s[4:5], 0, v{vMul2}")
    g(f"v_cmp_ne_u32 s[6:7], 0, v{vMulS}")
    g(f"v_cndmask_b32 v{vB1}, v62, v63, vcc")
    g(f"v_cndmask_b32 v{vB2}, v62, v63, s[4:5]")
    g(f"v_cndmask_b32 v{vBS}, v62, v65, s[6:7]")
    g("s_waitcnt lgkmcnt(0)")
    g("s_barrier")
    g.stamp(3)

    def issue(sm, r):
        g(f"s_and_b32 s{sOff}, s{sm+r}, s{sMask}")
        g(f"s_add_u32 m0, s{sRing}, {r*2048}")
        g(f"s_lshl_b32 s{sOff}, s{sOff}, 3")
        g(f"buffer_load_dwordx4 v{vDma0}, {s(X,4)}, s{sOff} offen lds")
        g(f"buffer_load_dwordx4 v{vDma1}, {s(X,4)}, s{sOff} offen offset:1024 lds")

    def opaddr():
        g(f"v_lshrrev_b32 v{I1}, 22, v{I1}")
        g(f"v_lshrrev_b32 v{I2}, 22, v{I2}")
        g(f"v_mad_u32_u24 v{vEa1}, v{I1}, v{vMul1}, v{vB1}")
        g(f"v_mad_u32_u24 v{vEa2}, v{I1}, v{vMul2}, v{vB2}")
        g(f"v_mad_u32_u24 v{vSh}, v{I2}, v{vMulS}, v{vBS}")

    g.c("================ first rows, then wait for everybody's payload")
    g(f"ds_read_b128 {v(M4,4)}, v{vMetaA}")
    g(f"ds_read_b32 v{I1}, v{vM1}")
    g(f"ds_read_b32 v{I2}, v{vM2}")
    g(f"s_cmp_lt_u32 s{sRem}, {R}")
    g("s_cbranch_scc1 L_short")
    g("s_waitcnt lgkmcnt(2)")
    for r in range(4):
        g(f"v_readfirstlane_b32 s{sMa+r}, v{M4+r}")
    for r in range(R):
        issue(sMa, r)
    g(f"s_waitcnt vmcnt({2*R})")
    g("s_branch L_go")
    g.label("L_short")
    g("s_waitcnt vmcnt(0) lgkmcnt(0)")
    for r in range(4):
        g(f"v_readfirstlane_b32 s{sMa+r}, v{M4+r}")
    for r in range(R - 1):
        g(f"s_cmp_le_u32 s{sRem}, {r}")
        g("s_cbranch_scc1 L_go")
        issue(sMa, r)
    g.label("L_go")
    lab = g.newlab()
    g(f"s_cmp_ge_u32 s{sWV}, 2")
    g(f"s_cbranch_scc1 {lab}")
    g(f"s_cmp_lg_u32 s{sRound}, 0")
    g(f"s_cbranch_scc1 {lab}")
    g.c("this wave's w_out fragment has been acknowledged: publish its flag (one extra wait step below)")
    g(f"v_mov_b32 v62, s{sWfl}")
    g(f"v_mov_b32 v63, s{sTag}")
    g("s_mov_b64 exec, 1")
    g(f"buffer_store_dword v63, v62, {s(WS,4)}, 0 offen sc1")
    g("s_mov_b64 exec, -1")
    g.label(lab)
    g("s_waitcnt lgkmcnt(0)")
    opaddr()
    g("s_barrier")
    g.stamp(9)
    g.cstamp(18)
    g(f"s_cmp_eq_u32 s{sRem}, 0")
    g("s_cbranch_scc1 L_round_done")
    g.c("================ sweep: groups of 4 edges")
    g.label("L_group")
    lab = g.newlab()
    g(f"s_cmp_gt_u32 s{sRem}, 8")
    g(f"s_cbranch_scc1 {lab}")
    g(f"buffer_load_dword v79, v{vOwner}, {s(WS,4)}, 0 offen sc1")
    g.label(lab)
    g(f"ds_read_b64 {v(SHO,2)}, v{vSh}")
    g(f"ds_read_b128 {v(EA1,4)}, v{vEa1}")
    g(f"ds_read_b128 {v(EA2,4)}, v{vEa2}")
    g(f"ds_read_b128 {v(M4,4)}, v{vMetaA} offset:16")
    g(f"ds_read_b32 v{I1}, v{vM1} offset:16")
    g(f"ds_read_b32 v{I2}, v{vM2} offset:16")
    g(f"v_add_u32 v{vMetaA}, 16, v{vMetaA}")
    g(f"v_add_u32 v{vM1}, 16, v{vM1}")
    g(f"v_add_u32 v{vM2}, 16, v{vM2}")
    g("s_waitcnt lgkmcnt(0)")
    g(f"v_mfma_f32_16x16x16_bf16 {v(AC,4)}, {v(vCG,2)}, {v(SHO,2)}, 0")
    for i in range(4):
        g(f"v_mfma_f32_16x16x32_bf16 {v(RW+4*i,4)}, {v(EA1,4)}, {a_(aWR+8*i,4)}, 0")
    for i in range(4):
        g(f"v_mfma_f32_16x16x32_bf16 {v(RW+4*i,4)}, {v(EA2,4)}, {a_(aWR+8*i+4,4)}, {v(RW+4*i,4)}")
    for r in range(4):
        g(f"v_readfirstlane_b32 s{sMb+r}, v{M4+r}")
    g(f"v_cvt_pk_bf16_f32 v{SHO}, v{AC}, v{AC+1}")
    g(f"v_cvt_pk_bf16_f32 v{SHO+1}, v{AC+2}, v{AC+3}")
    opaddr()
    for r in range(4):
        g.c(f"-- edge {r}")
        l1 = g.newlab()
        g(f"s_cmp_ge_u32 s{sRem}, {R}")
        g(f"s_cbranch_scc1 {l1}")
        g("s_waitcnt vmcnt(0)")
        g.label(l1)
        g(f"s_waitcnt vmcnt({2*(R-1)})")
        for i in range(4):
            g(f"ds_read_b64_tr_b16 {v(B+2*i,2)}, v{vTr} offset:{r*2048+i*256}")
        l2 = g.newlab()
        if R == 4:
            g("s_waitcnt lgkmcnt(0)")
        g(f"s_cmp_le_u32 s{sRem}, {R}")
        g(f"s_cbranch_scc1 {l2}")
        issue(sMb if r + R >= 4 else sMa, (r + R) % 4)
        g.label(l2)
        if R < 4:
            g("s_waitcnt lgkmcnt(0)")
        for i in range(4):
            g(f"v_mfma_f32_4x4x4_16b_bf16 {v(D+4*i,4)}, {v(SHO,2)}, {v(B+2*i,2)}, 0 cbsz:4 abid:{r}")
        g.nop(1)
        g(f"s_set_gpr_idx_on s{sMa+r}, gpr_idx(SRC2,DST)")
        x = r & 1
        for i in range(4):
            rw = RW + 4 * i + (r & ~1)
            for wp in range(2):
                g(f"v_pk_fma_f32 {v(acc(0,i,2*wp),2)}, {v(D+4*i+2*wp,2)}, {v(rw,2)}, {v(acc(0,i,2*wp),2)} op_sel:[0,{x},0] op_sel_hi:[1,{x},1]")
        g("s_set_gpr_idx_off")
        g(f"s_mov_b32 s{sMa+r}, s{sMb+r}")
        g(f"s_sub_u32 s{sRem}, s{sRem}, 1")
        g(f"s_cmp_eq_u32 s{sRem}, 0")
        g(f"s_cbranch_scc{1 if r < 3 else 0} {'L_round_done' if r < 3 else 'L_group'}")
    g.label("L_round_done")
    g(f"s_add_u32 s{sRound}, s{sRound}, 1")
    g(f"s_cmp_lg_u32 s{sMore}, 0")
    g("s_cbranch_scc1 L_scan")
    g.stamp(4)
    g.cstamp(19)

    g.c("================ w_out fragments (published ~20 us ago; the flags are checked all the same) -> AGPRs")
    g(f"s_and_b32 s{sN}, s{sB}, 192")
    g(f"s_lshl_b32 s{sN}, s{sN}, 1")
    g(f"s_lshl4_add_u32 s{sN}, s{sWV}, s{sN}")
    g(f"s_lshl_b32 s{sT}, s{sN}, 10")
    g(f"s_add_u32 s{sT}, s{sT}, {WS_WF}")
    g(f"v_lshl_add_u32 v18, v{vLane}, 4, s{sT}")
    g(f"s_mov_b32 s{sC}, 0")
    g.label("L_pollw")
    g("s_waitcnt vmcnt(0)")
    g(f"v_cmp_ne_u32 vcc, s{sTag}, v79")
    g("s_cbranch_vccz L_gotw")
    g(f"buffer_load_dword v79, v{vOwner}, {s(WS,4)}, 0 offen sc1")
    g("s_sleep 1")
    g(f"s_add_u32 s{sC}, s{sC}, 1")
    g(f"s_cmp_lt_u32 s{sC}, 0x400000")
    g("s_cbranch_scc1 L_pollw")
    g.label("L_gotw")
    for ks in range(16):
        g(f"buffer_load_dwordx4 {a_(aW+4*ks,4)}, v18, {s(WS,4)}, 0 offen offset:{(ks%4)*1024} sc1")
        if ks % 4 == 3:
            g(f"v_add_u32 v18, 4096, v18")
    g.c("================ agg image -> LDS")
    g(f"v_mul_u32_u24 v16, 320, v{vLane}")
    g(f"v_lshrrev_b32 v17, 2, v{vLane}")
    g(f"v_lshl_add_u32 v16, v17, 3, v16")
    for k in range(5):
        g(f"s_lshl_b32 s{sT}, s{sSlot+k}, 3")
        g(f"v_add_u32 v{17+k}, s{sT}, v16")
    t = 0
    for k in range(5):
        for i in range(4):
            p = 24 + 2 * t
            t += 1
            g(f"v_cvt_pk_bf16_f32 v{p}, v{acc(k,i,0)}, v{acc(k,i,1)}")
            g(f"v_cvt_pk_bf16_f32 v{p+1}, v{acc(k,i,2)}, v{acc(k,i,3)}")
    vG0, vG1, vO, vSw, vSr = 2, 3, 4, 5, 6
    g(f"v_lshrrev_b32 v70, 5, v{vLane}")
    g(f"v_mul_u32_u24 v71, 2576, v70")
    g(f"v_bfe_u32 v72, v{vLane}, 2, 2")
    g(f"v_mul_u32_u24 v74, 320, v72")
    g(f"v_bfe_u32 v73, v{vLane}, 4, 1")
    g(f"v_lshl_add_u32 v71, v73, 5, v71")
    g(f"v_and_b32 v73, 3, v{vLane}")
    g(f"v_lshl_add_u32 v71, v73, 3, v71")
    g(f"v_add_u32 v{vG0}, v71, v74")
    g(f"v_add_u32 v{vG1}, {8*5152}, v{vG0}")
    g(f"s_mul_i32 s{sT}, s{sWV}, 5120")
    g(f"s_add_u32 s{sT}, s{sT}, {STG}")
    g(f"v_and_b32 v74, 31, v{vLane}")
    g(f"v_mul_u32_u24 v74, 80, v74")
    g(f"v_lshl_add_u32 v74, v70, 3, v74")
    g(f"v_add_u32 v{vSw}, s{sT}, v74")
    g(f"v_lshrrev_b32 v74, 2, v{vLane}")
    g(f"v_mul_u32_u24 v74, 80, v74")
    g(f"v_lshl_add_u32 v74, v73, 4, v74")
    g(f"v_add_u32 v{vSr}, s{sT}, v74")
    g(f"v_lshrrev_b32 v74, 4, v{vLane}")
    g(f"v_lshlrev_b32 v74, 19, v74")
    g(f"v_lshl_add_u32 v74, v72, 9, v74")
    g(f"v_lshl_add_u32 v74, v73, 4, v74")
    g(f"s_lshl_b32 s{sT}, s{sB}, 11")
    g(f"s_lshl_b32 s{sN}, s{sWV}, 6")
    g(f"s_add_u32 s{sT}, s{sT}, s{sN}")
    g(f"v_add_u32 v{vO}, s{sT}, v74")
    g("s_barrier")
    g.stamp(5)
    t = 0
    for k in range(5):
        for i in range(4):
            p = 24 + 2 * t
            t += 1
            g(f"ds_write_b64 v{17+k}, {v(p,2)} offset:{i*20608}")
    g("s_waitcnt lgkmcnt(0)")
    g("s_barrier")
    g.stamp(6)
    g.cstamp(16)
    g.c("================ GEMM: out^T tile = W^T (A) x agg^T (B)")
    FB = [16, 32]
    DD = [48, 64]
    PK = [80, 88]
    OB = [96, 104]
    chunks = [(t, c) for t in range(5) for c in range(4)]

    def rd(n):
        t, c = chunks[n]
        for kk in range(4):
            ks = 4 * c + kk
            base = vG0 if ks < 8 else vG1
            for tt in range(2):
                g(f"ds_read_b64_tr_b16 {v(FB[n%2]+4*kk+2*tt,2)}, v{base} offset:{(ks%8)*5152 + tt*1288 + t*64}")

    def epi1(t):
        d, p, ob = DD[t % 2], PK[t % 2], OB[t % 2]
        for q in range(8):
            g(f"v_cvt_pk_bf16_f32 v{p+q}, v{d+2*q}, v{d+2*q+1}")
        for a in range(4):
            g(f"ds_write_b64 v{vSw}, {v(p+2*a,2)} offset:{2560*(t%2)+16*a}")
        for hf in range(2):
            g(f"ds_read_b128 {v(ob+4*hf,4)}, v{vSr} offset:{2560*(t%2)+1280*hf}")

    def epi2(t):
        ob = OB[t % 2]
        for hf in range(2):
            if not (o.nostore and t < 4):
                g(f"buffer_store_dwordx4 {v(ob+4*hf,4)}, v{vO}, {s(OUT,4)}, 0 offen{o.stflag}")
            g(f"v_add_u32 v{vO}, {4<<19}, v{vO}")
    PD = o.gdist
    NBUF = 8
    if o.gpair:
        order = [(t0 + x, ks) for t0 in (0, 2) for ks in range(16) for x in range(2)]
        order += [(4, ks) for ks in range(16)] if o.gpair == 1 else [(4 + (ks & 1), ks) for ks in range(16)]
    else:
        order = [(t, ks) for t in range(5) for ks in range(16)]
    DT = [48, 64, 112, 128, 48, 64]
    PKT = [80, 88, 80, 88, 80]
    OBT = [96, 104, 96, 104, 96]

    def rdj(j):
        t, ks = order[j]
        t = min(t, 4)
        base = vG0 if ks < 8 else vG1
        for tt in range(2):
            g(f"ds_read_b64_tr_b16 {v(16+4*(j%NBUF)+2*tt,2)}, v{base} offset:{(ks%8)*5152 + tt*1288 + t*64}")
    lastj = {}
    for j, (t, ks) in enumerate(order):
        lastj[min(t, 4)] = j
    work = {}
    free = 0
    for t in range(4):
        st_ = max(lastj[t] + 4, free)
        d, p, ob, so = DT[t], PKT[t], OBT[t], 2560 * (t % 2)
        for a_i in range(4):
            work.setdefault(st_ + a_i, []).extend([
                f"v_cvt_pk_bf16_f32 v{p+2*a_i}, v{d+4*a_i}, v{d+4*a_i+1}",
                f"v_cvt_pk_bf16_f32 v{p+2*a_i+1}, v{d+4*a_i+2}, v{d+4*a_i+3}",
                f"ds_write_b64 v{vSw}, {v(p+2*a_i,2)} offset:{so+16*a_i}"])
        for hf in range(2):
            work.setdefault(st_ + 4, []).append(f"ds_read_b128 {v(ob+4*hf,4)}, v{vSr} offset:{so+1280*hf}")
        work.setdefault(st_ + 4 + PD + 1, []).append(("store", t))
        free = st_ + 5
    seen = set()
    for j in range(PD):
        rdj(j)
    g("s_waitcnt vmcnt(0)")

    def dowork(j):
        for w in work.get(j, []):
            if isinstance(w, tuple):
                ob = OBT[w[1]]
                for hf in range(2):
                    g(f"buffer_store_dwordx4 {v(ob+4*hf,4)}, v{vO}, {s(OUT,4)}, 0 offen{o.stflag}")
                    g(f"v_add_u32 v{vO}, {4<<19}, v{vO}")
            else:
                g(w)
    for j, (t, ks) in enumerate(order):
        g(f"s_waitcnt lgkmcnt({2*min(PD-1, 79-j)})")
        cin = v(DT[t], 16) if t in seen else "0"
        seen.add(t)
        g(f"v_mfma_f32_32x32x16_bf16 {v(DT[t],16)}, {a_(aW+4*ks,4)}, {v(16+4*(j%NBUF),4)}, {cin}")
        if j + PD < 80:
            rdj(j + PD)
        dowork(j)
    g("s_waitcnt lgkmcnt(0)")
    for j in sorted(work):
        if j >= 80:
            assert all(isinstance(w, tuple) for w in work[j])
            dowork(j)
    g.nop(12)
    if o.gpair == 2:
        for q in range(0, 16, 2):
            g(f"v_pk_add_f32 {v(48+q,2)}, {v(48+q,2)}, {v(64+q,2)}")
    epi1(4)
    g("s_waitcnt lgkmcnt(0)")
    epi2(4)
    if o.stamps:
        g.stamp(10)
        g.cstamp(17)
        g("s_waitcnt vmcnt(0)")
        g.stamp(7)
        g(f"s_lshl_b32 s{sT}, s{sB}, 3")
        g(f"s_add_u32 s{sT}, s{sT}, s{sWV}")
        g(f"s_lshl_b32 s{sT}, s{sT}, 8")
        g(f"s_add_u32 s{sT}, s{sT}, {WS_STAMP}")
        g(f"v_lshlrev_b32 v16, 2, v{vLane}")
        g(f"v_add_u32 v16, s{sT}, v16")
        g(f"buffer_store_dword v{vStamp}, v16, {s(WS,4)}, 0 offen")
    if o.amp:
        i0, i1 = [int(x) for x in o.amp.split(",")]
        g(f"v_readlane_b32 s60, v{vStamp}, {i0}")
        g(f"v_readlane_b32 s61, v{vStamp}, {i1}")
        g(f"v_readlane_b32 s62, v{vStamp}, 7")
        g("s_sub_u32 s61, s61, s60")
        g("s_lshl_b32 s61, s61, 2")
        g.label("L_amp")
        g("s_memrealtime s[4:5]")
        g("s_waitcnt lgkmcnt(0)")
        g("s_sub_u32 s4, s4, s62")
        g("s_cmp_lt_u32 s4, s61")
        g("s_cbranch_scc1 L_amp")
    g.label("L_end")
    g("s_endpgm")
    return g.L


HEADER = open("/code/" + NAME + ".s.ref").read().split("; Override launch")[0]


def kd(name, vg, sg, acc):
    return f""".section .rodata,"a"
.p2align 6
.amdhsa_kernel {name}
  .amdhsa_next_free_vgpr {vg}
  .amdhsa_next_free_sgpr {sg}
  .amdhsa_accum_offset {acc}
  .amdhsa_group_segment_fixed_size 0
  .amdhsa_kernarg_size 88
  .amdhsa_user_sgpr_count 2
  .amdhsa_user_sgpr_kernarg_segment_ptr 1
  .amdhsa_system_sgpr_workgroup_id_x 1
  .amdhsa_float_denorm_mode_32 3
.end_amdhsa_kernel
"""


def emit(o):
    out = HEADER
    out += f"; @launch grid=(256,1,1) block=(512,1,1) lds={LDS_BYTES}\n"
    out += "; generated by dev/gen.py\n"
    out += '.amdgcn_target "amdgcn-amd-amdhsa--gfx950"\n.text\n'
    out += f".globl {NAME}_kernel\n.p2align 8\n.type {NAME}_kernel,@function\n{NAME}_kernel:\n"
    out += "\n".join(build(o)) + "\n"
    out += kd(NAME + "_kernel", 256, 102, 160)
    open(o.o, "w").write(out)


if __name__ == "__main__":
    ap = argparse.ArgumentParser()
    ap.add_argument("-o", default="/code/" + NAME + ".s")
    ap.add_argument("--stamps", action="store_true")
    ap.add_argument("--pf", default="0,0,0")
    ap.add_argument("--k1ld", default="")
    ap.add_argument("--eald", default="")
    ap.add_argument("--stflag", default=" sc1")
    ap.add_argument("--R", type=int, default=3)
    ap.add_argument("--nostore", action="store_true")
    ap.add_argument("--gdist", type=int, default=6)
    ap.add_argument("--gpair", type=int, default=0)
    ap.add_argument("--pay", default="0,1,2,3")
    ap.add_argument("--codepf", type=int, default=0)
    ap.add_argument("--prewait", type=int, default=1)
    ap.add_argument("--probe", type=int, default=0)
    ap.add_argument("--sleep", type=int, default=4)
    ap.add_argument("--tlb", type=int, default=0)
    ap.add_argument("--shpf", type=int, default=5)
    ap.add_argument("--diagsleep", type=int, default=0)
    ap.add_argument("--pubflag", default=" sc1")
    ap.add_argument("--amp", default="", help="diagnostic: spin 4x the time between two stamps at the end")
    emit(ap.parse_args())
```

```python
import sys, argparse

NAME = "standalone__tensor_product_equiv_mace__graph"
N, E = 10000, 160000

RING = 0
POOLCAP = 1024
PEA = 65536
PSH = PEA + POOLCAP * 32
META = PSH + POOLCAP * 8
ZERO = META + (POOLCAP + 64) * 4
FLAG = ZERO + 16
PCNT = FLAG + 16
IMGH = 41472
IMG0 = PCNT + 256
HIST = IMG0
DEG = HIST + 60 * 64
POOL = HIST + 59 * 64
OFF = HIST + 4096
CAND = OFF + 4096
PIMG = 0
WRIMG = 32768
STG = IMGH
LDS_BYTES = 153600
assert IMG0 + IMGH <= LDS_BYTES and META % 16 == 0 and HIST % 16 == 0 and STG % 16 == 0
WS_EP = 0
WS_FW = 4096
WS_WF = 1 << 20
WS_STAMP = 4 << 20
WS_CELLS = 8 << 20
ROWB = 64 * 128 + 128
WS_EXT = 16 << 20
WS_BYTES = 20 << 20
assert WS_CELLS + 256 * ROWB <= WS_EXT

sB, sWV = 2, 3
X, SRC, DST, SH, EA, OUT, WS = 8, 12, 16, 20, 24, 28, 32
sM = [36, 38, 40, 42]
sPB, sQ, sDm, sNomatch = 44, 45, 46, 47
sTag, sCand, sPM, sWfl, sWld = 48, 49, 50, 83, 81
WO, WR, CG = 88, 92, 96
sKskip, sT, sN, sC = 52, 53, 54, 55
sSlot = 56
sBase, sRem, sRing = 61, 62, 63
sMa, sMb = 64, 68
sOff, sRound, sMore, sCnt, sL, sMask = 76, 77, 78, 79, 80, 82
sKey = 84
sAddr, sLimit = 64, 65

vLane, vDma0, vDma1, vTr, vEa1, vEa2, vMul1, vMul2, vSh, vMulS, vOwner, vStamp, vMetaA = range(1, 14)
ACC = 80
def acc(k, i, w): return ACC + 16 * k + 4 * i + w
aWR, aW = 0, 32
vCG = 14


class Gen:
    def __init__(self, stamps=False):
        self.L = []
        self.stamps = stamps
        self.nlab = 0

    def __call__(self, s):
        self.L.append("    " + s)

    def label(self, s):
        self.L.append(s + ":")

    def c(self, s):
        self.L.append("    ; " + s)

    def newlab(self, p="L"):
        self.nlab += 1
        return f"{p}_{self.nlab}"

    def nop(self, n):
        while n > 0:
            k = min(n, 16)
            self(f"s_nop {k-1}")
            n -= k

    def cstamp(self, i):
        if not self.stamps:
            return
        self(f"s_memtime s[4:5]")
        self("s_waitcnt lgkmcnt(0)")
        self(f"v_writelane_b32 v{vStamp}, s4, {i}")

    def stamp(self, i):
        if not self.stamps:
            return
        self(f"s_memrealtime s[4:5]")
        self("s_waitcnt lgkmcnt(0)")
        self(f"v_writelane_b32 v{vStamp}, s4, {i}")


def srd(g, d, ptr, nbytes):
    g(f"s_mov_b32 s{d}, s{ptr}")
    g(f"s_mov_b32 s{d+1}, s{ptr+1}")
    g(f"s_mov_b32 s{d+2}, {nbytes}")
    g(f"s_mov_b32 s{d+3}, 0x00020000")


def v(a, n=1):
    return f"v{a}" if n == 1 else f"v[{a}:{a+n-1}]"


def a_(a, n=1):
    return f"a{a}" if n == 1 else f"a[{a}:{a+n-1}]"


def s(a, n=1):
    return f"s{a}" if n == 1 else f"s[{a}:{a+n-1}]"


def build(o):
    g = Gen(o.stamps)
    R = o.R
    cM, cE, cX, cK, cR = 16, 20, 24, 28, 32
    vL2, vP16, vP4, vCand = 36, 37, 38, 39
    pfs = [int(x) for x in o.pf.split(",")]
    vPf = 79

    def pf(n):
        for _ in range(n):
            g(f"buffer_load_dwordx4 {v(ACC+76,4)}, v{vPf}, {s(X,4)}, 0 offen")
            g(f"v_add_u32 v{vPf}, {256*1024}, v{vPf}")
    g(f"s_cmp_ge_u32 s{sB}, 256")
    g("s_cbranch_scc1 L_end")
    g("s_load_dwordx2 s[84:85], s[0:1], 80")
    g("s_load_dwordx16 s[64:79], s[0:1], 0")
    g("s_load_dwordx2 s[80:81], s[0:1], 64")
    g(f"v_and_b32 v{vLane}, 63, v0")
    g(f"v_lshrrev_b32 v60, 6, v0")
    g(f"v_mov_b32 v{vStamp}, 0")
    g(f"v_readfirstlane_b32 s{sWV}, v60")
    g(f"s_and_b32 s{sC}, s{sB}, 63")
    g(f"s_and_b32 s{sN}, s{sB}, 192")
    g(f"s_mul_i32 s{sT}, s{sC}, 10000")
    g(f"v_lshlrev_b32 v63, 4, v0")
    g(f"v_add_u32 v60, s{sT}, v63")
    g(f"s_add_u32 s{sT}, s{sT}, 8192")
    g(f"v_lshl_add_u32 v61, v0, 2, s{sT}")
    g(f"s_lshl_b32 s{sT}, s{sN}, 1")
    g(f"v_mov_b32 v62, s{sT}")
    g("s_waitcnt lgkmcnt(0)")
    pD, pS, pH = 16, 24, 32
    srd(g, DST, 68, E * 4)
    g(f"buffer_load_dwordx4 {v(pD,4)}, v60, {s(DST,4)}, 0 offen{o.k1ld}")
    g(f"buffer_load_dword v{pD+4}, v61, {s(DST,4)}, 0 offen{o.k1ld}")
    srd(g, SRC, 66, E * 4)
    g(f"buffer_load_dwordx4 {v(pS,4)}, v60, {s(SRC,4)}, 0 offen{o.k1ld}")
    g(f"buffer_load_dword v{pS+4}, v61, {s(SRC,4)}, 0 offen{o.k1ld}")
    srd(g, WS, 84, WS_BYTES)
    g(f"buffer_load_dword v42, v62, {s(WS,4)}, 0 offen sc1")
    srd(g, SH, 70, E * 8)
    g.stamp(0)
    g.c("---- LDS init: entry image = empty, counters, HIST, ZERO block, FLAG")
    for k in range(4):
        g(f"v_mov_b32 v{72+k}, -1")
    for i in range(2):
        g(f"ds_write_b128 v63, v[72:75] offset:{PIMG+8192*i}")
    g("v_mov_b32 v68, 0")
    g("v_mov_b32 v69, 0")
    g(f"v_lshlrev_b32 v60, 3, v0")
    g(f"v_add_u32 v60, {HIST}, v60")
    g("ds_write_b64 v60, v[68:69]")
    g(f"v_min_u32 v60, 35, v{vLane}")
    g(f"v_lshlrev_b32 v60, 3, v60")
    g(f"v_add_u32 v60, {ZERO}, v60")
    g("ds_write_b64 v60, v[68:69]")
    srd(g, X, 64, N * 2048)
    srd(g, EA, 72, E * 32)
    srd(g, OUT, 80, N * 2048)
    srd(g, CG, 74, 128)
    srd(g, WR, 76, 8192)
    srd(g, WO, 78, 131072)
    g(f"s_lshl_b32 s{sRing}, s{sWV}, 13")
    g(f"s_mov_b32 s{sKskip}, 0")
    g(f"s_mov_b32 s{sRound}, 0")
    g(f"s_mov_b32 s{sMask}, 0x3fff00")
    g(f"s_mov_b32 s{sWfl}, {WS_BYTES}")
    g(f"s_mov_b32 s{sWld}, {o.wat}")
    g(f"s_lshl_b32 s{sCand}, s{sWV}, 10")
    g(f"s_add_u32 s{sCand}, s{sCand}, {CAND}")
    g(f"s_movk_i32 s{sT}, 452")
    g(f"v_cmp_gt_u32 {s(sPM,2)}, s{sT}, v0")
    g(f"v_lshlrev_b32 v43, 22, v0")
    g(f"v_lshlrev_b32 v59, 20, v0")
    g("v_mov_b32 v58, 1")
    g("s_waitcnt lgkmcnt(0)")
    g("s_barrier")
    g.c("---- weights: cg operand, w_r image, this wave's share of the w_out transposition")
    g(f"v_and_b32 v60, 3, v{vLane}")
    g(f"v_lshlrev_b32 v61, 5, v60")
    g(f"v_lshrrev_b32 v66, 4, v{vLane}")
    g(f"v_lshl_add_u32 v61, v66, 1, v61")
    for q in range(4):
        g(f"buffer_load_ushort v{44+q}, v61, {s(CG,4)}, 0 offen offset:{q*8}")
    g(f"s_lshl_b32 s{sT}, s{sWV}, 10")
    g(f"s_add_u32 m0, s{sT}, {WRIMG}")
    g(f"v_lshlrev_b32 v64, 4, v{vLane}")
    g(f"buffer_load_dwordx4 v64, {s(WR,4)}, s{sT} offen lds")
    nlate = 5
    g(f"s_lshr_b32 s{sT}, s{sB}, 3")
    g(f"s_lshl3_add_u32 s{sT}, s{sT}, s{sWV}")
    g(f"s_lshl_b32 s{sT}, s{sT}, 10")
    g(f"v_add_u32 v{vPf}, s{sT}, v64")
    if o.codepf:
        g.c("read the rest of this kernel's own code once so that instruction fetches find it in L2")
        g("s_getpc_b64 s[4:5]")
        g.label("L_pc")
        g(f"v_lshlrev_b32 v65, 7, v{vLane}")
        g(f"s_cmp_ge_u32 s{sWV}, {o.codepf}")
        g(f"s_cselect_b32 s{sT}, 0, s{sRing}")
        g(f"v_add_u32 v65, s{sT}, v65")
        g(f"v_min_u32 v65, L_end-L_pc, v65")
        g(f"global_load_dword v{ACC+76}, v65, s[4:5]")
        nlate += 1
    def shpf(n):
        g.c("sh -> L2: the 32 workgroups b%8==const (one XCD when dealt round-robin; speed only) read all of it")
        for i in range(n):
            g(f"buffer_load_dwordx4 {v(ACC+76,4)}, v{vPf}, {s(SH,4)}, 0 offen")
            g(f"v_add_u32 v{vPf}, {256*1024}, v{vPf}")
    shs = [int(x) for x in o.shpf.split(",")]
    shpf(shs[0])
    nlate += shs[0]
    pf(pfs[0])
    nlate += pfs[0]
    if o.tlb:
        g.c("address-translation warm-up: one line per stride of x, out, edge_attr")
        g(f"v_lshlrev_b32 v64, {o.tlb}, v0")
        g(f"buffer_load_dword v{ACC+76}, v64, {s(X,4)}, 0 offen")
        g(f"buffer_load_dword v{ACC+77}, v64, {s(OUT,4)}, 0 offen")
        g(f"buffer_load_dword v{ACC+78}, v64, {s(EA,4)}, 0 offen")
        nlate += 3
    g.c("---- persistent per-lane constants")
    g(f"v_and_b32 v61, 7, v{vLane}")
    g(f"v_bfe_u32 v65, v{vLane}, 3, 1")
    g(f"v_lshlrev_b32 v65, 9, v65")
    g(f"v_lshl_add_u32 v65, v66, 7, v65")
    g(f"v_lshl_add_u32 v{vDma0}, v61, 4, v65")
    g(f"v_xor_b32 v61, 4, v61")
    g(f"v_lshl_add_u32 v{vDma1}, v61, 4, v65")
    g(f"v_bfe_u32 v60, v{vLane}, 2, 2")
    g(f"v_bfe_u32 v62, v{vLane}, 1, 1")
    g(f"v_lshl_add_u32 v62, v66, 1, v62")
    g(f"v_lshrrev_b32 v63, 1, v60")
    g(f"v_lshlrev_b32 v64, 2, v63")
    g(f"v_xor_b32 v62, v62, v64")
    g(f"v_and_b32 v64, 1, v60")
    g(f"v_lshl_add_u32 v62, v64, 3, v62")
    g(f"v_lshlrev_b32 v62, 4, v62")
    g(f"v_lshl_add_u32 v62, v63, 10, v62")
    g(f"v_and_b32 v64, 1, v{vLane}")
    g(f"v_lshl_add_u32 v62, v64, 3, v62")
    g(f"v_add_u32 v{vTr}, s{sRing}, v62")
    g(f"v_lshrrev_b32 v61, 5, v{vLane}")
    g(f"v_mov_b32 v63, 32")
    g(f"v_cmp_eq_u32 vcc, v60, v61")
    g(f"v_add_u32 v61, 2, v61")
    g(f"v_and_b32 v64, 3, v{vLane}")
    g(f"v_cndmask_b32 v{vMul1}, 0, v63, vcc")
    g(f"v_cmp_eq_u32 vcc, v60, v61")
    g(f"v_cmp_eq_u32 s[4:5], v64, v66")
    g(f"v_mov_b32 v65, 8")
    g(f"v_cndmask_b32 v{vMul2}, 0, v63, vcc")
    g(f"v_cndmask_b32 v{vMulS}, 0, v65, s[4:5]")
    CE = 70
    g(f"v_lshrrev_b32 v68, 3, v0")
    g(f"v_and_b32 v69, 7, v0")
    g(f"v_lshlrev_b32 v69, 4, v69")
    g(f"v_add_u32 v61, s{sN}, v68")
    g(f"s_movk_i32 s{sDm}, {ROWB}")
    g(f"v_mad_u32_u24 v64, v61, s{sDm}, v69")
    g(f"s_lshl_b32 s{sQ}, s{sC}, 7")
    g(f"s_add_u32 s{sT}, s{sQ}, {WS_CELLS}")
    g(f"v_add_u32 v64, s{sT}, v64")
    g(f"v_lshl_add_u32 v65, v61, 13, v69")
    g(f"s_add_u32 s{sT}, s{sQ}, {WS_EXT}")
    g(f"v_add_u32 v65, s{sT}, v65")
    g(f"v_lshlrev_b32 v61, 4, v0")
    g(f"s_mov_b32 s{sT}, {PCNT}")
    g(f"v_lshl_add_u32 v67, v68, 2, s{sT}")
    g.c("================ producer: bin this chunk's edges of the group's buckets")
    PB, PR = 48, 53
    PMK = [64, 66, 68, 70, 72]
    g(f"s_waitcnt vmcnt({nlate+3})")
    g.stamp(11)
    for k in range(5):
        g(f"v_and_b32 v{PB+k}, 255, v{pD+k}")
        g(f"v_subrev_u32 v{PB+k}, s{sN}, v{PB+k}")
        g(f"v_cmp_gt_u32 {s(PMK[k],2)}, 64, v{PB+k}")
        g(f"v_lshl_add_u32 v60, v{PB+k}, 2, s{sT}")
        if k == 4:
            g(f"s_and_b64 {s(PMK[k],2)}, {s(PMK[k],2)}, {s(sPM,2)}")
        g(f"s_mov_b64 exec, {s(PMK[k],2)}")
        g(f"ds_add_rtn_u32 v{PR+k}, v60, v58")
        g("s_mov_b64 exec, -1")
    g(f"s_waitcnt vmcnt({nlate})")
    g(f"v_readfirstlane_b32 s{sTag}, v42")
    shpf(shs[1])
    for k in range(5):
        g(f"v_bfe_u32 v{pD+k}, v{pD+k}, 8, 6")
        g(f"v_min_u32 v{pD+k}, 47, v{pD+k}")
        g(f"v_and_b32 v{pS+k}, 0x3fff, v{pS+k}")
        g(f"v_lshl_or_b32 v{pD+k}, v{pS+k}, 6, v{pD+k}")
        if k < 4:
            g(f"v_add_u32 v{pS+k}, {k<<20}, v43")
        else:
            g(f"v_add_u32 v{pS+k}, {2048<<20}, v59")
        g(f"v_or_b32 v{pD+k}, v{pD+k}, v{pS+k}")
        g(f"v_lshlrev_b32 v{PB+k}, 7, v{PB+k}")
    g("v_mov_b32 v59, -2")
    g(f"s_add_u32 s{sTag}, s{sTag}, 1")
    g(f"s_movk_i32 s{sT}, {8192 - 24*16}")
    g("s_waitcnt lgkmcnt(0)")
    for k in range(5):
        g(f"v_cmp_gt_u32 vcc, 31, v{PR+k}")
        g(f"v_min_u32 v{PR+k}, 31, v{PR+k}")
        g(f"v_mul_u32_u24 v32, 43, v{PR+k}")
        g(f"v_cndmask_b32 v{pD+k}, v59, v{pD+k}, vcc")
        g(f"v_lshrrev_b32 v32, 7, v32")
        g(f"v_cmp_gt_u32 vcc, 24, v{PR+k}")
        g(f"v_add_lshl_u32 v32, v32, v{PR+k}, 2")
        g(f"v_lshl_add_u32 v33, v{PR+k}, 4, s{sT}")
        g(f"v_cndmask_b32 v32, v33, v32, vcc")
        g(f"v_add_u32 v{PB+k}, v{PB+k}, v32")
        g(f"s_mov_b64 exec, {s(PMK[k],2)}")
        g(f"ds_write_b32 v{PB+k}, v{pD+k} offset:{PIMG}")
        g("s_mov_b64 exec, -1")
    g("s_waitcnt lgkmcnt(0)")
    g("s_barrier")
    g(f"ds_read_b128 v[16:19], v61 offset:{PIMG}")
    g("ds_read_b32 v67, v67")
    g("s_waitcnt lgkmcnt(1)")
    g(f"v_mov_b32 v19, s{sTag}")
    g(f"buffer_store_dwordx4 v[16:19], v64, {s(WS,4)}, 0 offen{o.pubflag}")
    g("s_waitcnt lgkmcnt(0)")
    g("v_cmp_lt_u32 vcc, 23, v67")
    g("s_cbranch_vccz L_noup")
    g.c("cells with 24 or more entries also publish entries 24..31")
    g(f"ds_read_b128 v[28:31], v61 offset:{PIMG+8192}")
    g("s_waitcnt lgkmcnt(0)")
    g(f"v_mov_b32 v31, s{sTag}")
    g("s_mov_b64 exec, vcc")
    g(f"buffer_store_dwordx4 v[28:31], v65, {s(WS,4)}, 0 offen sc1")
    g("s_mov_b64 exec, -1")
    g.label("L_noup")
    g.stamp(12)
    shpf(shs[2])
    pf(pfs[1])
    g.c("---- waves 0,1: fragment gw = 2*chunk+wave of w_out (N-tile gw>>4, k-step gw&15), loads")
    g(f"s_cmp_ge_u32 s{sWV}, 2")
    g("s_cbranch_scc1 L_nowf")
    g(f"s_lshl1_add_u32 s{sPB}, s{sC}, s{sWV}")
    if o.g16:
        g(f"s_bfe_u32 s{sT}, s{sPB}, {1 | (3 << 16)}")
        g(f"s_lshl_b32 s{sT}, s{sT}, 14")
        g(f"s_lshr_b32 s{sOff}, s{sPB}, 4")
        g(f"s_lshl_b32 s{sOff}, s{sOff}, 6")
        g(f"s_add_u32 s{sT}, s{sT}, s{sOff}")
        g(f"s_and_b32 s{sOff}, s{sPB}, 1")
        g(f"s_lshl_b32 s{sOff}, s{sOff}, 5")
        g(f"s_add_u32 s{sT}, s{sT}, s{sOff}")
        g(f"v_lshrrev_b32 v60, 4, v{vLane}")
        g(f"v_lshlrev_b32 v60, 12, v60")
        g(f"v_and_b32 v61, 15, v{vLane}")
        g(f"v_lshl_add_u32 v60, v61, 1, v60")
        g(f"v_add_u32 v60, s{sT}, v60")
    else:
        g(f"s_and_b32 s{sT}, s{sPB}, 15")
        g(f"s_lshl_b32 s{sT}, s{sT}, 13")
        g(f"s_lshr_b32 s{sOff}, s{sPB}, 4")
        g(f"s_lshl_b32 s{sOff}, s{sOff}, 6")
        g(f"s_add_u32 s{sT}, s{sT}, s{sOff}")
        g(f"v_lshrrev_b32 v60, 5, v{vLane}")
        g(f"v_lshlrev_b32 v60, 12, v60")
        g(f"v_and_b32 v61, 31, v{vLane}")
        g(f"v_lshl_add_u32 v60, v61, 1, v60")
        g(f"v_add_u32 v60, s{sT}, v60")
    for q in range(8):
        g(f"buffer_load_ushort v{32+q}, v60, {s(WO,4)}, 0 offen offset:{q*512}")
    g.label("L_nowf")
    vWb = 77
    g(f"v_lshrrev_b32 v60, 5, v{vLane}")
    g(f"v_bfe_u32 v61, v{vLane}, 2, 2")
    g(f"v_bfe_u32 v62, v{vLane}, 4, 1")
    g(f"v_and_b32 v63, 3, v{vLane}")
    g(f"v_lshlrev_b32 v{vWb}, 12, v62")
    g(f"v_lshl_add_u32 v{vWb}, v61, 9, v{vWb}")
    g(f"v_lshl_add_u32 v{vWb}, v60, 5, v{vWb}")
    g(f"v_lshl_add_u32 v{vWb}, v63, 3, v{vWb}")
    g(f"s_mul_i32 s{sT}, s{sB}, {ROWB}")
    g(f"s_add_u32 s{sT}, s{sT}, {WS_CELLS}")
    g(f"v_lshl_add_u32 v{CE}, v0, 4, s{sT}")
    g(f"s_lshl_b32 s{sT}, s{sB}, 13")
    g(f"s_add_u32 s{sT}, s{sT}, {WS_EXT}")
    g(f"v_lshl_add_u32 v{CE+1}, v0, 4, s{sT}")
    g(f"v_mul_u32_u24 v73, 2500, v68")
    for r in range(ACC, ACC + 76, 2):
        g(f"v_mov_b64 {v(r,2)}, 0")
    g.c("================ consumer: fetch this wave's entries until every tag matches")
    EN = [48, 49, 50, 52]
    g.stamp(13)
    g("s_mov_b64 s[6:7], -1")
    g(f"s_mov_b32 s{sC}, 0")
    if o.prewait:
        g("s_waitcnt vmcnt(0)")
    if o.prewait == 2:
        g("s_barrier")
    g.stamp(14)
    g.label("L_poll")
    g("s_mov_b64 exec, s[6:7]")
    g(f"buffer_load_dwordx4 v[48:51], v{CE}, {s(WS,4)}, 0 offen sc1")
    g("s_mov_b64 exec, -1")
    g("s_waitcnt vmcnt(0)")
    g(f"v_cmp_ne_u32 s[6:7], s{sTag}, v51")
    g("s_cmp_eq_u64 s[6:7], 0")
    g("s_cbranch_scc1 L_got")
    g(f"s_sleep {o.sleep}")
    g(f"s_add_u32 s{sC}, s{sC}, 1")
    g(f"s_cmp_lt_u32 s{sC}, 0x400000")
    g("s_cbranch_scc1 L_poll")
    g.label("L_got")
    g.stamp(1)
    for k in range(3):
        g(f"v_cmp_gt_u32 {s(sM[k],2)}, -2, v{EN[k]}")
    g(f"v_mov_b32 v{EN[3]}, -1")
    g(f"s_mov_b64 {s(sM[3],2)}, 0")
    g(f"s_mov_b32 s{sT}, 0x80808080")
    g(f"s_and_b32 s6, s{sM[2]}, s{sT}")
    g(f"s_and_b32 s7, s{sM[2]+1}, s{sT}")
    g("s_cmp_eq_u64 s[6:7], 0")
    g("s_cbranch_scc1 L_noext")
    g.c("rare: entries 24..31 of the full cells")
    g("s_lshr_b64 s[6:7], s[6:7], 7")
    g("s_mul_i32 s6, s6, 255")
    g("s_mul_i32 s7, s7, 255")
    g(f"v_mov_b32 v55, s{sTag}")
    g.label("L_poll2")
    g("s_mov_b64 exec, s[6:7]")
    g(f"buffer_load_dwordx4 v[52:55], v{CE+1}, {s(WS,4)}, 0 offen sc1")
    g("s_mov_b64 exec, -1")
    g("s_waitcnt vmcnt(0)")
    g(f"v_cmp_ne_u32 vcc, s{sTag}, v55")
    g("s_cbranch_vccz L_got2")
    g("s_sleep 1")
    g(f"s_add_u32 s{sC}, s{sC}, 1")
    g(f"s_cmp_lt_u32 s{sC}, 0x400000")
    g("s_cbranch_scc1 L_poll2")
    g.label("L_got2")
    g(f"v_cmp_gt_u32 {s(sM[3],2)}, -2, v{EN[3]}")
    g.label("L_noext")
    g(f"v_cmp_eq_u32 vcc, -2, v{EN[3]}")
    NK = [64, 65, 66, 67]
    for k in range(4):
        g(f"s_bcnt1_i32_b64 s{NK[k]}, {s(sM[k],2)}")
    g(f"s_add_u32 s65, s65, s64")
    g(f"s_add_u32 s66, s66, s65")
    g(f"s_add_u32 s{sCnt}, s67, s66")
    g(f"v_mov_b32 v61, s{sCnt}")
    g(f"v_mov_b32 v60, {POOL}")
    g("s_mov_b64 exec, 1")
    g("ds_add_rtn_u32 v61, v60, v61")
    g("s_mov_b64 exec, -1")
    PO = 62
    for k in range(4):
        g(f"v_mbcnt_lo_u32_b32 v{PO+k}, s{sM[k]}, 0")
        g(f"v_mbcnt_hi_u32_b32 v{PO+k}, s{sM[k]+1}, v{PO+k}")
        if k:
            g(f"v_add_u32 v{PO+k}, s{NK[k-1]}, v{PO+k}")
        g(f"v_lshrrev_b32 v{cE+k}, 20, v{EN[k]}")
        g(f"v_add_u32 v{cE+k}, v{cE+k}, v73")
        g(f"v_lshl_add_u32 v66, v{PO+k}, 2, s{sCand}")
        g(f"s_mov_b64 exec, {s(sM[k],2)}")
        g(f"ds_write_b32 v66, v{cE+k}")
        g("s_mov_b64 exec, -1")
        g(f"v_lshlrev_b32 v{cX+k}, 2, v{EN[k]}")
        g(f"v_and_b32 v{cX+k}, s{sMask}, v{cX+k}")
        g(f"v_and_b32 v{cM+k}, 63, v{EN[k]}")
    g(f"v_lshl_or_b32 v{vCG}, v45, 16, v44")
    g(f"v_lshl_or_b32 v{vCG+1}, v47, 16, v46")
    g(f"v_mov_b64 {v(ACC+76,2)}, 0")
    g(f"v_mov_b64 {v(ACC+78,2)}, 0")
    lab = g.newlab()
    g(f"s_cmp_ge_u32 s{sWV}, 2")
    g(f"s_cbranch_scc1 {lab}")
    for q in range(4):
        g(f"v_lshl_or_b32 v{56+q}, v{33+2*q}, 16, v{32+2*q}")
    g(f"s_lshl_b32 s{sT}, s{sN}, 1")
    g(f"s_add_u32 s{sT}, s{sT}, s{sPB}")
    g(f"s_lshl2_add_u32 s{sWfl}, s{sT}, {WS_FW}")
    g(f"s_lshl_b32 s{sT}, s{sT}, 10")
    g(f"s_add_u32 s{sT}, s{sT}, {WS_WF}")
    g(f"v_lshl_add_u32 v60, v{vLane}, 4, s{sT}")
    g(f"buffer_store_dwordx4 v[56:59], v60, {s(WS,4)}, 0 offen sc1")
    g.label(lab)
    g(f"s_mov_b32 s{sL}, 79")
    g("s_waitcnt lgkmcnt(0)")
    g(f"v_readfirstlane_b32 s{sPB}, v61")
    g("s_cbranch_vccnz L_defer")
    g(f"s_add_u32 s{sT}, s{sPB}, s{sCnt}")
    g(f"s_cmp_gt_u32 s{sT}, {POOLCAP}")
    g("s_cbranch_scc1 L_defer")
    for k in range(4):
        g(f"v_add_u32 v{PO+k}, s{sPB}, v{PO+k}")
        g(f"v_lshl_or_b32 v{cX+k}, v{PO+k}, 22, v{cX+k}")
    g("s_branch L_have")
    g.label("L_defer")
    g.c("this wave's cells overflowed (or the pool is full): rescan its edge range in later rounds")
    g(f"s_mov_b32 s{sL}, 0")
    g(f"s_mov_b32 s{sCnt}, 0")
    g(f"s_mov_b32 s{sPB}, 0")
    for k in range(4):
        g(f"s_mov_b64 {s(sM[k],2)}, 0")
    g("v_mov_b32 v58, 1")
    g(f"v_mov_b32 v59, {FLAG}")
    g("ds_write_b32 v59, v58")
    g("s_branch L_have")

    g.label("L_scan")
    g.c("================ fallback scan of this wave's 20000 dst entries (rare path)")
    g("s_barrier")
    BUF = 60
    g(f"s_mov_b32 s{sAddr}, s{sRing}")
    g(f"s_add_u32 s{sLimit}, s{sRing}, {128*8}")
    g(f"s_xor_b32 s{sNomatch}, s{sB}, 1")
    g.label("L_sloop")
    g(f"s_cmp_ge_u32 s{sL}, 79")
    g("s_cbranch_scc1 L_scan_done")
    g(f"s_mul_i32 s{sT}, s{sWV}, 20000")
    g(f"s_lshl_b32 s{sN}, s{sL}, 8")
    g(f"s_add_u32 s{sC}, s{sT}, s{sN}")
    g(f"v_lshlrev_b32 v56, 2, v{vLane}")
    g(f"v_add_u32 v56, s{sC}, v56")
    g(f"v_lshlrev_b32 v57, 2, v56")
    g(f"buffer_load_dwordx4 {v(BUF,4)}, v57, {s(DST,4)}, 0 offen")
    g("s_waitcnt vmcnt(0)")
    g(f"s_cmp_lg_u32 s{sL}, 78")
    g("s_cbranch_scc1 L_snotlast")
    g(f"s_mov_b32 exec_lo, 0xffffff00")
    for k in range(4):
        g(f"v_mov_b32 v{BUF+k}, s{sNomatch}")
    g("s_mov_b64 exec, -1")
    g.label("L_snotlast")
    for k in range(4):
        lab = g.newlab()
        g(f"s_cmp_gt_u32 s{sKskip}, {k}")
        g(f"s_cbranch_scc1 {lab}")
        g(f"v_cmp_eq_u32_sdwa vcc, v{BUF+k}, s{sB} src0_sel:BYTE_0 src1_sel:DWORD")
        g(f"s_cbranch_vccz {lab}")
        g(f"s_bcnt1_i32_b64 s{sT}, vcc")
        g(f"s_lshl3_add_u32 s{sN}, s{sT}, s{sAddr}")
        g(f"s_mov_b32 s{sKskip}, {k}")
        g(f"s_cmp_gt_u32 s{sN}, s{sLimit}")
        g(f"s_cbranch_scc1 L_ovf")
        g(f"v_mbcnt_lo_u32_b32 v58, vcc_lo, 0")
        g(f"v_mbcnt_hi_u32_b32 v58, vcc_hi, v58")
        g(f"v_lshl_add_u32 v58, v58, 3, s{sAddr}")
        g(f"v_add_u32 v59, {k}, v56")
        g("s_mov_b64 exec, vcc")
        g(f"ds_write2_b32 v58, v{BUF+k}, v59 offset0:0 offset1:1")
        g("s_mov_b64 exec, -1")
        g(f"s_mov_b32 s{sAddr}, s{sN}")
        g.label(lab)
    g(f"s_mov_b32 s{sKskip}, 0")
    g(f"s_add_u32 s{sL}, s{sL}, 1")
    g("s_branch L_sloop")
    g.label("L_ovf")
    g("v_mov_b32 v58, 1")
    g(f"v_mov_b32 v59, {FLAG}")
    g("ds_write_b32 v59, v58")
    g.label("L_scan_done")
    g(f"s_sub_u32 s{sCnt}, s{sAddr}, s{sRing}")
    g(f"s_lshr_b32 s{sCnt}, s{sCnt}, 3")
    g(f"s_lshl_b32 s{sPB}, s{sWV}, 7")
    g(f"v_lshlrev_b32 v58, 3, v{vLane}")
    g(f"v_add_u32 v58, s{sRing}, v58")
    g("s_waitcnt lgkmcnt(0)")
    for k in range(2):
        g(f"ds_read_b32 v{cM+k}, v58 offset:{512*k}")
        g(f"ds_read_b32 v{cE+k}, v58 offset:{512*k+4}")
        g(f"s_sub_u32 s{sT}, s{sCnt}, {64*k}")
        g(f"v_cmp_gt_i32 {s(sM[k],2)}, s{sT}, v{vLane}")
    for k in range(2, 4):
        g(f"s_mov_b64 {s(sM[k],2)}, 0")
        g(f"v_mov_b32 v{cM+k}, 0")
        g(f"v_mov_b32 v{cX+k}, 0")
    g(f"v_lshl_add_u32 v58, v{vLane}, 2, s{sCand}")
    g(f"v_add_u32 v59, s{sPB}, v{vLane}")
    g(f"v_lshlrev_b32 v59, 22, v59")
    g("s_waitcnt lgkmcnt(0)")
    for k in range(2):
        g(f"v_lshlrev_b32 v{cK+k}, 2, v{cE+k}")
        g(f"buffer_load_dword v{cX+k}, v{cK+k}, {s(SRC,4)}, 0 offen")
        g(f"v_bfe_u32 v{cM+k}, v{cM+k}, 8, 6")
        g(f"v_min_u32 v{cM+k}, 47, v{cM+k}")
        g(f"ds_write_b32 v58, v{cE+k} offset:{256*k}")
    g("s_waitcnt vmcnt(0)")
    for k in range(2):
        g(f"v_and_b32 v{cX+k}, 0x3fff, v{cX+k}")
        g(f"v_lshl_or_b32 v{cX+k}, v{cX+k}, 8, v59")
        g(f"v_add_u32 v59, {64<<22}, v59")
    g.label("L_have")
    g.c("================ histogram over (slot, src bin); payload DMA set-up")
    g("v_mov_b32 v58, 1")
    g(f"s_mov_b32 s{sT}, {HIST}")
    g(f"s_mov_b32 s{sN}, {DEG}")
    for k in range(4):
        g(f"v_bfe_u32 v{cK+k}, v{cX+k}, 8, 14")
        g(f"v_mul_u32_u24 v{cK+k}, 6711, v{cK+k}")
        g(f"v_lshrrev_b32 v{cK+k}, 22, v{cK+k}")
        g(f"v_min_u32 v{cK+k}, 15, v{cK+k}")
        g(f"v_lshl_add_u32 v{cK+k}, v{cK+k}, 2, s{sT}")
        g(f"v_lshl_add_u32 v{cK+k}, v{cM+k}, 6, v{cK+k}")
        g(f"v_lshl_add_u32 v{cM+k}, v{cM+k}, 2, s{sN}")
        g(f"s_mov_b64 exec, {s(sM[k],2)}")
        g(f"ds_add_rtn_u32 v{cR+k}, v{cK+k}, v58")
        g(f"ds_add_u32 v{cM+k}, v58")
        g("s_mov_b64 exec, -1")
    g(f"v_lshrrev_b32 v{vL2}, 1, v{vLane}")
    g(f"v_lshl_add_u32 v{vCand}, v{vL2}, 2, s{sCand}")
    EI = 40
    for q in range(4):
        g(f"ds_read_b32 v{EI+q}, v{vCand} offset:{128*q}")
    g(f"v_and_b32 v{vP4}, 1, v{vLane}")
    g(f"v_lshlrev_b32 v{vP16}, 4, v{vP4}")
    g(f"v_lshlrev_b32 v{vP4}, 2, v{vP4}")
    g(f"s_mov_b32 s{sDm}, s{sCnt}")
    g(f"s_mov_b32 s{sQ}, s{sPB}")
    g(f"v_lshl_add_u32 v56, v{vLane}, 2, s{sN}")
    g(f"v_mov_b32 v57, {FLAG}")
    g("s_waitcnt lgkmcnt(0)")

    def pay(q):
        lab = g.newlab()
        g(f"s_cmp_le_i32 s{sDm}, 0")
        g(f"s_cbranch_scc1 {lab}")
        g(f"v_lshl_add_u32 v44, v{EI+q}, 5, v{vP16}")
        g(f"v_lshl_add_u32 v45, v{EI+q}, 3, v{vP4}")
        g(f"v_cmp_gt_i32 vcc, s{sDm}, v{vL2}")
        g(f"s_lshl_b32 s{sOff}, s{sQ}, 5")
        g(f"s_add_u32 m0, s{sOff}, {PEA}")
        g("s_mov_b64 exec, vcc")
        g(f"buffer_load_dwordx4 v44, {s(EA,4)}, 0 offen{o.eald} lds")
        g(f"s_lshl3_add_u32 m0, s{sQ}, {PSH}")
        g(f"s_add_u32 s{sQ}, s{sQ}, 32")
        g(f"buffer_load_dword v45, {s(SH,4)}, 0 offen lds")
        g("s_mov_b64 exec, -1")
        g(f"s_sub_i32 s{sDm}, s{sDm}, 32")
        g.label(lab)
    sched = [int(x) for x in o.pay.split(",")]
    def stage(st):
        for q in range(4):
            if sched[q] == st:
                pay(q)
    stage(0)
    g("s_barrier")
    g.stamp(2)
    g.c("================ degrees, assignment, offsets")
    vDeg, vKey, vRank = 56, 57, 59
    g(f"ds_read_b32 v{vDeg}, v56")
    g(f"ds_read_b32 v57, v57")
    stage(1)
    g("s_waitcnt lgkmcnt(0)")
    g(f"v_readfirstlane_b32 s{sMore}, v57")
    g(f"s_cmp_lg_u32 s{sRound}, 0")
    g("s_cbranch_scc1 L_assigned")
    for i in range(4):
        for be in range(2):
            for t in range(2):
                g(f"ds_read_b64_tr_b16 {a_(aWR+8*i+4*be+2*t,2)}, v{vWb} offset:{WRIMG + t*2048 + (64*i+32*be)*2}")
    lab = g.newlab()
    g(f"s_and_b32 s{sT}, s{sB}, 63")
    g(f"s_or_b32 s{sT}, s{sT}, s{sWV}")
    g(f"s_cbranch_scc1 {lab}")
    g.c("the group's first workgroup has seen entries of all 64 members: all have read the epoch; advance it")
    g(f"s_lshl_b32 s{sT}, s{sB}, 1")
    g(f"v_mov_b32 v60, s{sT}")
    g(f"v_mov_b32 v61, s{sTag}")
    g("s_mov_b64 exec, 1")
    g(f"buffer_store_dword v61, v60, {s(WS,4)}, 0 offen sc1")
    g("s_mov_b64 exec, -1")
    g.label(lab)
    g(f"v_sub_u32 v{vKey}, 63, v{vLane}")
    g(f"v_lshl_add_u32 v{vKey}, v{vDeg}, 6, v{vKey}")
    g(f"v_mov_b32 v{vRank}, 0")
    masks = ["vcc", "s[4:5]", "s[6:7]"]
    for b0 in range(0, 40, 16):
        nb = min(16, 40 - b0)
        for j in range(nb):
            g(f"v_readlane_b32 s{sKey+j}, v{vKey}, {b0+j}")
        j = 0
        while j < nb:
            m = min(3, nb - j)
            for t in range(m):
                g(f"v_cmp_gt_u32 {masks[t]}, s{sKey+j+t}, v{vKey}")
            if m < 3:
                g.nop(3 - m)
            for t in range(m):
                g(f"v_addc_co_u32 v{vRank}, {masks[t]}, 0, v{vRank}, {masks[t]}")
            j += m
    g(f"v_bfe_u32 v60, v{vRank}, 3, 1")
    g(f"v_mul_u32_u24 v60, 7, v60")
    g(f"v_and_b32 v61, 7, v{vRank}")
    g(f"v_xor_b32 v{vOwner}, v60, v61")
    g(f"s_sub_u32 s{sT}, 7, s{sWV}")
    for k in range(5):
        g(f"s_add_u32 s{sN}, s{sT if k & 1 else sWV}, {8*k}")
        g(f"v_cmp_eq_u32 vcc, s{sN}, v{vRank}")
        g(f"s_ff1_i32_b64 s{sSlot+k}, vcc")
    g.label("L_assigned")
    g(f"v_cmp_gt_u32 vcc, s{sWV}, v{vOwner}")
    g(f"v_and_b32 v61, 15, v{vLane}")
    g(f"v_lshlrev_b32 v61, 2, v61")
    g(f"v_cndmask_b32 v60, 0, v{vDeg}, vcc")
    g(f"v_add_u32 v61, {HIST}, v61")
    AD, CN = 64, 70
    for k in range(5):
        g(f"s_lshl_b32 s{sKey+k}, s{sSlot+k}, 6")
        g(f"v_add_u32 v{AD+k}, s{sKey+k}, v61")
        g(f"ds_read_b32 v{CN+k}, v{AD+k}")
    for n_, sh_ in enumerate((1, 2, 4, 8)):
        g(f"v_add_u32_dpp v60, v60, v60 row_shr:{sh_} row_mask:0xf bank_mask:0xf bound_ctrl:1")
        g(f"v_readlane_b32 s{sKey+8+n_}, v{vDeg}, s{sSlot+n_}")
        g.nop(1)
    g(f"v_readlane_b32 s{sKey+12}, v{vDeg}, s{sSlot+4}")
    g(f"v_readlane_b32 s{sBase}, v60, 15")
    g(f"v_readlane_b32 s{sT}, v60, 31")
    g(f"v_readlane_b32 s{sN}, v60, 47")
    g(f"s_add_u32 s{sRem}, s{sKey+8}, s{sKey+9}")
    for k in range(2, 5):
        g(f"s_add_u32 s{sRem}, s{sRem}, s{sKey+8+k}")
    g(f"s_add_u32 s{sBase}, s{sBase}, s{sT}")
    g(f"s_add_u32 s{sBase}, s{sBase}, s{sN}")
    g(f"s_add_u32 s{sBase}, s{sBase}, 3")
    g(f"s_andn2_b32 s{sBase}, s{sBase}, 3")
    g(f"s_lshl2_add_u32 s{sBase}, s{sWV}, s{sBase}")
    g("s_waitcnt lgkmcnt(0)")
    g(f"v_add3_u32 v60, v{CN}, v{CN+1}, v{CN+2}")
    g(f"v_add3_u32 v60, v60, v{CN+3}, v{CN+4}")
    g("v_mov_b32 v61, v60")
    for sh_ in (1, 2, 4, 8):
        g.nop(2)
        g(f"v_add_u32_dpp v61, v61, v61 row_shr:{sh_} row_mask:0xf bank_mask:0xf bound_ctrl:1")
    g("v_sub_u32 v61, v61, v60")
    g(f"v_add_u32 v61, s{sBase}, v61")
    for k in range(5):
        g(f"v_lshl_add_u32 v{75+k}, v61, 8, {16*k}")
        g(f"ds_write_b32 v{AD+k}, v{75+k} offset:{OFF-HIST}")
        if k < 4:
            g(f"v_add_u32 v61, v61, v{CN+k}")
    stage(2)
    g("s_waitcnt lgkmcnt(0)")
    g("s_barrier")
    g.stamp(8)
    g.c("================ placement of (pool index | src | acc offset); re-zero HIST/FLAG")
    for k in range(4):
        g(f"ds_read_b32 v{cM+k}, v{cK+k} offset:{OFF-HIST}")
    g("v_mov_b32 v60, 0")
    g("v_mov_b32 v61, 0")
    g(f"v_lshlrev_b32 v64, 3, v0")
    g(f"v_add_u32 v64, {HIST}, v64")
    g("ds_write_b64 v64, v[60:61]")
    g(f"v_mov_b32 v64, {FLAG}")
    g("ds_write_b32 v64, v60")
    g(f"s_mov_b32 s{sT}, {META}")
    g(f"s_movk_i32 s{sN}, 255")
    g("s_waitcnt lgkmcnt(2)")
    for k in range(4):
        g(f"v_lshrrev_b32 v{cK+k}, 8, v{cM+k}")
        g(f"v_add_u32 v{cK+k}, v{cK+k}, v{cR+k}")
        g(f"v_and_or_b32 v{cM+k}, v{cM+k}, s{sN}, v{cX+k}")
        g(f"v_lshl_add_u32 v{cK+k}, v{cK+k}, 2, s{sT}")
        g(f"s_mov_b64 exec, {s(sM[k],2)}")
        g(f"ds_write_b32 v{cK+k}, v{cM+k}")
        g("s_mov_b64 exec, -1")
    stage(3)
    def paymore():
        g.c("lists longer than 128 candidates (rare): fetch the rest")
        g.label("L_paymore")
        g(f"s_cmp_le_i32 s{sDm}, 0")
        g("s_cbranch_scc1 L_paydone")
        g(f"ds_read_b32 v{EI}, v{vCand} offset:512")
        g(f"v_add_u32 v{vCand}, 128, v{vCand}")
        g("s_waitcnt lgkmcnt(0)")
        pay(0)
        g("s_branch L_paymore")
        g.label("L_paydone")
    late = 4 in sched
    if not late:
        paymore()
    RW, D, B, EA1, EA2, AC, M4, I1, I2, SHO = 16, 32, 48, 56, 60, 32, 68, 72, 73, 64
    vB1, vB2, vBS, vM1, vM2 = 74, 75, 76, 77, 78
    g(f"s_lshl_b32 s{sBase}, s{sBase}, 2")
    g(f"s_add_u32 s{sBase}, s{sBase}, {META}")
    g(f"s_and_b32 s{sN}, s{sB}, 192")
    g(f"s_lshl_b32 s{sN}, s{sN}, 1")
    g(f"s_lshl4_add_u32 s{sN}, s{sWV}, s{sN}")
    g(f"s_lshl2_add_u32 s{sT}, s{sN}, {WS_FW}")
    g(f"v_and_b32 v66, 15, v{vLane}")
    g(f"v_lshl_add_u32 v66, v66, 2, s{sT}")
    g(f"s_lshl_b32 s{sT}, s{sN}, 10")
    g(f"s_add_u32 s{sT}, s{sT}, {WS_WF}")
    g(f"v_lshl_add_u32 v67, v{vLane}, 4, s{sT}")
    g(f"s_xor_b32 s{sT}, s{sTag}, 1")
    g(f"v_mov_b32 v79, s{sT}")
    g(f"v_mov_b32 v{vMetaA}, s{sBase}")
    g(f"v_and_b32 v62, 3, v{vLane}")
    g(f"v_lshl_add_u32 v{vM1}, v62, 2, s{sBase}")
    g(f"v_bfe_u32 v62, v{vLane}, 2, 2")
    g(f"v_lshl_add_u32 v{vM2}, v62, 2, s{sBase}")
    g(f"v_bfe_u32 v63, v{vLane}, 4, 1")
    g(f"v_lshlrev_b32 v63, 4, v63")
    g(f"v_add_u32 v63, {PEA}, v63")
    g(f"v_mov_b32 v65, {PSH}")
    g(f"v_mov_b32 v62, {ZERO}")
    g(f"v_cmp_ne_u32 vcc, 0, v{vMul1}")
    g(f"v_cmp_ne_u32 s[4:5], 0, v{vMul2}")
    g(f"v_cmp_ne_u32 s[6:7], 0, v{vMulS}")
    g(f"v_cndmask_b32 v{vB1}, v62, v63, vcc")
    g(f"v_cndmask_b32 v{vB2}, v62, v63, s[4:5]")
    g(f"v_cndmask_b32 v{vBS}, v62, v65, s[6:7]")
    g("s_waitcnt lgkmcnt(0)")
    g("s_barrier")
    g.stamp(3)

    def issue(sm, r):
        g(f"s_and_b32 s{sOff}, s{sm+r}, s{sMask}")
        g(f"s_add_u32 m0, s{sRing}, {r*2048}")
        g(f"s_lshl_b32 s{sOff}, s{sOff}, 3")
        g(f"buffer_load_dwordx4 v{vDma0}, {s(X,4)}, s{sOff} offen lds")
        g(f"buffer_load_dwordx4 v{vDma1}, {s(X,4)}, s{sOff} offen offset:1024 lds")

    def opaddr():
        g(f"v_lshrrev_b32 v{I1}, 22, v{I1}")
        g(f"v_lshrrev_b32 v{I2}, 22, v{I2}")
        g(f"v_mad_u32_u24 v{vEa1}, v{I1}, v{vMul1}, v{vB1}")
        g(f"v_mad_u32_u24 v{vEa2}, v{I1}, v{vMul2}, v{vB2}")
        g(f"v_mad_u32_u24 v{vSh}, v{I2}, v{vMulS}, v{vBS}")

    g.c("================ first rows, then wait for everybody's payload")
    g(f"ds_read_b128 {v(M4,4)}, v{vMetaA}")
    g(f"ds_read_b32 v{I1}, v{vM1}")
    g(f"ds_read_b32 v{I2}, v{vM2}")
    g(f"s_cmp_lt_u32 s{sRem}, {R}")
    g("s_cbranch_scc1 L_short")
    g("s_waitcnt lgkmcnt(2)")
    for r in range(4):
        g(f"v_readfirstlane_b32 s{sMa+r}, v{M4+r}")
    for r in range(R):
        issue(sMa, r)
    if not late:
        g(f"s_waitcnt vmcnt({2*R})")
    g("s_branch L_go")
    g.label("L_short")
    g("s_waitcnt vmcnt(0) lgkmcnt(0)")
    for r in range(4):
        g(f"v_readfirstlane_b32 s{sMa+r}, v{M4+r}")
    for r in range(R - 1):
        g(f"s_cmp_le_u32 s{sRem}, {r}")
        g("s_cbranch_scc1 L_go")
        issue(sMa, r)
    g.label("L_go")
    if late:
        stage(4)
        g("s_waitcnt lgkmcnt(0)")
        paymore()
        g("s_waitcnt vmcnt(0)")
    lab = g.newlab()
    g(f"s_cmp_ge_u32 s{sWV}, 2")
    g(f"s_cbranch_scc1 {lab}")
    g(f"s_cmp_lg_u32 s{sRound}, 0")
    g(f"s_cbranch_scc1 {lab}")
    g.c("this wave's w_out fragment has been acknowledged: publish its flag (one extra wait step below)")
    g(f"v_mov_b32 v62, s{sWfl}")
    g(f"v_mov_b32 v63, s{sTag}")
    g("s_mov_b64 exec, 1")
    g(f"buffer_store_dword v63, v62, {s(WS,4)}, 0 offen sc1")
    g("s_mov_b64 exec, -1")
    g.label(lab)
    g("s_waitcnt lgkmcnt(0)")
    opaddr()
    g("s_barrier")
    g.stamp(9)
    g.cstamp(18)
    g(f"s_cmp_eq_u32 s{sRem}, 0")
    g("s_cbranch_scc1 L_round_done")
    g.c("================ sweep: groups of 4 edges")
    g.label("L_group")
    g(f"s_cmp_le_u32 s{sRem}, s{sWld}")
    g("s_cbranch_scc1 L_wstep")
    g.label("L_wback")
    g(f"ds_read_b64 {v(SHO,2)}, v{vSh}")
    g(f"ds_read_b128 {v(EA1,4)}, v{vEa1}")
    g(f"ds_read_b128 {v(EA2,4)}, v{vEa2}")
    g(f"ds_read_b128 {v(M4,4)}, v{vMetaA} offset:16")
    g(f"ds_read_b32 v{I1}, v{vM1} offset:16")
    g(f"ds_read_b32 v{I2}, v{vM2} offset:16")
    g(f"v_add_u32 v{vMetaA}, 16, v{vMetaA}")
    g(f"v_add_u32 v{vM1}, 16, v{vM1}")
    g(f"v_add_u32 v{vM2}, 16, v{vM2}")
    g("s_waitcnt lgkmcnt(0)")
    g(f"v_mfma_f32_16x16x16_bf16 {v(AC,4)}, {v(vCG,2)}, {v(SHO,2)}, 0")
    for i in range(4):
        g(f"v_mfma_f32_16x16x32_bf16 {v(RW+4*i,4)}, {v(EA1,4)}, {a_(aWR+8*i,4)}, 0")
    for i in range(4):
        g(f"v_mfma_f32_16x16x32_bf16 {v(RW+4*i,4)}, {v(EA2,4)}, {a_(aWR+8*i+4,4)}, {v(RW+4*i,4)}")
    for r in range(4):
        g(f"v_readfirstlane_b32 s{sMb+r}, v{M4+r}")
    g(f"v_cvt_pk_bf16_f32 v{SHO}, v{AC}, v{AC+1}")
    g(f"v_cvt_pk_bf16_f32 v{SHO+1}, v{AC+2}, v{AC+3}")
    opaddr()
    for r in range(4):
        g.c(f"-- edge {r}")
        l1 = g.newlab()
        g(f"s_cmp_ge_u32 s{sRem}, {R}")
        g(f"s_cbranch_scc1 {l1}")
        g("s_waitcnt vmcnt(0)")
        g.label(l1)
        g(f"s_waitcnt vmcnt({2*(R-1)})")
        for i in range(4):
            g(f"ds_read_b64_tr_b16 {v(B+2*i,2)}, v{vTr} offset:{r*2048+i*256}")
        l2 = g.newlab()
        if R == 4:
            g("s_waitcnt lgkmcnt(0)")
        g(f"s_cmp_le_u32 s{sRem}, {R}")
        g(f"s_cbranch_scc1 {l2}")
        issue(sMb if r + R >= 4 else sMa, (r + R) % 4)
        g.label(l2)
        if R < 4:
            g("s_waitcnt lgkmcnt(0)")
        for i in range(4):
            g(f"v_mfma_f32_4x4x4_16b_bf16 {v(D+4*i,4)}, {v(SHO,2)}, {v(B+2*i,2)}, 0 cbsz:4 abid:{r}")
        g.nop(1)
        g(f"s_set_gpr_idx_on s{sMa+r}, gpr_idx(SRC2,DST)")
        x = r & 1
        for i in range(4):
            rw = RW + 4 * i + (r & ~1)
            for wp in range(2):
                g(f"v_pk_fma_f32 {v(acc(0,i,2*wp),2)}, {v(D+4*i+2*wp,2)}, {v(rw,2)}, {v(acc(0,i,2*wp),2)} op_sel:[0,{x},0] op_sel_hi:[1,{x},1]")
        g("s_set_gpr_idx_off")
        g(f"s_mov_b32 s{sMa+r}, s{sMb+r}")
        g(f"s_sub_u32 s{sRem}, s{sRem}, 1")
        g(f"s_cmp_eq_u32 s{sRem}, 0")
        g(f"s_cbranch_scc{1 if r < 3 else 0} {'L_round_done' if r < 3 else 'L_group'}")
    g.label("L_round_done")
    g(f"s_add_u32 s{sRound}, s{sRound}, 1")
    g(f"s_cmp_lg_u32 s{sMore}, 0")
    g("s_cbranch_scc1 L_scan")
    g.stamp(4)
    g.cstamp(19)

    def wload():
        for ks in range(16):
            g(f"buffer_load_dwordx4 {a_(aW+4*ks,4)}, v67, {s(WS,4)}, 0 offen offset:{(ks%4)*1024}{o.wflag}")
            if ks % 4 == 3:
                g(f"v_add_u32 v67, 4096, v67")
    g(f"s_cmp_eq_u32 s{sWld}, 0")
    g("s_cbranch_scc1 L_havew")
    g.c("================ w_out fragments not fetched during the sweep (short list): wait for the flags here")
    g(f"s_mov_b32 s{sC}, 0")
    g.label("L_pollw")
    g("s_waitcnt vmcnt(0)")
    g(f"v_cmp_ne_u32 vcc, s{sTag}, v79")
    g("s_cbranch_vccz L_gotw")
    g(f"buffer_load_dword v79, v66, {s(WS,4)}, 0 offen sc1")
    g("s_sleep 1")
    g(f"s_add_u32 s{sC}, s{sC}, 1")
    g(f"s_cmp_lt_u32 s{sC}, 0x400000")
    g("s_cbranch_scc1 L_pollw")
    g.label("L_gotw")
    wload()
    g("s_branch L_havew")
    g.label("L_wstep")
    g.c("a flag load issued one group (4 edges and their waits) ago has landed")
    g(f"v_cmp_ne_u32 vcc, s{sTag}, v79")
    g("s_cbranch_vccz L_wgo")
    g(f"buffer_load_dword v79, v66, {s(WS,4)}, 0 offen sc1")
    g("s_branch L_wback")
    g.label("L_wgo")
    if o.wearly:
        wload()
        g(f"s_mov_b32 s{sWld}, 0")
    g("s_branch L_wback")
    g.label("L_havew")
    g.c("================ agg image -> LDS: channels 0..127 right away, 128..255 once every wave has left the ring")
    g(f"v_mul_u32_u24 v16, 320, v{vLane}")
    g(f"v_lshrrev_b32 v17, 2, v{vLane}")
    SK = 16 if o.g16 else 8
    ISTR = 64 * 320 + 16 * SK
    g(f"v_lshl_add_u32 v16, v17, {4 if o.g16 else 3}, v16")
    SA0, SA1, PKI = 5, 72, 32
    for k in range(5):
        g(f"s_lshl_b32 s{sT}, s{sSlot+k}, 3")
        g(f"v_add_u32 v{SA1+k}, s{sT}, v16")
        g(f"v_add_u32 v{SA0+k}, {IMG0}, v{SA1+k}")
    for i in range(4):
        for k in range(5):
            p = PKI + 10 * i + 2 * k
            g(f"v_cvt_pk_bf16_f32 v{p}, v{acc(k,i,0)}, v{acc(k,i,1)}")
            g(f"v_cvt_pk_bf16_f32 v{p+1}, v{acc(k,i,2)}, v{acc(k,i,3)}")
            if i < 2:
                g(f"ds_write_b64 v{SA0+k}, {v(p,2)} offset:{i*ISTR}")
    vG0, vG1, vO, vSw, vSr = 2, 3, 4, 10, 11
    g(f"v_lshrrev_b32 v20, 5, v{vLane}")
    g(f"v_mul_u32_u24 v21, 2576, v20")
    g(f"v_bfe_u32 v22, v{vLane}, 2, 2")
    g(f"v_mul_u32_u24 v24, 320, v22")
    g(f"v_bfe_u32 v23, v{vLane}, 4, 1")
    g(f"v_lshl_add_u32 v21, v23, 5, v21")
    g(f"v_and_b32 v23, 3, v{vLane}")
    g(f"v_lshl_add_u32 v21, v23, 3, v21")
    g(f"v_add_u32 v{vG1}, v21, v24")
    if o.g16:
        g(f"v_lshrrev_b32 v25, 4, v{vLane}")
        g(f"v_mul_u32_u24 v21, 2592, v25")
        g(f"v_lshl_add_u32 v21, v23, 3, v21")
        g(f"v_add_u32 v{vG1}, v21, v24")
    g(f"v_add_u32 v{vG0}, {IMG0}, v{vG1}")
    g(f"s_mul_i32 s{sT}, s{sWV}, 5120")
    g(f"s_add_u32 s{sT}, s{sT}, {STG}")
    g(f"v_and_b32 v24, 31, v{vLane}")
    g(f"v_mul_u32_u24 v24, 80, v24")
    g(f"v_lshl_add_u32 v24, v20, 3, v24")
    g(f"v_add_u32 v{vSw}, s{sT}, v24")
    if o.g16:
        g(f"v_and_b32 v24, 15, v{vLane}")
        g(f"v_mul_u32_u24 v24, 80, v24")
        g(f"v_lshl_add_u32 v24, v25, 3, v24")
        g(f"v_add_u32 v{vSw}, s{sT}, v24")
    g(f"v_lshrrev_b32 v24, 2, v{vLane}")
    g(f"v_mul_u32_u24 v24, 80, v24")
    g(f"v_lshl_add_u32 v24, v23, 4, v24")
    g(f"v_add_u32 v{vSr}, s{sT}, v24")
    g(f"v_lshrrev_b32 v24, 4, v{vLane}")
    g(f"v_lshlrev_b32 v24, 19, v24")
    g(f"v_lshl_add_u32 v24, v22, 9, v24")
    g(f"v_lshl_add_u32 v24, v23, 4, v24")
    g(f"s_lshl_b32 s{sT}, s{sB}, 11")
    g(f"s_lshl_b32 s{sN}, s{sWV}, 6")
    g(f"s_add_u32 s{sT}, s{sT}, s{sN}")
    g(f"v_add_u32 v{vO}, s{sT}, v24")
    g("s_waitcnt lgkmcnt(0)")
    g("s_barrier")
    g.stamp(5)
    g.cstamp(16)
    g.c("================ GEMM: out^T tile = W^T (A) x agg^T (B); k-steps 0..7 of some tiles first")
    ldsq = []
    g0 = g

    class Track:
        def __init__(self):
            self.n = 0
            self.pos = {}
            self.waited = 0

        def op(self, text, name=None):
            g0(text)
            if text.startswith("ds_"):
                self.n += 1
                if name is not None:
                    self.pos[name] = self.n

        def need(self, name):
            p = self.pos[name]
            if p <= self.waited:
                return
            k = min(self.n - p, 15)
            g0(f"s_waitcnt lgkmcnt({k})")
            self.waited = self.n - k
    T = Track()
    if o.g16:
        PD, NBUF = o.gdist, 8
        NA = 2 * o.gfirst
        order = [(t, ks) for t in range(NA) for ks in range(4)]
        for t in range(10):
            order += [(t, ks) for ks in range(4 if t < NA else 0, 8)]
        def DT(t): return ACC + 8 * t
        FBR = [16, 20, 24, 28, 32, 36, 40, 44]
        OBT = [52, 56, 60, 64]

        def rdj(j):
            t, ks = order[j]
            base = vG0 if ks < 4 else vG1
            for tt in range(2):
                g(f"ds_read_b64_tr_b16 {v(FBR[j%NBUF]+2*tt,2)}, v{base} offset:{(ks%4)*10368 + tt*1296 + t*32}")
        lastj = {}
        for j, (t, ks) in enumerate(order):
            lastj[t] = j
        work = {}
        for n in range(10):
            i, k = 2 + n // 5, n % 5
            work.setdefault(n // 2, []).append(f"ds_write_b64 v{SA1+k}, {v(PKI+10*i+2*k,2)} offset:{(i-2)*ISTR}")
        jb = 4 * NA - PD - 1
        assert jb >= 5 + PD
        work.setdefault(jb, []).append("s_barrier")
        for t in range(10):
            st_ = lastj[t] + 2
            d, ob, so = DT(t), OBT[t % 4], 1280 * (t % 4)
            for dt in range(2):
                work.setdefault(st_ + dt, []).extend([
                    f"v_cvt_pk_bf16_f32 v{d+2*dt}, v{d+4*dt}, v{d+4*dt+1}",
                    f"v_cvt_pk_bf16_f32 v{d+2*dt+1}, v{d+4*dt+2}, v{d+4*dt+3}",
                    f"ds_write_b64 v{vSw}, {v(d+2*dt,2)} offset:{so+32*dt}"])
            work.setdefault(st_ + 1, []).append(f"ds_read_b128 {v(ob,4)}, v{vSr} offset:{so}")
            work.setdefault(st_ + 1 + PD + 1, []).append(("store", t))

        def dowork(j):
            for w in work.get(j, []):
                if isinstance(w, tuple):
                    g(f"buffer_store_dwordx4 {v(OBT[w[1] % 4],4)}, v{vO}, {s(OUT,4)}, 0 offen{o.stflag}")
                    g(f"v_add_u32 v{vO}, {4<<19}, v{vO}")
                else:
                    g(w)
        for j in range(PD):
            rdj(j)
        g("s_waitcnt vmcnt(8)")
        seen = set()
        for j, (t, ks) in enumerate(order):
            if j == 4 * NA:
                g("s_waitcnt vmcnt(0)")
            g(f"s_waitcnt lgkmcnt({2*min(PD-1, 79-j)})")
            for dt in range(2):
                cin = v(DT(t) + 4 * dt, 4) if t in seen else "0"
                g(f"v_mfma_f32_16x16x32_bf16 {v(DT(t)+4*dt,4)}, {a_(aW+8*ks+4*dt,4)}, {v(FBR[j%NBUF],4)}, {cin}")
            seen.add(t)
            if j + PD < 80:
                rdj(j + PD)
            dowork(j)
        g.nop(8)
        for j in sorted(work):
            if j >= 80:
                if any(isinstance(w, tuple) for w in work[j]):
                    g("s_waitcnt lgkmcnt(0)")
                dowork(j)
    else:
        PD, NBUF = o.gdist, 8
        NA = o.gfirst
        order = [(t, ks) for t in range(NA) for ks in range(8)]
        for t in range(5):
            order += [(t, ks) for ks in range(8 if t < NA else 0, 16)]
        def DT(t): return ACC + 16 * t
        FBR = [16, 20, 24, 28, 32, 36, 40, 44]
        OBT = [52, 60]

        def rdj(j):
            t, ks = order[j]
            base = vG0 if ks < 8 else vG1
            for tt in range(2):
                T.op(f"ds_read_b64_tr_b16 {v(FBR[j%NBUF]+2*tt,2)}, v{base} offset:{(ks%8)*5152 + tt*1288 + t*64}", ("f", j))
        lastj = {}
        for j, (t, ks) in enumerate(order):
            lastj[t] = j
        work = {}
        for n in range(10):
            i, k = 2 + n // 5, n % 5
            work.setdefault(n, []).append((f"ds_write_b64 v{SA1+k}, {v(PKI+10*i+2*k,2)} offset:{(i-2)*ISTR}", "img"))
        jb = 8 * NA - PD - 1
        assert jb >= 10
        work.setdefault(jb, []).append(("barrier", None))
        free = 0
        for t in range(5):
            st_ = max(lastj[t] + 4, free)
            d, ob, so = DT(t), OBT[t % 2], 2560 * (t % 2)
            for a_i in range(4):
                work.setdefault(st_ + a_i, []).extend([
                    (f"v_cvt_pk_bf16_f32 v{d+2*a_i}, v{d+4*a_i}, v{d+4*a_i+1}", None),
                    (f"v_cvt_pk_bf16_f32 v{d+2*a_i+1}, v{d+4*a_i+2}, v{d+4*a_i+3}", None),
                    (f"ds_write_b64 v{vSw}, {v(d+2*a_i,2)} offset:{so+16*a_i}", None)])
            for hf in range(2):
                work.setdefault(st_ + 4 + hf, []).append((f"ds_read_b128 {v(ob+4*hf,4)}, v{vSr} offset:{so+1280*hf}", ("o", t, hf)))
                work.setdefault(st_ + 4 + hf + PD + 1, []).append(("store", (t, hf)))
            free = st_ + 6

        def dowork(j):
            for w, name in work.get(j, []):
                if w == "store":
                    t, hf = name
                    T.need(("o", t, hf))
                    g(f"buffer_store_dwordx4 {v(OBT[t%2]+4*hf,4)}, v{vO}, {s(OUT,4)}, 0 offen{o.stflag}")
                    g(f"v_add_u32 v{vO}, {4<<19}, v{vO}")
                elif w == "barrier":
                    T.need("img")
                    g("s_barrier")
                else:
                    T.op(w, name)
        for j in range(PD):
            rdj(j)
        g("s_waitcnt vmcnt(8)")
        seen = set()
        for j, (t, ks) in enumerate(order):
            if j == 8 * NA:
                g("s_waitcnt vmcnt(0)")
            T.need(("f", j))
            cin = v(DT(t), 16) if t in seen else "0"
            seen.add(t)
            g(f"v_mfma_f32_32x32x16_bf16 {v(DT(t),16)}, {a_(aW+4*ks,4)}, {v(FBR[j%NBUF],4)}, {cin}")
            if j + PD < 80:
                rdj(j + PD)
            dowork(j)
        g.nop(12)
        for j in sorted(work):
            if j >= 80:
                dowork(j)
    if o.stamps:
        g.stamp(10)
        g.cstamp(17)
        g("s_waitcnt vmcnt(0)")
        g.stamp(7)
        g(f"s_lshl_b32 s{sT}, s{sB}, 3")
        g(f"s_add_u32 s{sT}, s{sT}, s{sWV}")
        g(f"s_lshl_b32 s{sT}, s{sT}, 8")
        g(f"s_add_u32 s{sT}, s{sT}, {WS_STAMP}")
        g(f"v_lshlrev_b32 v16, 2, v{vLane}")
        g(f"v_add_u32 v16, s{sT}, v16")
        g(f"buffer_store_dword v{vStamp}, v16, {s(WS,4)}, 0 offen")
    if o.amp:
        i0, i1 = [int(x) for x in o.amp.split(",")]
        g(f"v_readlane_b32 s60, v{vStamp}, {i0}")
        g(f"v_readlane_b32 s61, v{vStamp}, {i1}")
        g(f"v_readlane_b32 s62, v{vStamp}, 7")
        g("s_sub_u32 s61, s61, s60")
        g("s_lshl_b32 s61, s61, 2")
        g.label("L_amp")
        g("s_memrealtime s[4:5]")
        g("s_waitcnt lgkmcnt(0)")
        g("s_sub_u32 s4, s4, s62")
        g("s_cmp_lt_u32 s4, s61")
        g("s_cbranch_scc1 L_amp")
    g.label("L_end")
    g("s_endpgm")
    return g.L


HEADER = open("/code/" + NAME + ".s.ref").read().split("; Override launch")[0]


def kd(name, vg, sg, acc):
    return f""".section .rodata,"a"
.p2align 6
.amdhsa_kernel {name}
  .amdhsa_next_free_vgpr {vg}
  .amdhsa_next_free_sgpr {sg}
  .amdhsa_accum_offset {acc}
  .amdhsa_group_segment_fixed_size 0
  .amdhsa_kernarg_size 88
  .amdhsa_user_sgpr_count 2
  .amdhsa_user_sgpr_kernarg_segment_ptr 1
  .amdhsa_system_sgpr_workgroup_id_x 1
  .amdhsa_float_denorm_mode_32 3
.end_amdhsa_kernel
"""


def emit(o):
    out = HEADER
    out += f"; @launch grid=(256,1,1) block=(512,1,1) lds={LDS_BYTES}\n"
    out += "; generated by dev/gen.py\n"
    out += '.amdgcn_target "amdgcn-amd-amdhsa--gfx950"\n.text\n'
    out += f".globl {NAME}_kernel\n.p2align 8\n.type {NAME}_kernel,@function\n{NAME}_kernel:\n"
    out += "\n".join(build(o)) + "\n"
    out += kd(NAME + "_kernel", 256, 102, 160)
    open(o.o, "w").write(out)


if __name__ == "__main__":
    ap = argparse.ArgumentParser()
    ap.add_argument("-o", default="/code/" + NAME + ".s")
    ap.add_argument("--stamps", action="store_true")
    ap.add_argument("--pf", default="0,0,0")
    ap.add_argument("--k1ld", default="")
    ap.add_argument("--eald", default="")
    ap.add_argument("--stflag", default=" sc1")
    ap.add_argument("--R", type=int, default=3)
    ap.add_argument("--nostore", action="store_true")
    ap.add_argument("--gdist", type=int, default=5)
    ap.add_argument("--gfirst", type=int, default=3)
    ap.add_argument("--wat", type=int, default=8)
    ap.add_argument("--g16", type=int, default=0)
    ap.add_argument("--wearly", type=int, default=0)
    ap.add_argument("--wflag", default=" sc1")
    ap.add_argument("--pay", default="0,1,2,3")
    ap.add_argument("--codepf", type=int, default=0)
    ap.add_argument("--prewait", type=int, default=1)
    ap.add_argument("--probe", type=int, default=0)
    ap.add_argument("--sleep", type=int, default=4)
    ap.add_argument("--tlb", type=int, default=0)
    ap.add_argument("--shpf", default="2,3,0")
    ap.add_argument("--diagsleep", type=int, default=0)
    ap.add_argument("--pubflag", default=" sc1")
    ap.add_argument("--amp", default="", help="diagnostic: spin 4x the time between two stamps at the end")
    emit(ap.parse_args())
```

```python
import sys, argparse

NAME = "standalone__tensor_product_equiv_mace__graph"
N, E = 10000, 160000

RING = 0
POOLCAP = 1024
PEA = 65536
PSH = PEA + POOLCAP * 32
META = PSH + POOLCAP * 8
ZERO = META + (POOLCAP + 64) * 4
FLAG = ZERO + 16
PCNT = FLAG + 16
IMGH = 41472
IMG0 = PCNT + 256
HIST = IMG0
DEG = HIST + 60 * 64
POOL = HIST + 59 * 64
OFF = HIST + 4096
CAND = OFF + 4096
PIMG = 0
WRIMG = 32768
STG = IMGH
LDS_BYTES = 153600
assert IMG0 + IMGH <= LDS_BYTES and META % 16 == 0 and HIST % 16 == 0 and STG % 16 == 0
WS_EP = 0
WS_FW = 4096
WS_WF = 1 << 20
WS_STAMP = 4 << 20
WS_CELLS = 8 << 20
ROWB = 64 * 128 + 128
WS_EXT = 16 << 20
WS_BYTES = 20 << 20
assert WS_CELLS + 256 * ROWB <= WS_EXT

sB, sWV = 2, 3
X, SRC, DST, SH, EA, OUT, WS = 8, 12, 16, 20, 24, 28, 32
sM = [36, 38, 40, 42]
sPB, sQ, sDm, sNomatch = 44, 45, 46, 47
sTag, sCand, sPM, sWfl, sWld = 48, 49, 50, 83, 81
WO, WR, CG = 88, 92, 96
sKskip, sT, sN, sC = 52, 53, 54, 55
sSlot = 56
sBase, sRem, sRing = 61, 62, 63
sMa, sMb = 64, 68
sOff, sRound, sMore, sCnt, sL, sMask = 76, 77, 78, 79, 80, 82
sKey = 84
sAddr, sLimit = 64, 65

sRk, sLowM = 100, 74
PATTERNS = {
    (39, 100): [[6, 13, 23, 26, 31], [2, 11, 24, 28, 36], [5, 14, 21, 27, 32], [4, 10, 19, 25, 37], [3, 16, 20, 29, 33], [0, 12, 30, 34, 38], [7, 15, 17, 22, 35], [1, 8, 9, 18, 39]],
    (40, 100): [[0, 19, 24, 30, 39], [7, 12, 15, 28, 32], [2, 11, 18, 25, 38], [5, 8, 20, 29, 34], [6, 13, 16, 26, 33], [3, 10, 21, 27, 35], [4, 14, 17, 22, 36], [1, 9, 23, 31, 37]],
    (39, 103): [[0, 19, 24, 30, 38], [3, 12, 17, 31, 33], [6, 9, 14, 29, 35], [4, 13, 20, 26, 32], [2, 16, 23, 28, 36], [5, 15, 21, 27, 34], [7, 11, 18, 25, 37], [1, 8, 10, 22, 39]],
    (40, 103): [[0, 11, 26, 30, 39], [1, 15, 22, 28, 34], [3, 13, 19, 25, 32], [2, 8, 17, 31, 36], [5, 14, 18, 29, 33], [4, 12, 21, 27, 35], [7, 9, 20, 23, 37], [6, 10, 16, 24, 38]],
    (39, 105): [[0, 15, 20, 34, 38], [4, 9, 22, 25, 33], [5, 12, 17, 27, 31], [6, 11, 19, 23, 32], [3, 16, 21, 29, 36], [2, 14, 26, 28, 37], [7, 13, 18, 30, 35], [1, 8, 10, 24, 39]],
    (40, 105): [[0, 19, 21, 26, 39], [1, 10, 18, 30, 36], [6, 9, 16, 24, 32], [4, 8, 15, 25, 35], [3, 11, 17, 31, 38], [5, 14, 23, 27, 33], [7, 12, 20, 28, 34], [2, 13, 22, 29, 37]],
}
for _p in PATTERNS.values():
    assert sorted(sum(_p, [])) == list(range(40))

vLane, vDma0, vDma1, vTr, vEa1, vEa2, vMul1, vMul2, vSh, vMulS, vOwner, vStamp, vMetaA = range(1, 14)
ACC = 80
def acc(k, i, w): return ACC + 16 * k + 4 * i + w
aWR, aW = 0, 32
vCG = 14


class Gen:
    def __init__(self, stamps=False):
        self.L = []
        self.stamps = stamps
        self.nlab = 0

    def __call__(self, s):
        self.L.append("    " + s)

    def label(self, s):
        self.L.append(s + ":")

    def c(self, s):
        self.L.append("    ; " + s)

    def newlab(self, p="L"):
        self.nlab += 1
        return f"{p}_{self.nlab}"

    def nop(self, n):
        while n > 0:
            k = min(n, 16)
            self(f"s_nop {k-1}")
            n -= k

    def cstamp(self, i):
        if not self.stamps:
            return
        self(f"s_memtime s[4:5]")
        self("s_waitcnt lgkmcnt(0)")
        self(f"v_writelane_b32 v{vStamp}, s4, {i}")

    def stamp(self, i):
        if not self.stamps:
            return
        self(f"s_memrealtime s[4:5]")
        self("s_waitcnt lgkmcnt(0)")
        self(f"v_writelane_b32 v{vStamp}, s4, {i}")


def srd(g, d, ptr, nbytes):
    g(f"s_mov_b32 s{d}, s{ptr}")
    g(f"s_mov_b32 s{d+1}, s{ptr+1}")
    g(f"s_mov_b32 s{d+2}, {nbytes}")
    g(f"s_mov_b32 s{d+3}, 0x00020000")


def v(a, n=1):
    return f"v{a}" if n == 1 else f"v[{a}:{a+n-1}]"


def a_(a, n=1):
    return f"a{a}" if n == 1 else f"a[{a}:{a+n-1}]"


def s(a, n=1):
    return f"s{a}" if n == 1 else f"s[{a}:{a+n-1}]"


def build(o):
    g = Gen(o.stamps)
    R = o.R
    cM, cE, cX, cK, cR = 16, 20, 24, 28, 32
    vL2, vP16, vP4, vCand = 36, 37, 38, 39
    pfs = [int(x) for x in o.pf.split(",")]
    vPf = 79

    def pf(n):
        for _ in range(n):
            g(f"buffer_load_dwordx4 {v(ACC+76,4)}, v{vPf}, {s(X,4)}, 0 offen")
            g(f"v_add_u32 v{vPf}, {256*1024}, v{vPf}")
    g(f"s_cmp_ge_u32 s{sB}, 256")
    g("s_cbranch_scc1 L_end")
    g("s_load_dwordx2 s[84:85], s[0:1], 80")
    g("s_load_dwordx16 s[64:79], s[0:1], 0")
    g("s_load_dwordx2 s[80:81], s[0:1], 64")
    g(f"v_and_b32 v{vLane}, 63, v0")
    g(f"v_lshrrev_b32 v60, 6, v0")
    g(f"v_mov_b32 v{vStamp}, 0")
    g(f"v_readfirstlane_b32 s{sWV}, v60")
    g(f"s_and_b32 s{sC}, s{sB}, 63")
    g(f"s_and_b32 s{sN}, s{sB}, 192")
    g(f"s_mul_i32 s{sT}, s{sC}, 10000")
    g(f"v_lshlrev_b32 v63, 4, v0")
    g(f"v_add_u32 v60, s{sT}, v63")
    g(f"s_add_u32 s{sT}, s{sT}, 8192")
    g(f"v_lshl_add_u32 v61, v0, 2, s{sT}")
    g(f"s_lshl_b32 s{sT}, s{sN}, 1")
    g(f"v_mov_b32 v62, s{sT}")
    g("s_waitcnt lgkmcnt(0)")
    pD, pS, pH = 16, 24, 32
    srd(g, DST, 68, E * 4)
    g(f"buffer_load_dwordx4 {v(pD,4)}, v60, {s(DST,4)}, 0 offen{o.k1ld}")
    g(f"buffer_load_dword v{pD+4}, v61, {s(DST,4)}, 0 offen{o.k1ld}")
    srd(g, SRC, 66, E * 4)
    g(f"buffer_load_dwordx4 {v(pS,4)}, v60, {s(SRC,4)}, 0 offen{o.k1ld}")
    g(f"buffer_load_dword v{pS+4}, v61, {s(SRC,4)}, 0 offen{o.k1ld}")
    srd(g, WS, 84, WS_BYTES)
    g(f"buffer_load_dword v42, v62, {s(WS,4)}, 0 offen sc1")
    srd(g, SH, 70, E * 8)
    g.stamp(0)
    g.c("---- LDS init: entry image = empty, counters, HIST, ZERO block, FLAG")
    for k in range(4):
        g(f"v_mov_b32 v{72+k}, -1")
    for i in range(2):
        g(f"ds_write_b128 v63, v[72:75] offset:{PIMG+8192*i}")
    g("v_mov_b32 v68, 0")
    g("v_mov_b32 v69, 0")
    g(f"v_lshlrev_b32 v60, 3, v0")
    g(f"v_add_u32 v60, {HIST}, v60")
    g("ds_write_b64 v60, v[68:69]")
    g(f"v_min_u32 v60, 35, v{vLane}")
    g(f"v_lshlrev_b32 v60, 3, v60")
    g(f"v_add_u32 v60, {ZERO}, v60")
    g("ds_write_b64 v60, v[68:69]")
    srd(g, X, 64, N * 2048)
    srd(g, EA, 72, E * 32)
    srd(g, OUT, 80, N * 2048)
    srd(g, CG, 74, 128)
    srd(g, WR, 76, 8192)
    srd(g, WO, 78, 131072)
    g(f"s_lshl_b32 s{sRing}, s{sWV}, 13")
    g(f"s_mov_b32 s{sKskip}, 0")
    g(f"s_mov_b32 s{sRound}, 0")
    g(f"s_mov_b32 s{sMask}, 0x3fff00")
    g(f"s_mov_b32 s{sWfl}, {WS_BYTES}")
    g(f"s_mov_b32 s{sWld}, {o.wat}")
    g(f"s_lshl_b32 s{sCand}, s{sWV}, 10")
    g(f"s_add_u32 s{sCand}, s{sCand}, {CAND}")
    g(f"s_movk_i32 s{sT}, 452")
    g(f"v_cmp_gt_u32 {s(sPM,2)}, s{sT}, v0")
    g(f"v_lshlrev_b32 v43, 22, v0")
    g(f"v_lshlrev_b32 v59, 20, v0")
    g("v_mov_b32 v58, 1")
    g("s_waitcnt lgkmcnt(0)")
    g("s_barrier")
    g.c("---- weights: cg operand, w_r image, this wave's share of the w_out transposition")
    g(f"v_and_b32 v60, 3, v{vLane}")
    g(f"v_lshlrev_b32 v61, 5, v60")
    g(f"v_lshrrev_b32 v66, 4, v{vLane}")
    g(f"v_lshl_add_u32 v61, v66, 1, v61")
    for q in range(4):
        g(f"buffer_load_ushort v{44+q}, v61, {s(CG,4)}, 0 offen offset:{q*8}")
    g(f"s_lshl_b32 s{sT}, s{sWV}, 10")
    g(f"s_add_u32 m0, s{sT}, {WRIMG}")
    g(f"v_bfe_u32 v62, v{vLane}, 1, 2")
    g(f"v_bfe_u32 v64, v{vLane}, 3, 1")
    g(f"v_lshl_add_u32 v62, v64, 3, v62")
    g(f"v_bfe_u32 v64, v{vLane}, 4, 1")
    g(f"v_lshl_add_u32 v62, v64, 2, v62")
    g(f"v_lshlrev_b32 v62, 9, v62")
    g(f"v_lshrrev_b32 v64, 5, v{vLane}")
    g(f"v_lshl_add_u32 v62, v64, 5, v62")
    g(f"v_and_b32 v64, 1, v{vLane}")
    g(f"v_lshl_add_u32 v62, v64, 4, v62")
    g(f"s_lshl_b32 s{sT}, s{sWV}, 6")
    g(f"buffer_load_dwordx4 v62, {s(WR,4)}, s{sT} offen lds")
    g(f"v_lshlrev_b32 v64, 4, v{vLane}")
    nlate = 5
    g(f"s_lshr_b32 s{sT}, s{sB}, 3")
    g(f"s_lshl3_add_u32 s{sT}, s{sT}, s{sWV}")
    g(f"s_lshl_b32 s{sT}, s{sT}, 10")
    g(f"v_add_u32 v{vPf}, s{sT}, v64")
    if o.codepf:
        g.c("read the rest of this kernel's own code once so that instruction fetches find it in L2")
        g("s_getpc_b64 s[4:5]")
        g.label("L_pc")
        g(f"v_lshlrev_b32 v65, 7, v{vLane}")
        g(f"s_cmp_ge_u32 s{sWV}, {o.codepf}")
        g(f"s_cselect_b32 s{sT}, 0, s{sRing}")
        g(f"v_add_u32 v65, s{sT}, v65")
        g(f"v_min_u32 v65, L_end-L_pc, v65")
        g(f"global_load_dword v{ACC+76}, v65, s[4:5]")
        nlate += 1
    def shpf(n):
        g.c("sh -> L2: the 32 workgroups b%8==const (one XCD when dealt round-robin; speed only) read all of it")
        for i in range(n):
            g(f"buffer_load_dwordx4 {v(ACC+76,4)}, v{vPf}, {s(SH,4)}, 0 offen")
            g(f"v_add_u32 v{vPf}, {256*1024}, v{vPf}")
    if o.eapf:
        g.c("edge_attr: every workgroup streams 1/256 of it once (one dword per line) so that the gathers find it on-die")
        g(f"s_mul_i32 s{sT}, s{sB}, 20000")
        g(f"s_andn2_b32 s{sT}, s{sT}, 127")
        g(f"v_lshl_add_u32 v65, v0, 7, s{sT}")
        g(f"s_cmp_ge_u32 s{sWV}, 3")
        g(f"s_cselect_b32 s{sT}, 0x40000000, 0")
        g(f"v_add_u32 v65, s{sT}, v65")
        g(f"buffer_load_dword v{ACC+79}, v65, {s(EA,4)}, 0 offen")
        nlate += 1
    shs = [int(x) for x in o.shpf.split(",")]
    shpf(shs[0])
    nlate += shs[0]
    pf(pfs[0])
    nlate += pfs[0]
    if o.tlb:
        g.c("address-translation warm-up: one line per stride of x, out, edge_attr")
        g(f"v_lshlrev_b32 v64, {o.tlb}, v0")
        g(f"buffer_load_dword v{ACC+76}, v64, {s(X,4)}, 0 offen")
        g(f"buffer_load_dword v{ACC+77}, v64, {s(OUT,4)}, 0 offen")
        g(f"buffer_load_dword v{ACC+78}, v64, {s(EA,4)}, 0 offen")
        nlate += 3
    g.c("---- persistent per-lane constants")
    g(f"v_and_b32 v61, 7, v{vLane}")
    g(f"v_bfe_u32 v65, v{vLane}, 3, 1")
    g(f"v_lshlrev_b32 v65, 9, v65")
    g(f"v_lshl_add_u32 v65, v66, 7, v65")
    g(f"v_lshl_add_u32 v{vDma0}, v61, 4, v65")
    g(f"v_xor_b32 v61, 4, v61")
    g(f"v_lshl_add_u32 v{vDma1}, v61, 4, v65")
    g(f"v_bfe_u32 v60, v{vLane}, 2, 2")
    g(f"v_bfe_u32 v62, v{vLane}, 1, 1")
    g(f"v_lshl_add_u32 v62, v66, 1, v62")
    g(f"v_lshrrev_b32 v63, 1, v60")
    g(f"v_lshlrev_b32 v64, 2, v63")
    g(f"v_xor_b32 v62, v62, v64")
    g(f"v_and_b32 v64, 1, v60")
    g(f"v_lshl_add_u32 v62, v64, 3, v62")
    g(f"v_lshlrev_b32 v62, 4, v62")
    g(f"v_lshl_add_u32 v62, v63, 10, v62")
    g(f"v_and_b32 v64, 1, v{vLane}")
    g(f"v_lshl_add_u32 v62, v64, 3, v62")
    g(f"v_add_u32 v{vTr}, s{sRing}, v62")
    g(f"v_lshrrev_b32 v61, 5, v{vLane}")
    g(f"v_mov_b32 v63, 32")
    g(f"v_cmp_eq_u32 vcc, v60, v61")
    g(f"v_add_u32 v61, 2, v61")
    g(f"v_and_b32 v64, 3, v{vLane}")
    g(f"v_cndmask_b32 v{vMul1}, 0, v63, vcc")
    g(f"v_cmp_eq_u32 vcc, v60, v61")
    g(f"v_cmp_eq_u32 s[4:5], v64, v66")
    g(f"v_mov_b32 v65, 8")
    g(f"v_cndmask_b32 v{vMul2}, 0, v63, vcc")
    g(f"v_cndmask_b32 v{vMulS}, 0, v65, s[4:5]")
    CE = 70
    g(f"v_lshrrev_b32 v68, 3, v0")
    g(f"v_and_b32 v69, 7, v0")
    g(f"v_lshlrev_b32 v69, 4, v69")
    g(f"v_add_u32 v61, s{sN}, v68")
    g(f"s_movk_i32 s{sDm}, {ROWB}")
    g(f"v_mad_u32_u24 v64, v61, s{sDm}, v69")
    g(f"s_lshl_b32 s{sQ}, s{sC}, 7")
    g(f"s_add_u32 s{sT}, s{sQ}, {WS_CELLS}")
    g(f"v_add_u32 v64, s{sT}, v64")
    g(f"v_lshl_add_u32 v65, v61, 13, v69")
    g(f"s_add_u32 s{sT}, s{sQ}, {WS_EXT}")
    g(f"v_add_u32 v65, s{sT}, v65")
    g(f"v_lshlrev_b32 v61, 4, v0")
    g(f"s_mov_b32 s{sT}, {PCNT}")
    g(f"v_lshl_add_u32 v67, v68, 2, s{sT}")
    g.c("================ producer: bin this chunk's edges of the group's buckets")
    PB, PR = 48, 53
    PMK = [64, 66, 68, 70, 72]
    g(f"s_waitcnt vmcnt({nlate+3})")
    g.stamp(11)
    for k in range(5):
        g(f"v_and_b32 v{PB+k}, 255, v{pD+k}")
        g(f"v_subrev_u32 v{PB+k}, s{sN}, v{PB+k}")
        g(f"v_cmp_gt_u32 {s(PMK[k],2)}, 64, v{PB+k}")
        g(f"v_lshl_add_u32 v60, v{PB+k}, 2, s{sT}")
        if k == 4:
            g(f"s_and_b64 {s(PMK[k],2)}, {s(PMK[k],2)}, {s(sPM,2)}")
        g(f"s_mov_b64 exec, {s(PMK[k],2)}")
        g(f"ds_add_rtn_u32 v{PR+k}, v60, v58")
        g("s_mov_b64 exec, -1")
    g(f"s_waitcnt vmcnt({nlate})")
    g(f"v_readfirstlane_b32 s{sTag}, v42")
    shpf(shs[1])
    for k in range(5):
        g(f"v_bfe_u32 v{pD+k}, v{pD+k}, 8, 6")
        g(f"v_min_u32 v{pD+k}, 47, v{pD+k}")
        g(f"v_min_u32 v{pS+k}, {N-1}, v{pS+k}")
        g(f"v_lshl_or_b32 v{pD+k}, v{pS+k}, 6, v{pD+k}")
        if k < 4:
            g(f"v_add_u32 v{pS+k}, {k<<20}, v43")
        else:
            g(f"v_add_u32 v{pS+k}, {2048<<20}, v59")
        g(f"v_or_b32 v{pD+k}, v{pD+k}, v{pS+k}")
        g(f"v_lshlrev_b32 v{PB+k}, 7, v{PB+k}")
    g("v_mov_b32 v59, -2")
    g(f"s_add_u32 s{sTag}, s{sTag}, 1")
    g(f"s_movk_i32 s{sT}, {8192 - 24*16}")
    g("s_waitcnt lgkmcnt(0)")
    for k in range(5):
        g(f"v_cmp_gt_u32 vcc, 31, v{PR+k}")
        g(f"v_min_u32 v{PR+k}, 31, v{PR+k}")
        g(f"v_mul_u32_u24 v32, 43, v{PR+k}")
        g(f"v_cndmask_b32 v{pD+k}, v59, v{pD+k}, vcc")
        g(f"v_lshrrev_b32 v32, 7, v32")
        g(f"v_cmp_gt_u32 vcc, 24, v{PR+k}")
        g(f"v_add_lshl_u32 v32, v32, v{PR+k}, 2")
        g(f"v_lshl_add_u32 v33, v{PR+k}, 4, s{sT}")
        g(f"v_cndmask_b32 v32, v33, v32, vcc")
        g(f"v_add_u32 v{PB+k}, v{PB+k}, v32")
        g(f"s_mov_b64 exec, {s(PMK[k],2)}")
        g(f"ds_write_b32 v{PB+k}, v{pD+k} offset:{PIMG}")
        g("s_mov_b64 exec, -1")
    g("s_waitcnt lgkmcnt(0)")
    g("s_barrier")
    g(f"ds_read_b128 v[16:19], v61 offset:{PIMG}")
    g("ds_read_b32 v67, v67")
    g("s_waitcnt lgkmcnt(1)")
    g(f"v_mov_b32 v19, s{sTag}")
    g(f"buffer_store_dwordx4 v[16:19], v64, {s(WS,4)}, 0 offen{o.pubflag}")
    g("s_waitcnt lgkmcnt(0)")
    g("v_cmp_lt_u32 vcc, 23, v67")
    g("s_cbranch_vccz L_noup")
    g.c("cells with 24 or more entries also publish entries 24..31")
    g(f"ds_read_b128 v[28:31], v61 offset:{PIMG+8192}")
    g("s_waitcnt lgkmcnt(0)")
    g(f"v_mov_b32 v31, s{sTag}")
    g("s_mov_b64 exec, vcc")
    g(f"buffer_store_dwordx4 v[28:31], v65, {s(WS,4)}, 0 offen sc1")
    g("s_mov_b64 exec, -1")
    g.label("L_noup")
    g.stamp(12)
    shpf(shs[2])
    pf(pfs[1])
    g.c("---- waves 0,1: fragment gw = 2*chunk+wave of w_out (N-tile gw>>4, k-step gw&15), loads")
    g(f"s_cmp_ge_u32 s{sWV}, 2")
    g("s_cbranch_scc1 L_nowf")
    g(f"s_lshl1_add_u32 s{sPB}, s{sC}, s{sWV}")
    if o.g16:
        g(f"s_bfe_u32 s{sT}, s{sPB}, {1 | (3 << 16)}")
        g(f"s_lshl_b32 s{sT}, s{sT}, 14")
        g(f"s_lshr_b32 s{sOff}, s{sPB}, 4")
        g(f"s_lshl_b32 s{sOff}, s{sOff}, 6")
        g(f"s_add_u32 s{sT}, s{sT}, s{sOff}")
        g(f"s_and_b32 s{sOff}, s{sPB}, 1")
        g(f"s_lshl_b32 s{sOff}, s{sOff}, 5")
        g(f"s_add_u32 s{sT}, s{sT}, s{sOff}")
        g(f"v_lshrrev_b32 v60, 4, v{vLane}")
        g(f"v_lshlrev_b32 v60, 12, v60")
        g(f"v_and_b32 v61, 15, v{vLane}")
        g(f"v_lshl_add_u32 v60, v61, 1, v60")
        g(f"v_add_u32 v60, s{sT}, v60")
    else:
        g(f"s_and_b32 s{sT}, s{sPB}, 15")
        g(f"s_lshl_b32 s{sT}, s{sT}, 13")
        g(f"s_lshr_b32 s{sOff}, s{sPB}, 4")
        g(f"s_lshl_b32 s{sOff}, s{sOff}, 6")
        g(f"s_add_u32 s{sT}, s{sT}, s{sOff}")
        g(f"v_lshrrev_b32 v60, 5, v{vLane}")
        g(f"v_lshlrev_b32 v60, 12, v60")
        g(f"v_and_b32 v61, 31, v{vLane}")
        g(f"v_lshl_add_u32 v60, v61, 1, v60")
        g(f"v_add_u32 v60, s{sT}, v60")
    for q in range(8):
        g(f"buffer_load_ushort v{32+q}, v60, {s(WO,4)}, 0 offen offset:{q*512}")
    g.label("L_nowf")
    vWb = 77
    g(f"v_lshrrev_b32 v60, 5, v{vLane}")
    g(f"v_bfe_u32 v61, v{vLane}, 2, 2")
    g(f"v_bfe_u32 v62, v{vLane}, 4, 1")
    g(f"v_and_b32 v63, 3, v{vLane}")
    g(f"v_lshlrev_b32 v{vWb}, 7, v62")
    g(f"v_lshl_add_u32 v{vWb}, v61, 5, v{vWb}")
    g(f"v_lshl_add_u32 v{vWb}, v60, 9, v{vWb}")
    g(f"v_lshl_add_u32 v{vWb}, v63, 3, v{vWb}")
    g(f"s_mul_i32 s{sT}, s{sB}, {ROWB}")
    g(f"s_add_u32 s{sT}, s{sT}, {WS_CELLS}")
    g(f"v_lshl_add_u32 v{CE}, v0, 4, s{sT}")
    g(f"s_lshl_b32 s{sT}, s{sB}, 13")
    g(f"s_add_u32 s{sT}, s{sT}, {WS_EXT}")
    g(f"v_lshl_add_u32 v{CE+1}, v0, 4, s{sT}")
    g(f"v_mul_u32_u24 v73, 2500, v68")
    g.c("assignment pattern of this wave (workgroups < 16 own 40 nodes, the others 39)")
    le = g.newlab()
    for n in (40, 39):
        ln = g.newlab()
        if n == 40:
            g(f"s_cmp_ge_u32 s{sB}, 16")
            g(f"s_cbranch_scc1 {ln}")
        pat = PATTERNS[(n, o.bias)]
        low = 0
        for w in range(8):
            pk = sum(r << (6 * k) for k, r in enumerate(pat[w]))
            op = "s_mov_b32" if w == 0 else "s_cmov_b32"
            if w:
                g(f"s_cmp_eq_u32 s{sWV}, {w}")
            g(f"{op} s{sRk}, {pk}")
            g(f"{op} s{sLowM}, {low & 0xffffffff}")
            g(f"{op} s{sLowM+1}, {low >> 32}")
            low |= sum(1 << r for r in pat[w])
        if n == 40:
            g(f"s_branch {le}")
            g.label(ln)
    g.label(le)
    for r in range(ACC, ACC + 76, 2):
        g(f"v_mov_b64 {v(r,2)}, 0")
    g.c("================ consumer: fetch this wave's entries until every tag matches")
    EN = [48, 49, 50, 52]
    g.stamp(13)
    g("s_mov_b64 s[6:7], -1")
    g(f"s_mov_b32 s{sC}, 0")
    if o.prewait:
        g("s_waitcnt vmcnt(0)")
    if o.prewait == 2:
        g("s_barrier")
    g.stamp(14)
    g.label("L_poll")
    g("s_mov_b64 exec, s[6:7]")
    g(f"buffer_load_dwordx4 v[48:51], v{CE}, {s(WS,4)}, 0 offen sc1")
    g("s_mov_b64 exec, -1")
    g("s_waitcnt vmcnt(0)")
    g(f"v_cmp_ne_u32 s[6:7], s{sTag}, v51")
    g("s_cmp_eq_u64 s[6:7], 0")
    g("s_cbranch_scc1 L_got")
    g(f"s_sleep {o.sleep}")
    g(f"s_add_u32 s{sC}, s{sC}, 1")
    g(f"s_cmp_lt_u32 s{sC}, 0x400000")
    g("s_cbranch_scc1 L_poll")
    g("s_endpgm")
    g.label("L_got")
    g.stamp(1)
    for k in range(3):
        g(f"v_cmp_gt_u32 {s(sM[k],2)}, -2, v{EN[k]}")
    g(f"v_mov_b32 v{EN[3]}, -1")
    g(f"s_mov_b64 {s(sM[3],2)}, 0")
    g(f"s_mov_b32 s{sT}, 0x80808080")
    g(f"s_and_b32 s6, s{sM[2]}, s{sT}")
    g(f"s_and_b32 s7, s{sM[2]+1}, s{sT}")
    g("s_cmp_eq_u64 s[6:7], 0")
    g("s_cbranch_scc1 L_noext")
    g.c("rare: entries 24..31 of the full cells")
    g("s_lshr_b64 s[6:7], s[6:7], 7")
    g("s_mul_i32 s6, s6, 255")
    g("s_mul_i32 s7, s7, 255")
    g(f"v_mov_b32 v55, s{sTag}")
    g.label("L_poll2")
    g("s_mov_b64 exec, s[6:7]")
    g(f"buffer_load_dwordx4 v[52:55], v{CE+1}, {s(WS,4)}, 0 offen sc1")
    g("s_mov_b64 exec, -1")
    g("s_waitcnt vmcnt(0)")
    g(f"v_cmp_ne_u32 vcc, s{sTag}, v55")
    g("s_cbranch_vccz L_got2")
    g("s_sleep 1")
    g(f"s_add_u32 s{sC}, s{sC}, 1")
    g(f"s_cmp_lt_u32 s{sC}, 0x400000")
    g("s_cbranch_scc1 L_poll2")
    g("s_endpgm")
    g.label("L_got2")
    g(f"v_cmp_gt_u32 {s(sM[3],2)}, -2, v{EN[3]}")
    g.label("L_noext")
    g(f"v_cmp_eq_u32 vcc, -2, v{EN[3]}")
    NK = [64, 65, 66, 67]
    for k in range(4):
        g(f"s_bcnt1_i32_b64 s{NK[k]}, {s(sM[k],2)}")
    g(f"s_add_u32 s65, s65, s64")
    g(f"s_add_u32 s66, s66, s65")
    g(f"s_add_u32 s{sCnt}, s67, s66")
    g(f"v_mov_b32 v61, s{sCnt}")
    g(f"v_mov_b32 v60, {POOL}")
    g("s_mov_b64 exec, 1")
    g("ds_add_rtn_u32 v61, v60, v61")
    g("s_mov_b64 exec, -1")
    PO = 62
    for k in range(4):
        g(f"v_mbcnt_lo_u32_b32 v{PO+k}, s{sM[k]}, 0")
        g(f"v_mbcnt_hi_u32_b32 v{PO+k}, s{sM[k]+1}, v{PO+k}")
        if k:
            g(f"v_add_u32 v{PO+k}, s{NK[k-1]}, v{PO+k}")
        g(f"v_lshrrev_b32 v{cE+k}, 20, v{EN[k]}")
        g(f"v_add_u32 v{cE+k}, v{cE+k}, v73")
        g(f"v_lshl_add_u32 v66, v{PO+k}, 2, s{sCand}")
        g(f"s_mov_b64 exec, {s(sM[k],2)}")
        g(f"ds_write_b32 v66, v{cE+k}")
        g("s_mov_b64 exec, -1")
        g(f"v_lshlrev_b32 v{cX+k}, 2, v{EN[k]}")
        g(f"v_and_b32 v{cX+k}, s{sMask}, v{cX+k}")
        g(f"v_and_b32 v{cM+k}, 63, v{EN[k]}")
    g(f"v_lshl_or_b32 v{vCG}, v45, 16, v44")
    g(f"v_lshl_or_b32 v{vCG+1}, v47, 16, v46")
    g(f"v_mov_b64 {v(ACC+76,2)}, 0")
    g(f"v_mov_b64 {v(ACC+78,2)}, 0")
    lab = g.newlab()
    g(f"s_cmp_ge_u32 s{sWV}, 2")
    g(f"s_cbranch_scc1 {lab}")
    for q in range(4):
        g(f"v_lshl_or_b32 v{56+q}, v{33+2*q}, 16, v{32+2*q}")
    g(f"s_lshl_b32 s{sT}, s{sN}, 1")
    g(f"s_add_u32 s{sT}, s{sT}, s{sPB}")
    g(f"s_lshl2_add_u32 s{sWfl}, s{sT}, {WS_FW}")
    g(f"s_lshl_b32 s{sT}, s{sT}, 10")
    g(f"s_add_u32 s{sT}, s{sT}, {WS_WF}")
    g(f"v_lshl_add_u32 v60, v{vLane}, 4, s{sT}")
    g(f"buffer_store_dwordx4 v[56:59], v60, {s(WS,4)}, 0 offen sc1")
    g.label(lab)
    g(f"s_mov_b32 s{sL}, 79")
    g("s_waitcnt lgkmcnt(0)")
    g(f"v_readfirstlane_b32 s{sPB}, v61")
    g("s_cbranch_vccnz L_defer")
    g(f"s_add_u32 s{sT}, s{sPB}, s{sCnt}")
    g(f"s_cmp_gt_u32 s{sT}, {POOLCAP}")
    g("s_cbranch_scc1 L_defer")
    for k in range(4):
        g(f"v_add_u32 v{PO+k}, s{sPB}, v{PO+k}")
        g(f"v_lshl_or_b32 v{cX+k}, v{PO+k}, 22, v{cX+k}")
    g("s_branch L_have")
    g.label("L_defer")
    g.c("this wave's cells overflowed (or the pool is full): rescan its edge range in later rounds")
    g(f"s_mov_b32 s{sL}, 0")
    g(f"s_mov_b32 s{sCnt}, 0")
    g(f"s_mov_b32 s{sPB}, 0")
    for k in range(4):
        g(f"s_mov_b64 {s(sM[k],2)}, 0")
    g("v_mov_b32 v58, 1")
    g(f"v_mov_b32 v59, {FLAG}")
    g("ds_write_b32 v59, v58")
    g("s_branch L_have")

    g.label("L_scan")
    g.c("================ fallback scan of this wave's 20000 dst entries (rare path)")
    g("s_barrier")
    BUF = 60
    g(f"s_mov_b32 s{sAddr}, s{sRing}")
    g(f"s_add_u32 s{sLimit}, s{sRing}, {128*8}")
    g(f"s_xor_b32 s{sNomatch}, s{sB}, 1")
    g.label("L_sloop")
    g(f"s_cmp_ge_u32 s{sL}, 79")
    g("s_cbranch_scc1 L_scan_done")
    g(f"s_mul_i32 s{sT}, s{sWV}, 20000")
    g(f"s_lshl_b32 s{sN}, s{sL}, 8")
    g(f"s_add_u32 s{sC}, s{sT}, s{sN}")
    g(f"v_lshlrev_b32 v56, 2, v{vLane}")
    g(f"v_add_u32 v56, s{sC}, v56")
    g(f"v_lshlrev_b32 v57, 2, v56")
    g(f"buffer_load_dwordx4 {v(BUF,4)}, v57, {s(DST,4)}, 0 offen")
    g("s_waitcnt vmcnt(0)")
    g(f"s_cmp_lg_u32 s{sL}, 78")
    g("s_cbranch_scc1 L_snotlast")
    g(f"s_mov_b32 exec_lo, 0xffffff00")
    for k in range(4):
        g(f"v_mov_b32 v{BUF+k}, s{sNomatch}")
    g("s_mov_b64 exec, -1")
    g.label("L_snotlast")
    for k in range(4):
        lab = g.newlab()
        g(f"s_cmp_gt_u32 s{sKskip}, {k}")
        g(f"s_cbranch_scc1 {lab}")
        g(f"v_cmp_eq_u32_sdwa vcc, v{BUF+k}, s{sB} src0_sel:BYTE_0 src1_sel:DWORD")
        g(f"s_cbranch_vccz {lab}")
        g(f"s_bcnt1_i32_b64 s{sT}, vcc")
        g(f"s_lshl3_add_u32 s{sN}, s{sT}, s{sAddr}")
        g(f"s_mov_b32 s{sKskip}, {k}")
        g(f"s_cmp_gt_u32 s{sN}, s{sLimit}")
        g(f"s_cbranch_scc1 L_ovf")
        g(f"v_mbcnt_lo_u32_b32 v58, vcc_lo, 0")
        g(f"v_mbcnt_hi_u32_b32 v58, vcc_hi, v58")
        g(f"v_lshl_add_u32 v58, v58, 3, s{sAddr}")
        g(f"v_add_u32 v59, {k}, v56")
        g("s_mov_b64 exec, vcc")
        g(f"ds_write2_b32 v58, v{BUF+k}, v59 offset0:0 offset1:1")
        g("s_mov_b64 exec, -1")
        g(f"s_mov_b32 s{sAddr}, s{sN}")
        g.label(lab)
    g(f"s_mov_b32 s{sKskip}, 0")
    g(f"s_add_u32 s{sL}, s{sL}, 1")
    g("s_branch L_sloop")
    g.label("L_ovf")
    g("v_mov_b32 v58, 1")
    g(f"v_mov_b32 v59, {FLAG}")
    g("ds_write_b32 v59, v58")
    g.label("L_scan_done")
    g(f"s_sub_u32 s{sCnt}, s{sAddr}, s{sRing}")
    g(f"s_lshr_b32 s{sCnt}, s{sCnt}, 3")
    g(f"s_lshl_b32 s{sPB}, s{sWV}, 7")
    g(f"v_lshlrev_b32 v58, 3, v{vLane}")
    g(f"v_add_u32 v58, s{sRing}, v58")
    g("s_waitcnt lgkmcnt(0)")
    for k in range(2):
        g(f"ds_read_b32 v{cM+k}, v58 offset:{512*k}")
        g(f"ds_read_b32 v{cE+k}, v58 offset:{512*k+4}")
        g(f"s_sub_u32 s{sT}, s{sCnt}, {64*k}")
        g(f"v_cmp_gt_i32 {s(sM[k],2)}, s{sT}, v{vLane}")
    for k in range(2, 4):
        g(f"s_mov_b64 {s(sM[k],2)}, 0")
        g(f"v_mov_b32 v{cM+k}, 0")
        g(f"v_mov_b32 v{cX+k}, 0")
    g(f"v_lshl_add_u32 v58, v{vLane}, 2, s{sCand}")
    g(f"v_add_u32 v59, s{sPB}, v{vLane}")
    g(f"v_lshlrev_b32 v59, 22, v59")
    g("s_waitcnt lgkmcnt(0)")
    for k in range(2):
        g(f"v_lshlrev_b32 v{cK+k}, 2, v{cE+k}")
        g(f"buffer_load_dword v{cX+k}, v{cK+k}, {s(SRC,4)}, 0 offen")
        g(f"v_bfe_u32 v{cM+k}, v{cM+k}, 8, 6")
        g(f"v_min_u32 v{cM+k}, 47, v{cM+k}")
        g(f"ds_write_b32 v58, v{cE+k} offset:{256*k}")
    g("s_waitcnt vmcnt(0)")
    for k in range(2):
        g(f"v_min_u32 v{cX+k}, {N-1}, v{cX+k}")
        g(f"v_lshl_or_b32 v{cX+k}, v{cX+k}, 8, v59")
        g(f"v_add_u32 v59, {64<<22}, v59")
    g.label("L_have")
    g.c("================ histogram over (slot, src bin); payload DMA set-up")
    g("v_mov_b32 v58, 1")
    g(f"s_mov_b32 s{sT}, {HIST}")
    g(f"s_mov_b32 s{sN}, {DEG}")
    for k in range(4):
        g(f"v_bfe_u32 v{cK+k}, v{cX+k}, 8, 14")
        g(f"v_mul_u32_u24 v{cK+k}, 6711, v{cK+k}")
        g(f"v_lshrrev_b32 v{cK+k}, 22, v{cK+k}")
        g(f"v_min_u32 v{cK+k}, 15, v{cK+k}")
        g(f"v_lshl_add_u32 v{cK+k}, v{cK+k}, 2, s{sT}")
        g(f"v_lshl_add_u32 v{cK+k}, v{cM+k}, 6, v{cK+k}")
        g(f"v_lshl_add_u32 v{cM+k}, v{cM+k}, 2, s{sN}")
        g(f"s_mov_b64 exec, {s(sM[k],2)}")
        g(f"ds_add_rtn_u32 v{cR+k}, v{cK+k}, v58")
        g(f"ds_add_u32 v{cM+k}, v58")
        g("s_mov_b64 exec, -1")
    g(f"v_lshrrev_b32 v{vL2}, 1, v{vLane}")
    g(f"v_lshl_add_u32 v{vCand}, v{vL2}, 2, s{sCand}")
    EI = 40
    for q in range(4):
        g(f"ds_read_b32 v{EI+q}, v{vCand} offset:{128*q}")
    g(f"v_and_b32 v{vP4}, 1, v{vLane}")
    g(f"v_lshlrev_b32 v{vP16}, 4, v{vP4}")
    g(f"v_lshlrev_b32 v{vP4}, 2, v{vP4}")
    g(f"s_mov_b32 s{sDm}, s{sCnt}")
    g(f"s_mov_b32 s{sQ}, s{sPB}")
    g(f"v_lshl_add_u32 v56, v{vLane}, 2, s{sN}")
    g(f"v_mov_b32 v57, {FLAG}")
    g("s_waitcnt lgkmcnt(0)")

    def pay(q):
        lab = g.newlab()
        g(f"s_cmp_le_i32 s{sDm}, 0")
        g(f"s_cbranch_scc1 {lab}")
        g(f"v_lshl_add_u32 v44, v{EI+q}, 5, v{vP16}")
        g(f"v_lshl_add_u32 v45, v{EI+q}, 3, v{vP4}")
        g(f"v_cmp_gt_i32 vcc, s{sDm}, v{vL2}")
        g(f"s_lshl_b32 s{sOff}, s{sQ}, 5")
        g(f"s_add_u32 m0, s{sOff}, {PEA}")
        g("s_mov_b64 exec, vcc")
        g(f"buffer_load_dwordx4 v44, {s(EA,4)}, 0 offen{o.eald} lds")
        g(f"s_lshl3_add_u32 m0, s{sQ}, {PSH}")
        g(f"s_add_u32 s{sQ}, s{sQ}, 32")
        g(f"buffer_load_dword v45, {s(SH,4)}, 0 offen lds")
        g("s_mov_b64 exec, -1")
        g(f"s_sub_i32 s{sDm}, s{sDm}, 32")
        g.label(lab)
    sched = [int(x) for x in o.pay.split(",")]
    def stage(st):
        for q in range(4):
            if sched[q] == st:
                pay(q)
    stage(0)
    g("s_barrier")
    g.stamp(2)
    g.c("================ degrees, assignment, offsets")
    vDeg, vKey, vRank = 56, 57, 59
    g(f"ds_read_b32 v{vDeg}, v56")
    g(f"ds_read_b32 v57, v57")
    stage(1)
    g("s_waitcnt lgkmcnt(0)")
    g(f"v_readfirstlane_b32 s{sMore}, v57")
    g(f"s_cmp_lg_u32 s{sRound}, 0")
    g("s_cbranch_scc1 L_assigned")
    for i in range(4):
        for be in range(2):
            for t in range(2):
                g(f"ds_read_b64_tr_b16 {a_(aWR+8*i+4*be+2*t,2)}, v{vWb} offset:{WRIMG + t*256 + (2*i+be)*1024}")
    lab = g.newlab()
    g(f"s_and_b32 s{sT}, s{sB}, 63")
    g(f"s_or_b32 s{sT}, s{sT}, s{sWV}")
    g(f"s_cbranch_scc1 {lab}")
    g.c("the group's first workgroup has seen entries of all 64 members: all have read the epoch; advance it")
    g(f"s_lshl_b32 s{sT}, s{sB}, 1")
    g(f"v_mov_b32 v60, s{sT}")
    g(f"v_mov_b32 v61, s{sTag}")
    g("s_mov_b64 exec, 1")
    g(f"buffer_store_dword v61, v60, {s(WS,4)}, 0 offen sc1")
    g("s_mov_b64 exec, -1")
    g.label(lab)
    g(f"v_sub_u32 v{vKey}, 63, v{vLane}")
    g(f"v_lshl_add_u32 v{vKey}, v{vDeg}, 6, v{vKey}")
    g(f"v_mov_b32 v{vRank}, 0")
    masks = ["vcc", "s[4:5]", "s[6:7]"]
    for b0 in range(0, 40, 16):
        nb = min(16, 40 - b0)
        for j in range(nb):
            g(f"v_readlane_b32 s{sKey+j}, v{vKey}, {b0+j}")
        j = 0
        while j < nb:
            m = min(3, nb - j)
            for t in range(m):
                g(f"v_cmp_gt_u32 {masks[t]}, s{sKey+j+t}, v{vKey}")
            if m < 3:
                g.nop(3 - m)
            for t in range(m):
                g(f"v_addc_co_u32 v{vRank}, {masks[t]}, 0, v{vRank}, {masks[t]}")
            j += m
    g(f"v_lshrrev_b64 v[60:61], v{vRank}, {s(sLowM,2)}")
    g(f"v_and_b32 v{vOwner}, 1, v60")
    for k in range(5):
        g(f"s_bfe_u32 s{sN}, s{sRk}, {(6*k) | (6 << 16)}")
        g(f"v_cmp_eq_u32 vcc, s{sN}, v{vRank}")
        g(f"s_ff1_i32_b64 s{sSlot+k}, vcc")
    g.label("L_assigned")
    g(f"v_mul_u32_u24 v60, v{vDeg}, v{vOwner}")
    g(f"v_and_b32 v61, 15, v{vLane}")
    g(f"v_lshlrev_b32 v61, 2, v61")
    g(f"v_add_u32 v61, {HIST}, v61")
    AD, CN = 64, 70
    for k in range(5):
        g(f"s_lshl_b32 s{sKey+k}, s{sSlot+k}, 6")
        g(f"v_add_u32 v{AD+k}, s{sKey+k}, v61")
        g(f"ds_read_b32 v{CN+k}, v{AD+k}")
    for n_, sh_ in enumerate((1, 2, 4, 8)):
        g(f"v_add_u32_dpp v60, v60, v60 row_shr:{sh_} row_mask:0xf bank_mask:0xf bound_ctrl:1")
        g(f"v_readlane_b32 s{sKey+8+n_}, v{vDeg}, s{sSlot+n_}")
        g.nop(1)
    g(f"v_readlane_b32 s{sKey+12}, v{vDeg}, s{sSlot+4}")
    g(f"v_readlane_b32 s{sBase}, v60, 15")
    g(f"v_readlane_b32 s{sT}, v60, 31")
    g(f"v_readlane_b32 s{sN}, v60, 47")
    g(f"s_add_u32 s{sRem}, s{sKey+8}, s{sKey+9}")
    for k in range(2, 5):
        g(f"s_add_u32 s{sRem}, s{sRem}, s{sKey+8+k}")
    g(f"s_add_u32 s{sBase}, s{sBase}, s{sT}")
    g(f"s_add_u32 s{sBase}, s{sBase}, s{sN}")
    g(f"s_add_u32 s{sBase}, s{sBase}, 3")
    g(f"s_andn2_b32 s{sBase}, s{sBase}, 3")
    g(f"s_lshl2_add_u32 s{sBase}, s{sWV}, s{sBase}")
    g("s_waitcnt lgkmcnt(0)")
    g(f"v_add3_u32 v60, v{CN}, v{CN+1}, v{CN+2}")
    g(f"v_add3_u32 v60, v60, v{CN+3}, v{CN+4}")
    g("v_mov_b32 v61, v60")
    for sh_ in (1, 2, 4, 8):
        g.nop(2)
        g(f"v_add_u32_dpp v61, v61, v61 row_shr:{sh_} row_mask:0xf bank_mask:0xf bound_ctrl:1")
    g("v_sub_u32 v61, v61, v60")
    g(f"v_add_u32 v61, s{sBase}, v61")
    for k in range(5):
        g(f"v_lshl_add_u32 v{75+k}, v61, 8, {16*k}")
        g(f"ds_write_b32 v{AD+k}, v{75+k} offset:{OFF-HIST}")
        if k < 4:
            g(f"v_add_u32 v61, v61, v{CN+k}")
    stage(2)
    g("s_waitcnt lgkmcnt(0)")
    g("s_barrier")
    g.stamp(8)
    g.c("================ placement of (pool index | src | acc offset); re-zero HIST/FLAG")
    for k in range(4):
        g(f"ds_read_b32 v{cM+k}, v{cK+k} offset:{OFF-HIST}")
    g("v_mov_b32 v60, 0")
    g("v_mov_b32 v61, 0")
    g(f"v_lshlrev_b32 v64, 3, v0")
    g(f"v_add_u32 v64, {HIST}, v64")
    g("ds_write_b64 v64, v[60:61]")
    g(f"v_mov_b32 v64, {FLAG}")
    g("ds_write_b32 v64, v60")
    g(f"s_mov_b32 s{sT}, {META}")
    g(f"s_movk_i32 s{sN}, 255")
    g("s_waitcnt lgkmcnt(2)")
    for k in range(4):
        g(f"v_lshrrev_b32 v{cK+k}, 8, v{cM+k}")
        g(f"v_add_u32 v{cK+k}, v{cK+k}, v{cR+k}")
        g(f"v_and_or_b32 v{cM+k}, v{cM+k}, s{sN}, v{cX+k}")
        g(f"v_lshl_add_u32 v{cK+k}, v{cK+k}, 2, s{sT}")
        g(f"s_mov_b64 exec, {s(sM[k],2)}")
        g(f"ds_write_b32 v{cK+k}, v{cM+k}")
        g("s_mov_b64 exec, -1")
    stage(3)
    def paymore():
        g.c("lists longer than 128 candidates (rare): fetch the rest")
        g.label("L_paymore")
        g(f"s_cmp_le_i32 s{sDm}, 0")
        g("s_cbranch_scc1 L_paydone")
        g(f"ds_read_b32 v{EI}, v{vCand} offset:512")
        g(f"v_add_u32 v{vCand}, 128, v{vCand}")
        g("s_waitcnt lgkmcnt(0)")
        pay(0)
        g("s_branch L_paymore")
        g.label("L_paydone")
    late = 4 in sched
    if not late:
        paymore()
    RW, D, B, EA1, EA2, AC, M4, I1, I2, SHO = 16, 32, 48, 56, 60, 32, 68, 72, 73, 64
    vB1, vB2, vBS, vM1, vM2 = 74, 75, 76, 77, 78
    g(f"s_lshl_b32 s{sBase}, s{sBase}, 2")
    g(f"s_add_u32 s{sBase}, s{sBase}, {META}")
    g(f"s_and_b32 s{sN}, s{sB}, 192")
    g(f"s_lshl_b32 s{sN}, s{sN}, 1")
    g(f"s_lshl4_add_u32 s{sN}, s{sWV}, s{sN}")
    g(f"s_lshl2_add_u32 s{sT}, s{sN}, {WS_FW}")
    g(f"v_and_b32 v66, 15, v{vLane}")
    g(f"v_lshl_add_u32 v66, v66, 2, s{sT}")
    g(f"s_lshl_b32 s{sT}, s{sN}, 10")
    g(f"s_add_u32 s{sT}, s{sT}, {WS_WF}")
    g(f"v_lshl_add_u32 v67, v{vLane}, 4, s{sT}")
    g(f"s_xor_b32 s{sT}, s{sTag}, 1")
    g(f"v_mov_b32 v79, s{sT}")
    g(f"v_mov_b32 v{vMetaA}, s{sBase}")
    g(f"v_and_b32 v62, 3, v{vLane}")
    g(f"v_lshl_add_u32 v{vM1}, v62, 2, s{sBase}")
    g(f"v_bfe_u32 v62, v{vLane}, 2, 2")
    g(f"v_lshl_add_u32 v{vM2}, v62, 2, s{sBase}")
    g(f"v_bfe_u32 v63, v{vLane}, 4, 1")
    g(f"v_lshlrev_b32 v63, 4, v63")
    g(f"v_add_u32 v63, {PEA}, v63")
    g(f"v_mov_b32 v65, {PSH}")
    g(f"v_mov_b32 v62, {ZERO}")
    g(f"v_cmp_ne_u32 vcc, 0, v{vMul1}")
    g(f"v_cmp_ne_u32 s[4:5], 0, v{vMul2}")
    g(f"v_cmp_ne_u32 s[6:7], 0, v{vMulS}")
    g(f"v_cndmask_b32 v{vB1}, v62, v63, vcc")
    g(f"v_cndmask_b32 v{vB2}, v62, v63, s[4:5]")
    g(f"v_cndmask_b32 v{vBS}, v62, v65, s[6:7]")
    g("s_waitcnt lgkmcnt(0)")
    g("s_barrier")
    g.stamp(3)

    def issue(sm, r):
        g(f"s_and_b32 s{sOff}, s{sm+r}, s{sMask}")
        g(f"s_add_u32 m0, s{sRing}, {r*2048}")
        g(f"s_lshl_b32 s{sOff}, s{sOff}, 3")
        g(f"buffer_load_dwordx4 v{vDma0}, {s(X,4)}, s{sOff} offen lds")
        g(f"buffer_load_dwordx4 v{vDma1}, {s(X,4)}, s{sOff} offen offset:1024 lds")

    def opaddr():
        g(f"v_lshrrev_b32 v{I1}, 22, v{I1}")
        g(f"v_lshrrev_b32 v{I2}, 22, v{I2}")
        g(f"v_mad_u32_u24 v{vEa1}, v{I1}, v{vMul1}, v{vB1}")
        g(f"v_mad_u32_u24 v{vEa2}, v{I1}, v{vMul2}, v{vB2}")
        g(f"v_mad_u32_u24 v{vSh}, v{I2}, v{vMulS}, v{vBS}")

    g.c("================ first rows, then wait for everybody's payload")
    g(f"ds_read_b128 {v(M4,4)}, v{vMetaA}")
    g(f"ds_read_b32 v{I1}, v{vM1}")
    g(f"ds_read_b32 v{I2}, v{vM2}")
    g(f"s_cmp_lt_u32 s{sRem}, {R}")
    g("s_cbranch_scc1 L_short")
    g("s_waitcnt lgkmcnt(2)")
    for r in range(4):
        g(f"v_readfirstlane_b32 s{sMa+r}, v{M4+r}")
    for r in range(R):
        issue(sMa, r)
    if not late:
        g(f"s_waitcnt vmcnt({2*R})")
    g("s_branch L_go")
    g.label("L_short")
    g("s_waitcnt vmcnt(0) lgkmcnt(0)")
    for r in range(4):
        g(f"v_readfirstlane_b32 s{sMa+r}, v{M4+r}")
    for r in range(R - 1):
        g(f"s_cmp_le_u32 s{sRem}, {r}")
        g("s_cbranch_scc1 L_go")
        issue(sMa, r)
    g.label("L_go")
    if late:
        stage(4)
        g("s_waitcnt lgkmcnt(0)")
        paymore()
        g("s_waitcnt vmcnt(0)")
    lab = g.newlab()
    g(f"s_cmp_ge_u32 s{sWV}, 2")
    g(f"s_cbranch_scc1 {lab}")
    g(f"s_cmp_lg_u32 s{sRound}, 0")
    g(f"s_cbranch_scc1 {lab}")
    g.c("this wave's w_out fragment has been acknowledged: publish its flag (one extra wait step below)")
    g(f"v_mov_b32 v62, s{sWfl}")
    g(f"v_mov_b32 v63, s{sTag}")
    g("s_mov_b64 exec, 1")
    g(f"buffer_store_dword v63, v62, {s(WS,4)}, 0 offen sc1")
    g("s_mov_b64 exec, -1")
    g.label(lab)
    g("s_waitcnt lgkmcnt(0)")
    opaddr()
    g("s_barrier")
    g.stamp(9)
    g.cstamp(18)
    g(f"s_cmp_eq_u32 s{sRem}, 0")
    g("s_cbranch_scc1 L_round_done")
    g.c("================ sweep: groups of 4 edges")
    if o.prio:
        lab = g.newlab()
        g(f"s_cmp_lt_u32 s{sWV}, 4")
        g(f"s_cbranch_scc1 {lab}")
        g("s_setprio 1")
        g.label(lab)
    g.label("L_group")
    g(f"s_cmp_le_u32 s{sRem}, s{sWld}")
    g("s_cbranch_scc1 L_wstep")
    g.label("L_wback")
    g(f"ds_read_b64 {v(SHO,2)}, v{vSh}")
    g(f"ds_read_b128 {v(EA1,4)}, v{vEa1}")
    g(f"ds_read_b128 {v(EA2,4)}, v{vEa2}")
    g(f"ds_read_b128 {v(M4,4)}, v{vMetaA} offset:16")
    g(f"ds_read_b32 v{I1}, v{vM1} offset:16")
    g(f"ds_read_b32 v{I2}, v{vM2} offset:16")
    g(f"v_add_u32 v{vMetaA}, 16, v{vMetaA}")
    g(f"v_add_u32 v{vM1}, 16, v{vM1}")
    g(f"v_add_u32 v{vM2}, 16, v{vM2}")
    g("s_waitcnt lgkmcnt(0)")
    g(f"v_mfma_f32_16x16x16_bf16 {v(AC,4)}, {v(vCG,2)}, {v(SHO,2)}, 0")
    for i in range(4):
        g(f"v_mfma_f32_16x16x32_bf16 {v(RW+4*i,4)}, {v(EA1,4)}, {a_(aWR+8*i,4)}, 0")
    for i in range(4):
        g(f"v_mfma_f32_16x16x32_bf16 {v(RW+4*i,4)}, {v(EA2,4)}, {a_(aWR+8*i+4,4)}, {v(RW+4*i,4)}")
    for r in range(4):
        g(f"v_readfirstlane_b32 s{sMb+r}, v{M4+r}")
    g(f"v_cvt_pk_bf16_f32 v{SHO}, v{AC}, v{AC+1}")
    g(f"v_cvt_pk_bf16_f32 v{SHO+1}, v{AC+2}, v{AC+3}")
    opaddr()
    for r in range(4):
        g.c(f"-- edge {r}")
        l1 = g.newlab()
        g(f"s_cmp_ge_u32 s{sRem}, {R}")
        g(f"s_cbranch_scc1 {l1}")
        g("s_waitcnt vmcnt(0)")
        g.label(l1)
        g(f"s_waitcnt vmcnt({2*(R-1)})")
        for i in range(4):
            g(f"ds_read_b64_tr_b16 {v(B+2*i,2)}, v{vTr} offset:{r*2048+i*256}")
        def refill():
            l2 = g.newlab()
            g(f"s_cmp_le_u32 s{sRem}, {R}")
            g(f"s_cbranch_scc1 {l2}")
            issue(sMb if r + R >= 4 else sMa, (r + R) % 4)
            g.label(l2)
        lt = max(o.late, 1) if R == 4 else o.late
        if lt == 0:
            refill()
        g("s_waitcnt lgkmcnt(0)")
        if lt == 1:
            refill()
        for i in range(4):
            g(f"v_mfma_f32_4x4x4_16b_bf16 {v(D+4*i,4)}, {v(SHO,2)}, {v(B+2*i,2)}, 0 cbsz:4 abid:{r}")
        g.nop(1)
        g(f"s_set_gpr_idx_on s{sMa+r}, gpr_idx(SRC2,DST)")
        x = r & 1
        for i in range(4):
            rw = RW + 4 * i + (r & ~1)
            for wp in range(2):
                g(f"v_pk_fma_f32 {v(acc(0,i,2*wp),2)}, {v(D+4*i+2*wp,2)}, {v(rw,2)}, {v(acc(0,i,2*wp),2)} op_sel:[0,{x},0] op_sel_hi:[1,{x},1]")
        g("s_set_gpr_idx_off")
        if lt == 2:
            refill()
        g(f"s_mov_b32 s{sMa+r}, s{sMb+r}")
        g(f"s_sub_u32 s{sRem}, s{sRem}, 1")
        g(f"s_cmp_eq_u32 s{sRem}, 0")
        g(f"s_cbranch_scc{1 if r < 3 else 0} {'L_round_done' if r < 3 else 'L_group'}")
    g.label("L_round_done")
    g(f"s_add_u32 s{sRound}, s{sRound}, 1")
    g(f"s_cmp_lg_u32 s{sMore}, 0")
    g("s_cbranch_scc1 L_scan")
    g.stamp(4)
    g.cstamp(19)

    def wload(k0=0, k1=None, reg=67):
        for ks in range(k0, o.wsplit if k1 is None else k1):
            g(f"buffer_load_dwordx4 {a_(aW+4*ks,4)}, v{reg}, {s(WS,4)}, 0 offen offset:{(ks%4)*1024}{o.wflag}")
            if ks % 4 == 3:
                g(f"v_add_u32 v{reg}, 4096, v{reg}")
    g(f"s_cmp_eq_u32 s{sWld}, 0")
    g("s_cbranch_scc1 L_havew")
    g.c("================ w_out fragments not fetched during the sweep (short list): wait for the flags here")
    g(f"s_mov_b32 s{sC}, 0")
    g.label("L_pollw")
    g("s_waitcnt vmcnt(0)")
    g(f"v_cmp_ne_u32 vcc, s{sTag}, v79")
    g("s_cbranch_vccz L_gotw")
    g(f"buffer_load_dword v79, v66, {s(WS,4)}, 0 offen sc1")
    g("s_sleep 1")
    g(f"s_add_u32 s{sC}, s{sC}, 1")
    g(f"s_cmp_lt_u32 s{sC}, 0x400000")
    g("s_cbranch_scc1 L_pollw")
    g("s_endpgm")
    g.label("L_gotw")
    wload()
    g("s_branch L_havew")
    g.label("L_wstep")
    g.c("a flag load issued one group (4 edges and their waits) ago has landed")
    g(f"v_cmp_ne_u32 vcc, s{sTag}, v79")
    g("s_cbranch_vccz L_wgo")
    g(f"buffer_load_dword v79, v66, {s(WS,4)}, 0 offen sc1")
    g("s_branch L_wback")
    g.label("L_wgo")
    if o.wearly:
        wload()
        g(f"s_mov_b32 s{sWld}, 0")
    g("s_branch L_wback")
    g.label("L_havew")
    g("v_mov_b32 v13, v67")
    g.c("================ agg image -> LDS: channels 0..127 right away, 128..255 once every wave has left the ring")
    g(f"v_mul_u32_u24 v16, 320, v{vLane}")
    g(f"v_lshrrev_b32 v17, 2, v{vLane}")
    SK = 16 if o.g16 else 8
    ISTR = 64 * 320 + 16 * SK
    g(f"v_lshl_add_u32 v16, v17, {4 if o.g16 else 3}, v16")
    SA0, SA1, PKI = 5, 72, 32
    for k in range(5):
        g(f"s_lshl_b32 s{sT}, s{sSlot+k}, 3")
        g(f"v_add_u32 v{SA1+k}, s{sT}, v16")
        g(f"v_add_u32 v{SA0+k}, {IMG0}, v{SA1+k}")
    for i in range(4):
        for k in range(5):
            p = PKI + 10 * i + 2 * k
            g(f"v_cvt_pk_bf16_f32 v{p}, v{acc(k,i,0)}, v{acc(k,i,1)}")
            g(f"v_cvt_pk_bf16_f32 v{p+1}, v{acc(k,i,2)}, v{acc(k,i,3)}")
            if i < 2:
                g(f"ds_write_b64 v{SA0+k}, {v(p,2)} offset:{i*ISTR}")
    vG0, vG1, vO, vSw, vSr = 2, 3, 4, 10, 11
    g(f"v_lshrrev_b32 v20, 5, v{vLane}")
    g(f"v_mul_u32_u24 v21, 2576, v20")
    g(f"v_bfe_u32 v22, v{vLane}, 2, 2")
    g(f"v_mul_u32_u24 v24, 320, v22")
    g(f"v_bfe_u32 v23, v{vLane}, 4, 1")
    g(f"v_lshl_add_u32 v21, v23, 5, v21")
    g(f"v_and_b32 v23, 3, v{vLane}")
    g(f"v_lshl_add_u32 v21, v23, 3, v21")
    g(f"v_add_u32 v{vG1}, v21, v24")
    if o.g16:
        g(f"v_lshrrev_b32 v25, 4, v{vLane}")
        g(f"v_mul_u32_u24 v21, 2592, v25")
        g(f"v_lshl_add_u32 v21, v23, 3, v21")
        g(f"v_add_u32 v{vG1}, v21, v24")
    g(f"v_add_u32 v{vG0}, {IMG0}, v{vG1}")
    if o.swz:
        g(f"s_lshl_b32 s{sT}, s{sWV}, 12")
        g(f"s_add_u32 s{sT}, s{sT}, {STG + (-STG) % 256}")
        g(f"v_and_b32 v24, 31, v{vLane}")
        g(f"v_lshlrev_b32 v24, 6, v24")
        g(f"v_lshl_add_u32 v24, v20, 3, v24")
        g(f"v_bfe_u32 v25, v{vLane}, 1, 2")
        g(f"v_lshl_add_u32 v24, v25, 4, v24")
        g(f"v_add_u32 v5, s{sT}, v24")
        for a_i in range(1, 4):
            g(f"v_xor_b32 v{5+a_i}, {16*a_i}, v5")
        g(f"v_bfe_u32 v25, v{vLane}, 3, 2")
        g(f"v_xor_b32 v25, v25, v23")
        g(f"v_lshrrev_b32 v24, 2, v{vLane}")
        g(f"v_lshlrev_b32 v24, 6, v24")
        g(f"v_lshl_add_u32 v24, v25, 4, v24")
        g(f"v_add_u32 v{vSr}, s{sT}, v24")
    else:
        g(f"s_mul_i32 s{sT}, s{sWV}, 5120")
        g(f"s_add_u32 s{sT}, s{sT}, {STG}")
        g(f"v_and_b32 v24, 31, v{vLane}")
        g(f"v_mul_u32_u24 v24, 80, v24")
        g(f"v_lshl_add_u32 v24, v20, 3, v24")
        g(f"v_add_u32 v{vSw}, s{sT}, v24")
        if o.g16:
            g(f"v_and_b32 v24, 15, v{vLane}")
            g(f"v_mul_u32_u24 v24, 80, v24")
            g(f"v_lshl_add_u32 v24, v25, 3, v24")
            g(f"v_add_u32 v{vSw}, s{sT}, v24")
        g(f"v_lshrrev_b32 v24, 2, v{vLane}")
        g(f"v_mul_u32_u24 v24, 80, v24")
        g(f"v_lshl_add_u32 v24, v23, 4, v24")
        g(f"v_add_u32 v{vSr}, s{sT}, v24")
    g(f"v_lshrrev_b32 v24, 4, v{vLane}")
    g(f"v_lshlrev_b32 v24, 19, v24")
    g(f"v_lshl_add_u32 v24, v22, 9, v24")
    g(f"v_lshl_add_u32 v24, v23, 4, v24")
    g(f"s_lshl_b32 s{sT}, s{sB}, 11")
    g(f"s_lshl_b32 s{sN}, s{sWV}, 6")
    g(f"s_add_u32 s{sT}, s{sT}, s{sN}")
    g(f"v_add_u32 v{vO}, s{sT}, v24")
    if o.fakeline:
        g(f"s_and_b32 s{sN}, s{sWV}, 1")
        g(f"s_lshl_b32 s{sN}, s{sN}, 3")
        g(f"v_lshrrev_b32 v24, 3, v{vLane}")
        g(f"v_add_u32 v24, s{sN}, v24")
        g(f"v_lshrrev_b32 v25, 2, v24")
        g(f"v_lshlrev_b32 v25, 19, v25")
        g(f"v_and_b32 v24, 3, v24")
        g(f"v_lshl_add_u32 v25, v24, 9, v25")
        g(f"v_and_b32 v24, 7, v{vLane}")
        g(f"v_lshl_add_u32 v25, v24, 4, v25")
        g(f"s_lshr_b32 s{sN}, s{sWV}, 1")
        g(f"s_lshl_b32 s{sN}, s{sN}, 7")
        g(f"s_lshl_b32 s{sT}, s{sB}, 11")
        g(f"s_add_u32 s{sT}, s{sT}, s{sN}")
        g(f"v_add_u32 v{vO}, s{sT}, v25")
    g("s_waitcnt lgkmcnt(0)")
    g("s_barrier")
    g.stamp(5)
    g.cstamp(16)
    wload(o.wsplit, 16, 13)
    g.c("================ GEMM: out^T tile = W^T (A) x agg^T (B); k-steps 0..7 of some tiles first")
    ldsq = []
    g0 = g

    class Track:
        def __init__(self):
            self.n = 0
            self.pos = {}
            self.waited = 0

        def op(self, text, name=None):
            g0(text)
            if text.startswith("ds_"):
                self.n += 1
                if name is not None:
                    self.pos[name] = self.n

        def need(self, name):
            p = self.pos[name]
            if p <= self.waited:
                return
            k = min(self.n - p, 15)
            g0(f"s_waitcnt lgkmcnt({k})")
            self.waited = self.n - k
    T = Track()
    if o.g16:
        PD, NBUF = o.gdist, 8
        NA = 2 * o.gfirst
        order = [(t, ks) for t in range(NA) for ks in range(4)]
        for t in range(10):
            order += [(t, ks) for ks in range(4 if t < NA else 0, 8)]
        def DT(t): return ACC + 8 * t
        FBR = [16, 20, 24, 28, 32, 36, 40, 44]
        OBT = [52, 56, 60, 64]

        def rdj(j):
            t, ks = order[j]
            base = vG0 if ks < 4 else vG1
            for tt in range(2):
                g(f"ds_read_b64_tr_b16 {v(FBR[j%NBUF]+2*tt,2)}, v{base} offset:{(ks%4)*10368 + tt*1296 + t*32}")
        lastj = {}
        for j, (t, ks) in enumerate(order):
            lastj[t] = j
        work = {}
        for n in range(10):
            i, k = 2 + n // 5, n % 5
            work.setdefault(n // 2, []).append(f"ds_write_b64 v{SA1+k}, {v(PKI+10*i+2*k,2)} offset:{(i-2)*ISTR}")
        jb = 4 * NA - PD - 1
        assert jb >= 5 + PD
        work.setdefault(jb, []).append("s_barrier")
        for t in range(10):
            st_ = lastj[t] + 2
            d, ob, so = DT(t), OBT[t % 4], 1280 * (t % 4)
            for dt in range(2):
                work.setdefault(st_ + dt, []).extend([
                    f"v_cvt_pk_bf16_f32 v{d+2*dt}, v{d+4*dt}, v{d+4*dt+1}",
                    f"v_cvt_pk_bf16_f32 v{d+2*dt+1}, v{d+4*dt+2}, v{d+4*dt+3}",
                    f"ds_write_b64 v{vSw}, {v(d+2*dt,2)} offset:{so+32*dt}"])
            work.setdefault(st_ + 1, []).append(f"ds_read_b128 {v(ob,4)}, v{vSr} offset:{so}")
            work.setdefault(st_ + 1 + PD + 1, []).append(("store", t))

        def dowork(j):
            for w in work.get(j, []):
                if isinstance(w, tuple):
                    g(f"buffer_store_dwordx4 {v(OBT[w[1] % 4],4)}, v{vO}, {s(OUT,4)}, 0 offen{o.stflag}")
                    g(f"v_add_u32 v{vO}, {4<<19}, v{vO}")
                else:
                    g(w)
        for j in range(PD):
            rdj(j)
        g("s_waitcnt vmcnt(8)")
        seen = set()
        for j, (t, ks) in enumerate(order):
            if j == 4 * NA:
                g("s_waitcnt vmcnt(0)")
            g(f"s_waitcnt lgkmcnt({2*min(PD-1, 79-j)})")
            for dt in range(2):
                cin = v(DT(t) + 4 * dt, 4) if t in seen else "0"
                g(f"v_mfma_f32_16x16x32_bf16 {v(DT(t)+4*dt,4)}, {a_(aW+8*ks+4*dt,4)}, {v(FBR[j%NBUF],4)}, {cin}")
            seen.add(t)
            if j + PD < 80:
                rdj(j + PD)
            dowork(j)
        g.nop(8)
        for j in sorted(work):
            if j >= 80:
                if any(isinstance(w, tuple) for w in work[j]):
                    g("s_waitcnt lgkmcnt(0)")
                dowork(j)
    else:
        PD, NBUF = o.gdist, 8
        NA = o.gfirst
        order = [(t, ks) for t in range(NA) for ks in range(8)]
        for t in range(5):
            order += [(t, ks) for ks in range(8 if t < NA else 0, 16)]
        if o.gorder:
            NA = 4
            order = []
            for (ta, ha), (tb, hb) in [((0,0),(1,0)), ((2,0),(3,0)), ((0,1),(1,1)), ((2,1),(4,0)), ((3,1),(4,1))]:
                for kk in range(8):
                    order += [(ta, 8*ha+kk), (tb, 8*hb+kk)]
        def DT(t): return ACC + 16 * t
        FBR = [16, 20, 24, 28, 32, 36, 40, 44]
        OBT = [52, 60]

        def rdj(j):
            t, ks = order[j]
            base = vG0 if ks < 8 else vG1
            for tt in range(2):
                T.op(f"ds_read_b64_tr_b16 {v(FBR[j%NBUF]+2*tt,2)}, v{base} offset:{(ks%8)*5152 + tt*1288 + t*64}", ("f", j))
        lastj = {}
        for j, (t, ks) in enumerate(order):
            lastj[t] = j
        work = {}
        for n in range(10):
            i, k = 2 + n // 5, n % 5
            work.setdefault(n, []).append((f"ds_write_b64 v{SA1+k}, {v(PKI+10*i+2*k,2)} offset:{(i-2)*ISTR}", "img"))
        jb = 8 * NA - PD - 1
        assert jb >= 10
        work.setdefault(jb, []).append(("barrier", None))
        free = 0
        for t in range(5):
            st_ = max(lastj[t] + 4, free)
            d, ob, so = DT(t), OBT[t % 2], (2048 if o.swz else 2560) * (t % 2)
            for a_i in range(4):
                work.setdefault(st_ + a_i, []).extend([
                    (f"v_cvt_pk_bf16_f32 v{d+2*a_i}, v{d+4*a_i}, v{d+4*a_i+1}", None),
                    (f"v_cvt_pk_bf16_f32 v{d+2*a_i+1}, v{d+4*a_i+2}, v{d+4*a_i+3}", None),
                    (f"ds_write_b64 v{5+a_i}, {v(d+2*a_i,2)} offset:{so}" if o.swz else
                     f"ds_write_b64 v{vSw}, {v(d+2*a_i,2)} offset:{so+16*a_i}", None)])
            for hf in range(2):
                work.setdefault(st_ + 4 + hf, []).append((f"ds_read_b128 {v(ob+4*hf,4)}, v{vSr} offset:{so+(1024 if o.swz else 1280)*hf}", ("o", t, hf)))
                work.setdefault(st_ + 4 + hf + PD + 1, []).append(("store", (t, hf)))
            free = st_ + 6

        def dowork(j):
            for w, name in work.get(j, []):
                if w == "store":
                    t, hf = name
                    T.need(("o", t, hf))
                    g(f"buffer_store_dwordx4 {v(OBT[t%2]+4*hf,4)}, v{vO}, {s(OUT,4)}, 0 offen{o.stflag}")
                    g(f"v_add_u32 v{vO}, {4<<19}, v{vO}")
                elif w == "barrier":
                    T.need("img")
                    g("s_barrier")
                else:
                    T.op(w, name)
        for j in range(PD):
            rdj(j)
        g("s_waitcnt vmcnt(8)")
        seen = set()
        for j, (t, ks) in enumerate(order):
            if j == 8 * NA:
                g("s_waitcnt vmcnt(0)")
            T.need(("f", min(79, j | (o.gw - 1))))
            cin = v(DT(t), 16) if t in seen else "0"
            seen.add(t)
            g(f"v_mfma_f32_32x32x16_bf16 {v(DT(t),16)}, {a_(aW+4*ks,4)}, {v(FBR[j%NBUF],4)}, {cin}")
            if j + PD < 80:
                rdj(j + PD)
            dowork(j)
        g.nop(12)
        for j in sorted(work):
            if j >= 80:
                dowork(j)
    if o.stamps:
        g.stamp(10)
        g.cstamp(17)
        g("s_waitcnt vmcnt(0)")
        g.stamp(7)
        g(f"s_lshl_b32 s{sT}, s{sB}, 3")
        g(f"s_add_u32 s{sT}, s{sT}, s{sWV}")
        g(f"s_lshl_b32 s{sT}, s{sT}, 8")
        g(f"s_add_u32 s{sT}, s{sT}, {WS_STAMP}")
        g(f"v_lshlrev_b32 v16, 2, v{vLane}")
        g(f"v_add_u32 v16, s{sT}, v16")
        g(f"buffer_store_dword v{vStamp}, v16, {s(WS,4)}, 0 offen")
    if o.amp:
        i0, i1 = [int(x) for x in o.amp.split(",")]
        g(f"v_readlane_b32 s60, v{vStamp}, {i0}")
        g(f"v_readlane_b32 s61, v{vStamp}, {i1}")
        g(f"v_readlane_b32 s62, v{vStamp}, 7")
        g("s_sub_u32 s61, s61, s60")
        g("s_lshl_b32 s61, s61, 2")
        g.label("L_amp")
        g("s_memrealtime s[4:5]")
        g("s_waitcnt lgkmcnt(0)")
        g("s_sub_u32 s4, s4, s62")
        g("s_cmp_lt_u32 s4, s61")
        g("s_cbranch_scc1 L_amp")
    g.label("L_end")
    g("s_endpgm")
    return g.L


HEADER = open("/code/" + NAME + ".s.ref").read().split("; Override launch")[0]


def kd(name, vg, sg, acc):
    return f""".section .rodata,"a"
.p2align 6
.amdhsa_kernel {name}
  .amdhsa_next_free_vgpr {vg}
  .amdhsa_next_free_sgpr {sg}
  .amdhsa_accum_offset {acc}
  .amdhsa_group_segment_fixed_size 0
  .amdhsa_kernarg_size 88
  .amdhsa_user_sgpr_count 2
  .amdhsa_user_sgpr_kernarg_segment_ptr 1
  .amdhsa_system_sgpr_workgroup_id_x 1
  .amdhsa_float_denorm_mode_32 3
.end_amdhsa_kernel
"""


def emit(o):
    out = HEADER
    out += f"; @launch grid=(256,1,1) block=(512,1,1) lds={LDS_BYTES}\n"
    out += "; generated by dev/gen.py\n"
    out += '.amdgcn_target "amdgcn-amd-amdhsa--gfx950"\n.text\n'
    out += f".globl {NAME}_kernel\n.p2align 8\n.type {NAME}_kernel,@function\n{NAME}_kernel:\n"
    out += "\n".join(build(o)) + "\n"
    out += kd(NAME + "_kernel", 256, 102, 160)
    open(o.o, "w").write(out)


if __name__ == "__main__":
    ap = argparse.ArgumentParser()
    ap.add_argument("-o", default="/code/" + NAME + ".s")
    ap.add_argument("--stamps", action="store_true")
    ap.add_argument("--pf", default="0,0,0")
    ap.add_argument("--k1ld", default="")
    ap.add_argument("--eald", default="")
    ap.add_argument("--stflag", default=" sc1")
    ap.add_argument("--R", type=int, default=3)
    ap.add_argument("--nostore", action="store_true")
    ap.add_argument("--gdist", type=int, default=5)
    ap.add_argument("--gfirst", type=int, default=3)
    ap.add_argument("--wat", type=int, default=8)
    ap.add_argument("--g16", type=int, default=0)
    ap.add_argument("--wearly", type=int, default=0)
    ap.add_argument("--wflag", default=" sc1")
    ap.add_argument("--pay", default="0,1,2,3")
    ap.add_argument("--codepf", type=int, default=0)
    ap.add_argument("--prewait", type=int, default=1)
    ap.add_argument("--probe", type=int, default=0)
    ap.add_argument("--sleep", type=int, default=4)
    ap.add_argument("--tlb", type=int, default=0)
    ap.add_argument("--fakeline", type=int, default=0)
    ap.add_argument("--swz", type=int, default=1)
    ap.add_argument("--gorder", type=int, default=0)
    ap.add_argument("--gw", type=int, default=1)
    ap.add_argument("--wsplit", type=int, default=16)
    ap.add_argument("--late", type=int, default=0)
    ap.add_argument("--prio", type=int, default=0)
    ap.add_argument("--bias", type=int, default=103)
    ap.add_argument("--eapf", type=int, default=0)
    ap.add_argument("--shpf", default="2,3,0")
    ap.add_argument("--diagsleep", type=int, default=0)
    ap.add_argument("--pubflag", default=" sc1")
    ap.add_argument("--amp", default="", help="diagnostic: spin 4x the time between two stamps at the end")
    emit(ap.parse_args())
```
